```python
import torch

def _softmax(x, axis=-1):
    return torch.softmax(x, dim=axis)

def _gelu(x):
    return torch.nn.functional.gelu(x, approximate='tanh')

def _silu(x):
    return torch.nn.functional.silu(x)

def _sigmoid(x):
    return torch.sigmoid(x)

def _layernorm(x, axis=-1, eps=1e-05):
    m = x.mean(dim=axis, keepdim=True)
    v = x.var(dim=axis, keepdim=True, unbiased=False)
    return (x - m) / torch.sqrt(v + eps)

def _scatter_add(tgt, idx, src, axis=0):
    return tgt.clone().index_add_(axis, idx, src)

def _segment_sum(src, seg, n):
    out = torch.zeros((n,) + src.shape[1:], dtype=src.dtype)
    return out.index_add_(0, seg, src)

def _pad(x, pw):
    flat = tuple((v for pair in reversed(pw) for v in pair))
    return torch.nn.functional.pad(x, flat)
kernel_name = 'gated_mix__memory_aug_recurrent_mem_tr__swiglu_ffn__prompt'

def setup_inputs():

    _w = lambda a: (lambda t: t.to(torch.bfloat16) if t.is_floating_point() else t)(torch.as_tensor(a))

    def _A_setup():
        B, S, Dm = (1, 2048, 1024)
        H, Dh = (32, 128)
        M, seg = (8, 32)
        seg = min(seg, S)
        S = S // seg * seg
        return {'x': _w((lambda *s: torch.randn(*s, dtype=torch.bfloat16) * 0.05)(B, S, Dm)), 'mem0': _w((lambda *s: torch.randn(*s, dtype=torch.bfloat16) * 0.4)(B, M, Dm)), 'Wq': _w((lambda *s: torch.randn(*s, dtype=torch.bfloat16) * 6.4)(Dm, H, Dh) * Dm ** (-0.5)), 'Wk': _w((lambda *s: torch.randn(*s, dtype=torch.bfloat16) * 6.4)(Dm, H, Dh) * Dm ** (-0.5)), 'Wv': _w((lambda *s: torch.randn(*s, dtype=torch.bfloat16) * 0.4)(Dm, H, Dh) * Dm ** (-0.5)), 'Wo': _w((lambda *s: torch.randn(*s, dtype=torch.bfloat16) * 0.4)(H, Dh, Dm) * (H * Dh) ** (-0.5)), 'seg_len': seg}
    _A_in = _A_setup()

    def _B_setup():
        B, S, D, F = (1, 2048, 1024, 3584)
        return {'x': _w((lambda *s: torch.randn(*s, dtype=torch.bfloat16) * 0.05)(B, S, D)), 'w_gate': _w((lambda *s: torch.randn(*s, dtype=torch.bfloat16) * 0.05)(D, F)), 'w_up': _w((lambda *s: torch.randn(*s, dtype=torch.bfloat16) * 0.05)(D, F)), 'w_down': _w((lambda *s: torch.randn(*s, dtype=torch.bfloat16) * 0.05)(F, D))}
    _B_in = _B_setup()
    return {'A_x': _A_in['x'], 'A_mem0': _A_in['mem0'], 'A_Wq': _A_in['Wq'], 'A_Wk': _A_in['Wk'], 'A_Wv': _A_in['Wv'], 'A_Wo': _A_in['Wo'], 'A_seg_len': _A_in['seg_len'], 'B_x': _B_in['x'], 'B_w_gate': _B_in['w_gate'], 'B_w_up': _B_in['w_up'], 'B_w_down': _B_in['w_down'], 'gate_w': _w((lambda *s: torch.randn(*s, dtype=torch.bfloat16) * 0.05)(1024) * 16.0)}

def reference(A_x, A_mem0, A_Wq, A_Wk, A_Wv, A_Wo, A_seg_len, B_x, B_w_gate, B_w_up, B_w_down, gate_w):

    def _A_ref(x, mem0, Wq, Wk, Wv, Wo, seg_len):
        B, S, Dm = x.shape
        H, Dh = (Wq.shape[1], Wq.shape[2])
        M = mem0.shape[1]
        scale = Dh ** (-0.5)
        n_seg = S // seg_len
        L = M + seg_len
        idx = torch.arange(L)
        mask = (idx[:, None] < M) | (idx[:, None] >= idx[None, :])
        mem = mem0
        outs = []
        for s in range(n_seg):
            xs = x[:, s * seg_len:(s + 1) * seg_len, :].clone()
            h = torch.concatenate([mem, xs], axis=1)
            q = torch.einsum('btd,dhe->bhte', h, Wq)
            k = torch.einsum('btd,dhe->bhte', h, Wk)
            v = torch.einsum('btd,dhe->bhte', h, Wv)
            scores = torch.einsum('bhqe,bhke->bhqk', q, k) * scale
            scores = torch.where(mask[None, None], scores, -1000000000.0)
            p = _softmax(scores, axis=-1)
            o = torch.einsum('bhqk,bhke->bhqe', p, v)
            o = torch.einsum('bhte,hed->btd', o, Wo)
            mem = o[:, :M, :].clone()
            outs.append(o[:, M:, :])
        return torch.concatenate(outs, axis=1)

    def _B_ref(x, w_gate, w_up, w_down):
        g = _silu(x @ w_gate)
        u = x @ w_up
        return g * u @ w_down
    x = A_x
    g = _sigmoid((x * gate_w).sum(-1, keepdims=True))
    a = _A_ref(x, A_mem0, A_Wq, A_Wk, A_Wv, A_Wo, A_seg_len)
    b = _B_ref(x, B_w_gate, B_w_up, B_w_down)
    return g * a + (1 - g) * b
```

```python
import re

TRANS = ('v_exp_f32', 'v_log_f32', 'v_rcp_f32', 'v_rsq_f32', 'v_sqrt_f32', 'v_sin_f32', 'v_cos_f32',
         'v_rcp_iflag_f32')

REG_RE = re.compile(r'^(v|a|s)(\d+)$')
RNG_RE = re.compile(r'^(v|a|s)\[(\d+):(\d+)\]$')


def regs_of(op):
    op = op.strip()
    if op.startswith('-'):
        op = op[1:]
    if op.startswith('|') and op.endswith('|'):
        op = op[1:-1]
    if op.startswith('abs(') or op.startswith('neg('):
        op = op[4:-1]
    m = REG_RE.match(op)
    if m:
        return [(m.group(1), int(m.group(2)))]
    m = RNG_RE.match(op)
    if m:
        return [(m.group(1), i) for i in range(int(m.group(2)), int(m.group(3)) + 1)]
    if op in ('vcc',):
        return [('s', 'vcc_lo'), ('s', 'vcc_hi')]
    if op in ('vcc_lo', 'vcc_hi', 'm0', 'exec_lo', 'exec_hi', 'scc'):
        return [('s', op)]
    if op == 'exec':
        return [('s', 'exec_lo'), ('s', 'exec_hi')]
    return []


class Ins:
    __slots__ = ('text', 'mn', 'ops', 'mods', 'dst', 'src', 'kind', 'passes', 'srcc', 'srcab', 'label',
                 'target', 'states', 'is_dpp', 'is_trans', 'lds_dma', 'wide_store', 'store_data', 'comment',
                 'opsel')

    def __init__(self, text):
        self.text = text
        self.label = None
        self.target = None
        self.dst = []
        self.src = []
        self.srcc = []
        self.srcab = []
        self.store_data = []
        self.kind = 'other'
        self.passes = 0
        self.states = 1
        self.is_dpp = False
        self.is_trans = False
        self.lds_dma = False
        self.wide_store = False
        self.opsel = False
        t = text.split(';')[0].strip()
        if t.endswith(':'):
            self.label = t[:-1]
            self.kind = 'label'
            self.states = 0
            self.mn = ''
            return
        if t == '' or t.startswith('.'):
            self.kind = 'directive'
            self.states = 0
            self.mn = ''
            return
        parts = t.split(None, 1)
        mn = parts[0]
        self.mn = mn
        rest = parts[1] if len(parts) > 1 else ''
        ops = []
        depth = 0
        cur = ''
        for ch in rest:
            if ch in '[(':
                depth += 1
            if ch in '])':
                depth -= 1
            if ch == ',' and depth == 0:
                ops.append(cur.strip())
                cur = ''
            else:
                cur += ch
        if cur.strip():
            ops.append(cur.strip())
        mods = ''
        if ops:
            last = ops[-1].split(None, 1)
            if len(last) > 1 and not ops[-1].startswith('hwreg'):
                ops[-1] = last[0]
                mods = last[1]
        self.ops = ops
        self.mods = mods
        R = [regs_of(o) for o in ops]
        allr = lambda L: [r for x in L for r in x]
        if mn.startswith('v_mfma') or mn.startswith('v_smfmac'):
            self.kind = 'mfma'
            if '32x32' in mn:
                self.passes = 8
            elif '16x16' in mn:
                self.passes = 4
            else:
                self.passes = 2
            if mn.startswith('v_smfmac'):
                self.passes = 4 if '16x16' in mn else 8
                self.dst = R[0]
                self.srcab = R[1] + R[2] + R[3]
                self.srcc = R[0]
            else:
                self.dst = R[0]
                self.srcab = R[1] + R[2]
                self.srcc = R[3]
            self.src = self.srcab + self.srcc
        elif mn.startswith('v_'):
            self.kind = 'valu'
            base = mn.replace('_e32', '').replace('_e64', '').replace('_dpp', '').replace('_sdwa', '')
            self.is_trans = base in TRANS
            self.is_dpp = any(k in mods for k in ('row_', 'quad_perm', 'wave_')) or mn.endswith('_dpp')
            self.opsel = ('op_sel' in mods and not mn.startswith('v_pk_')) or 'sdwa' in mn or 'dst_sel' in mods
            if mn.startswith('v_cmp'):
                self.dst = R[0]
                self.src = allr(R[1:])
                if mn.startswith('v_cmpx'):
                    raise ValueError('v_cmpx not supported')
            elif mn.startswith('v_permlane') and 'swap' in mn:
                self.dst = R[0] + R[1]
                self.src = R[0] + R[1]
            elif mn.startswith('v_swap'):
                self.dst = R[0] + R[1]
                self.src = R[0] + R[1]
            elif '_co_' in mn or mn.startswith('v_div_scale'):
                self.dst = R[0] + R[1]
                self.src = allr(R[2:])
            elif mn == 'v_nop':
                pass
            else:
                self.dst = R[0]
                self.src = allr(R[1:])
                if base.startswith('v_fmac') or base.startswith('v_mac') or base.startswith('v_writelane') \
                        or self.is_dpp or base.startswith('v_dot') and base.endswith('c_f32_bf16'):
                    self.src = self.src + R[0]
                if base.startswith('v_cndmask') and len(ops) == 3:
                    self.src = self.src + regs_of('vcc')
        elif mn.startswith('buffer_') or mn.startswith('global_') or mn.startswith('flat_'):
            self.kind = 'vmem'
            modl = mods.split()
            if 'lds' in modl or '_lds_' in mn:
                self.lds_dma = True
                self.src = allr(R) + regs_of('m0')
            elif 'store' in mn:
                self.src = allr(R)
                self.store_data = R[0] if mn.startswith('buffer_') else R[1]
                self.wide_store = 'x3' in mn or 'x4' in mn
            elif 'atomic' in mn:
                if mn.startswith('buffer_'):
                    self.src = allr(R)
                    if 'sc0' in modl:
                        self.dst = R[0]
                else:
                    if 'sc0' in modl:
                        self.dst = R[0]
                        self.src = allr(R[1:])
                    else:
                        self.src = allr(R)
            else:
                self.dst = R[0]
                self.src = allr(R[1:])
        elif mn.startswith('ds_'):
            self.kind = 'ds'
            if 'write' in mn or ('_add_' in mn and 'rtn' not in mn):
                self.src = allr(R)
            else:
                self.dst = R[0]
                self.src = allr(R[1:])
        elif mn.startswith('s_'):
            self.kind = 'salu'
            if mn == 's_nop':
                self.states = int(ops[0], 0) + 1
            elif mn.startswith('s_cbranch') or mn == 's_branch':
                self.kind = 'branch'
                self.target = ops[0]
            elif mn in ('s_waitcnt', 's_barrier', 's_endpgm', 's_setprio', 's_sleep'):
                pass
            elif mn.startswith('s_load') or mn.startswith('s_buffer_load') or mn.startswith('s_memtime') \
                    or mn.startswith('s_memrealtime'):
                self.kind = 'smem'
                self.dst = R[0]
                self.src = allr(R[1:])
            elif mn.startswith('s_cmp') or mn.startswith('s_bitcmp'):
                self.src = allr(R)
            else:
                self.dst = R[0] if R else []
                self.src = allr(R[1:])
                if 'saveexec' in mn:
                    self.dst = self.dst + regs_of('exec')
        else:
            raise ValueError('unknown instruction: ' + text)


def need_states(p, c):
    n = 0
    vp = [r for r in p.dst if r[0] in 'va']
    sp = [r for r in p.dst if r[0] == 's']
    csrc = set(c.src)
    cdst = set(c.dst)
    if p.kind == 'valu':
        hit_v = any(r in csrc for r in vp)
        hit_s = any(r in csrc for r in sp)
        if hit_v:
            if c.kind == 'mfma':
                n = max(n, 2)
            if c.kind == 'valu':
                if c.is_dpp:
                    n = max(n, 2)
                if c.mn.startswith('v_permlane'):
                    n = max(n, 2)
                if c.mn.startswith('v_readlane') or c.mn.startswith('v_readfirstlane'):
                    n = max(n, 1)
                if p.is_trans and not c.is_trans:
                    n = max(n, 1)
                if p.opsel:
                    n = max(n, 1)
            if p.is_trans and c.kind in ('vmem', 'ds'):
                n = max(n, 1)
        if p.opsel and c.kind == 'valu' and any(r in cdst for r in vp):
            n = max(n, 1)
        if hit_s:
            if c.kind == 'vmem':
                n = max(n, 5)
            if c.kind == 'valu':
                n = max(n, 4 if (c.mn.startswith('v_readlane') or c.mn.startswith('v_writelane')) else 2)
            if c.kind == 'smem':
                n = max(n, 1)
    if p.kind == 'mfma':
        d = set(p.dst)
        if c.kind == 'mfma':
            if any(r in d for r in c.srcab):
                n = max(n, p.passes + 4)
            if any(r in d for r in c.srcc):
                if c.srcc == p.dst and c.passes == p.passes and c.mn == p.mn:
                    n = max(n, 2 if p.passes == 2 else 0)
                else:
                    n = max(n, p.passes + 2)
            elif any(r in d for r in c.dst):
                n = max(n, p.passes + 2)
        elif c.kind in ('valu', 'vmem', 'ds'):
            if any(r in d for r in c.src) or any(r in d for r in c.dst):
                n = max(n, p.passes + 4)
        if c.kind in ('valu', 'ds', 'vmem') and any(r in cdst for r in p.srcc):
            n = max(n, p.passes - 1)
    if p.kind == 'salu' and ('s', 'm0') in p.dst and c.kind == 'vmem' and c.lds_dma:
        n = max(n, 1)
    if p.kind == 'vmem' and p.wide_store and any(r in cdst for r in p.store_data):
        n = max(n, 2 if c.kind in ('valu', 'mfma') else 1)
    return n


class Asm:
    def __init__(self):
        self.lines = []
        self.uid = 0

    def __call__(self, text):
        for t in text.split('\n'):
            t = t.strip()
            if t:
                self.lines.append(t)

    def label(self, name):
        self.lines.append(name + ':')

    def new_label(self, stem='L'):
        self.uid += 1
        return '%s_%d' % (stem, self.uid)

    def comment(self, text):
        self.lines.append('; ' + text)


def hazard_pass(lines, verbose=False):
    ins = [Ins(t) for t in lines]
    MAXD = 21
    changed = True
    total = 0
    rounds = 0
    while changed:
        changed = False
        rounds += 1
        branches = {}
        for k, x in enumerate(ins):
            if x.kind == 'branch':
                branches.setdefault(x.target, []).append(k)
        k = 0
        while k < len(ins):
            c = ins[k]
            if c.kind in ('label', 'directive') or (not c.src and not c.dst):
                k += 1
                continue
            worst = 0
            stack = [(k - 1, 0)]
            seen = set()
            while stack:
                j, dist = stack.pop()
                while j >= 0 and dist < MAXD:
                    if (j, dist) in seen:
                        break
                    seen.add((j, dist))
                    p = ins[j]
                    if p.kind == 'label':
                        for b in branches.get(p.label, []):
                            stack.append((b, dist))
                        j -= 1
                        jj = j
                        while jj >= 0 and ins[jj].kind in ('label', 'directive'):
                            jj -= 1
                        if jj >= 0 and ins[jj].mn in ('s_branch', 's_endpgm') and all(
                                ins[q].kind != 'label' for q in range(jj + 1, j + 1)):
                            break
                        continue
                    if p.kind == 'directive':
                        j -= 1
                        continue
                    need = need_states(p, c)
                    if need > dist:
                        worst = max(worst, need - dist)
                    dist += p.states
                    j -= 1
            if worst > 0:
                ins.insert(k, Ins('s_nop %d' % (worst - 1)))
                total += 1
                if verbose:
                    print('hazard: s_nop %d before %s' % (worst - 1, c.text))
                for t in branches:
                    branches[t] = [b + 1 if b >= k else b for b in branches[t]]
                k += 1
                changed = True
            k += 1
        if rounds > 5:
            break
    return [x.text for x in ins]


WAIT_RE = re.compile(r'(vmcnt|lgkmcnt)\((\d+)\)')


def waitcnt_check(lines, max_states=6):
    ins = [Ins(t) for t in lines]
    labels = {x.label: k for k, x in enumerate(ins) if x.kind == 'label'}
    errs = []
    dsts = [frozenset(x.dst) for x in ins]
    touched = [frozenset(x.src) | frozenset(x.dst) for x in ins]
    srcs = [frozenset(x.src) for x in ins]
    seen = {}
    work = [(0, (), ())]
    while work:
        k, vm, lg = work.pop()
        while k < len(ins):
            x = ins[k]
            if x.kind == 'label':
                st = seen.setdefault(k, [])
                key = (vm, lg)
                if key in st or len(st) >= max_states:
                    break
                st.append(key)
                k += 1
                continue
            if x.kind == 'directive':
                k += 1
                continue
            if x.mn == 's_waitcnt':
                for name, n in WAIT_RE.findall(x.text):
                    n = int(n)
                    if name == 'vmcnt':
                        if len(vm) > n:
                            vm = vm[len(vm) - n:]
                    else:
                        nsm = sum(1 for e in lg if ins[e].kind == 'smem')
                        if n > 0 and nsm:
                            ds = [e for e in lg if ins[e].kind != 'smem']
                            done = set(ds[:max(0, len(ds) - n)])
                            lg = tuple(e for e in lg if e not in done)
                        elif len(lg) > n:
                            lg = lg[len(lg) - n:]
                k += 1
                continue
            if x.mn == 's_endpgm':
                break
            if touched[k] and ';poll' not in x.text:
                for q in (vm, lg):
                    for e in q:
                        if dsts[e] & touched[k]:
                            if not (srcs[k] & dsts[e]) and x.kind in ('vmem', 'ds') and ins[e].kind == x.kind:
                                continue
                            errs.append('uncovered: "%s" (line %d) touches result of "%s"' % (x.text, k, ins[e].text))
            if x.kind == 'vmem':
                vm = (vm + (k,))[-64:]
            elif x.kind in ('ds', 'smem'):
                lg = (lg + (k,))[-16:]
            while vm and not dsts[vm[0]]:
                vm = vm[1:]
            while lg and not dsts[lg[0]] and ins[lg[0]].kind != 'smem':
                lg = lg[1:]
            if x.kind == 'branch':
                if x.target in labels:
                    work.append((labels[x.target], vm, lg))
                if x.mn == 's_branch':
                    break
            k += 1
    out = []
    for e in errs:
        if e not in out:
            out.append(e)
    return out


def v(i, n=1):
    return 'v%d' % i if n == 1 else 'v[%d:%d]' % (i, i + n - 1)


def a(i, n=1):
    return 'a%d' % i if n == 1 else 'a[%d:%d]' % (i, i + n - 1)


def s(i, n=1):
    return 's%d' % i if n == 1 else 's[%d:%d]' % (i, i + n - 1)
```

```python
from asm import *
from layout import *

MF = 'v_mfma_f32_16x16x32_bf16 %s, %s, %s, %s'
MF16 = 'v_mfma_f32_16x16x16_bf16 %s, %s, %s, %s'


class Attn:
    S_CSC = 40
    S_MK = 42
    S_LO = 50
    V_L, V_L16, V_KMA, V_VMA, V_N4, V_NINF = 1, 2, 3, 4, 5, 6
    V_ONE = 8
    V_T = 12
    V_S = 20
    V_P = 32
    V_SUM = 40
    V_O = 44
    V_G = 76
    V_Q = 80
    V_K = 112
    V_KM = 144
    V_VT = 160
    V_VM = 192
    V_PK = 208

    def __init__(self, A):
        self.A = A

    def setup(self):
        A, c = self.A, self
        g, n, t = c.V_T, c.V_T + 1, c.V_T + 2
        A('v_lshrrev_b32 %s, 4, %s' % (v(g), v(c.V_L)))
        A('v_and_b32 %s, 15, %s' % (v(n), v(c.V_L)))
        A('v_lshlrev_b32 %s, 4, %s' % (v(c.V_L16), v(c.V_L)))
        A('v_lshlrev_b32 %s, 2, %s' % (v(c.V_N4), v(n)))
        A('v_and_b32 %s, 7, %s' % (v(t), v(n)))
        A('v_lshlrev_b32 %s, 4, %s' % (v(t), v(t)))
        A('v_lshl_add_u32 %s, %s, 7, %s' % (v(c.V_KMA), v(g), v(t)))
        A('v_and_b32 %s, 1, %s' % (v(t), v(g)))
        A('v_lshlrev_b32 %s, 3, %s' % (v(t), v(t)))
        A('v_lshl_add_u32 %s, %s, 4, %s' % (v(c.V_VMA), v(n), v(t)))
        A('v_lshlrev_b32 %s, 2, %s' % (v(t), v(g)))
        for r in range(4):
            A('v_add_u32 %s, %d, %s' % (v(t + 1), r, v(t)))
            A('v_cmp_le_u32 %s, %s, %s' % (s(c.S_MK + 2 * r, 2), v(t + 1), v(n)))
            A('v_mov_b32 %s, 0x3f803f80' % v(c.V_ONE + r))
        A('s_mov_b32 %s, -1' % s(c.S_LO))
        A('s_mov_b32 %s, 0' % s(c.S_LO + 1))
        A('v_mov_b32 %s, 0xff800000' % v(c.V_NINF))
        A('s_mov_b32 %s, 0x3e0293ee' % s(c.S_CSC))

    def scores(self, tq):
        A, c = self.A, self
        S = c.V_S
        for eg in range(4):
            q = v(c.V_Q + (tq * 4 + eg) * 4, 4)
            A(MF % (v(S, 4), v(c.V_KM + eg * 4, 4), q, v(S, 4) if eg else '0'))
            A(MF % (v(S + 4, 4), v(c.V_K + eg * 4, 4), q, v(S + 4, 4) if eg else '0'))
            if tq:
                A(MF % (v(S + 8, 4), v(c.V_K + 16 + eg * 4, 4), q, v(S + 8, 4) if eg else '0'))

    def softmax(self, tq):
        A, c = self.A, self
        S, m, t = c.V_S, c.V_T, c.V_T + 1
        nv = 12 if tq else 8
        for r in range(4):
            A('v_cndmask_b32 %s, %s, %s, %s' % (v(S + r), v(c.V_NINF), v(S + r), s(c.S_LO, 2)))
        for r in range(4):
            d = S + 4 + 4 * tq + r
            A('v_cndmask_b32 %s, %s, %s, %s' % (v(d), v(c.V_NINF), v(d), s(c.S_MK + 2 * r, 2)))
        A('v_max3_f32 %s, %s, %s, %s' % (v(m), v(S), v(S + 1), v(S + 2)))
        k = 3
        while k + 1 < nv:
            A('v_max3_f32 %s, %s, %s, %s' % (v(m), v(m), v(S + k), v(S + k + 1)))
            k += 2
        A('v_max_f32 %s, %s, %s' % (v(m), v(m), v(S + nv - 1)))
        A('v_mov_b32 %s, %s' % (v(t), v(m)))
        A('v_permlane16_swap_b32 %s, %s' % (v(m), v(t)))
        A('v_max_f32 %s, %s, %s' % (v(m), v(m), v(t)))
        A('v_mov_b32 %s, %s' % (v(t), v(m)))
        A('v_permlane32_swap_b32 %s, %s' % (v(m), v(t)))
        A('v_max_f32 %s, %s, %s' % (v(m), v(m), v(t)))
        A('v_mul_f32 %s, %s, %s' % (v(m), s(c.S_CSC), v(m)))
        for r in range(nv):
            A('v_fma_f32 %s, %s, %s, -%s' % (v(S + r), v(S + r), s(c.S_CSC), v(m)))
        for r in range(nv):
            A('v_exp_f32 %s, %s' % (v(S + r), v(S + r)))
        P = c.V_P
        A('v_cvt_pk_bf16_f32 %s, %s, %s' % (v(P + 4), v(S), v(S + 1)))
        A('v_cvt_pk_bf16_f32 %s, %s, %s' % (v(P + 5), v(S + 2), v(S + 3)))
        for q in range(4 if tq else 2):
            A('v_cvt_pk_bf16_f32 %s, %s, %s' % (v(P + q), v(S + 4 + 2 * q), v(S + 5 + 2 * q)))
        if not tq:
            A('v_mov_b32 %s, 0' % v(P + 2))
            A('v_mov_b32 %s, 0' % v(P + 3))

    def pv(self, ets, vg):
        A, c = self.A, self
        P = c.V_P
        A(MF % (v(c.V_SUM, 4), v(c.V_ONE, 4), v(P, 4), '0'))
        for et in ets:
            A(MF % (v(c.V_O + et * 4, 4), v(c.V_VT + et * 4, 4), v(P, 4), '0'))
        A(MF16 % (v(c.V_SUM, 4), v(c.V_ONE, 2), v(P + 4, 2), v(c.V_SUM, 4)))
        for et in ets:
            A(MF16 % (v(c.V_O + et * 4, 4), v(c.V_VM + et * 2, 2), v(P + 4, 2), v(c.V_O + et * 4, 4)))
        t = c.V_T + 2
        A('v_rcp_f32 %s, %s' % (v(t), v(c.V_SUM)))
        A('v_mul_f32 %s, %s, %s' % (v(t), v(t), v(vg)))
        A('v_mov_b32 %s, %s' % (v(t + 1), v(t)))
        for et in ets:
            o = c.V_O + et * 4
            for r in (0, 2):
                A('v_pk_mul_f32 %s, %s, %s' % (v(o + r, 2), v(o + r, 2), v(t, 2)))
            for r in (0, 2):
                A('v_cvt_pk_bf16_f32 %s, %s, %s' % (v(c.V_PK + et * 2 + r // 2), v(o + r), v(o + r + 1)))
```

```python
import sys
sys.path.insert(0, 'gen')
from common import *
from chain2 import *


def ticket(A, sx, sj, srd_dbg):
    A('v_lshrrev_b32 v1, 6, v0')
    A('s_nop 0')
    A('v_readfirstlane_b32 s3, v1')
    A('s_cmp_lg_u32 s3, 0')
    A('s_cbranch_scc1 L_tk')
    A('v_mov_b32 v1, 1')
    A('s_lshl_b32 s3, %s, 2' % s(sx))
    A('v_mov_b32 v2, s3')
    A('s_mov_b64 exec, 1')
    A('buffer_atomic_add v1, v2, %s, 0 offen sc0 sc1' % s(srd_dbg, 4))
    A('s_waitcnt vmcnt(0)')
    A('v_mov_b32 v2, 0')
    A('ds_write_b32 v2, v1')
    A('s_waitcnt lgkmcnt(0)')
    A('s_mov_b64 exec, -1')
    A.label('L_tk')
    A('s_barrier')
    A('v_mov_b32 v2, 0')
    A('ds_read_b32 v1, v2')
    A('s_waitcnt lgkmcnt(0)')
    A('v_readfirstlane_b32 %s, v1' % s(sj))
    A('s_barrier')


def build(path, opts):
    prm = {}
    for o in opts:
        for k in ('na', 'nb', 'nd', 'ne', 'sa', 'nw0', 'nw1', 'touch', 'xl', 'pp'):
            if o.startswith(k) and o[len(k):].isdigit():
                prm[k] = int(o[len(k):])
    diag = 'diag' in opts
    A = Asm()
    c = Chain(A, diag=diag, prm=prm)
    L_exit, L_done = 'L_exit', 'L_done'
    A('s_cmp_ge_u32 s2, 256')
    A('s_cbranch_scc1 L_end')
    A('s_load_dwordx2 s[4:5], s[0:1], %d' % K_DBG)
    A('s_load_dwordx2 s[6:7], s[0:1], %d' % K_WS)
    A('s_getreg_b32 %s, hwreg(HW_REG_XCC_ID, 0, 4)' % s(c.S_X))
    ng = [int(o[2:]) for o in opts if o.startswith('ng')]
    A('s_waitcnt lgkmcnt(0)')
    srd(A, c.S_WS, 6, WS_BYTES)
    srd(A, c.S_DB, 4, 256)
    ticket(A, c.S_X, c.S_J, c.S_DB)
    A('s_cmp_ge_u32 %s, 32' % s(c.S_J))
    A('s_cbranch_scc1 L_end')
    A('s_cmp_ge_u32 %s, 4' % s(c.S_X))
    A('s_cbranch_scc1 L_other')
    A('s_memtime s[100:101]')
    c.setup()
    c.initial_poison()
    A('s_waitcnt vmcnt(0)')
    A('s_barrier')
    A('s_cmp_lg_u32 %s, 0' % s(c.S_WAVE))
    A('s_cbranch_scc1 L_arr')
    A('v_mov_b32 %s, 64' % v(c.V_T + 1))
    A('s_mov_b64 exec, 1')
    A('buffer_atomic_add %s, %s, %s, 0 offen sc1' % (v(c.V_C1), v(c.V_T + 1), s(c.S_DB, 4)))
    A('s_mov_b64 exec, -1')
    A.label('L_arr')
    c.load_weights(68, L_exit)

    def start_wait(L_exit):
        t = c.V_T + 4
        A('v_mov_b32 %s, 64' % v(t + 1))
        A('s_mov_b32 %s, 0' % s(c.S_CNT))
        A.label('L_sb')
        A('buffer_load_dword %s, %s, %s, 0 offen sc1' % (v(t), v(t + 1), s(c.S_DB, 4)))
        A('s_add_u32 %s, %s, 1' % (s(c.S_CNT), s(c.S_CNT)))
        A('s_cmp_ge_u32 %s, 0x%x' % (s(c.S_CNT), POLL_MAX))
        A('s_cbranch_scc1 %s' % L_exit)
        A('s_waitcnt vmcnt(0)')
        A('v_readfirstlane_b32 %s, %s' % (s(c.S_T), v(t)))
        A('s_cmp_lt_u32 %s, 128' % s(c.S_T))
        A('s_cbranch_scc1 L_sb')
        A('s_memrealtime s[2:3]')
    c.prologue2(start_wait, L_exit, L_done)
    A.label(L_exit)
    A('v_mov_b32 %s, 0xdead' % v(c.V_T))
    A('v_mov_b32 %s, 128' % v(c.V_T + 1))
    A('buffer_store_dword %s, %s, %s, 0 offen sc1' % (v(c.V_T), v(c.V_T + 1), s(c.S_DB, 4)))
    A('s_endpgm')
    A.label(L_done)
    A('s_memtime s[98:99]')
    A('s_memrealtime s[4:5]')
    A('s_lshl_b32 %s, %s, 5' % (s(c.S_T), s(c.S_X)))
    A('s_add_u32 %s, %s, %s' % (s(c.S_T), s(c.S_T), s(c.S_J)))
    A('s_lshl_b32 %s, %s, 2' % (s(c.S_T), s(c.S_T)))
    A('s_add_u32 %s, %s, %s' % (s(c.S_T), s(c.S_T), s(c.S_WAVE)))
    A('s_lshl_b32 %s, %s, 4' % (s(c.S_T + 1), s(c.S_T)))
    A('s_add_u32 %s, %s, 0x%x' % (s(c.S_T + 1), s(c.S_T + 1), DIAG))
    A('s_waitcnt vmcnt(0) lgkmcnt(0)')
    A('s_sub_u32 s4, s4, s2')
    A('v_mov_b32 v40, s100')
    A('v_mov_b32 v41, s98')
    A('v_mov_b32 v42, s4')
    A('v_mov_b32 v43, 0')
    A('s_mov_b64 exec, 1')
    A('buffer_store_dwordx4 v[40:43], v43, %s, %s offen' % (s(c.S_WS, 4), s(c.S_T + 1)))
    A('s_mov_b64 exec, -1')
    if diag:
        A('s_lshl_b32 %s, %s, 12' % (s(c.S_T), s(c.S_T)))
        A('s_add_u32 %s, %s, 0x%x' % (s(c.S_T), s(c.S_T), DIAG2))
        A('s_lshl_b32 %s, %s, 12' % (s(c.S_T + 1), s(c.S_WAVE)))
        A('s_add_u32 %s, %s, 0x%x' % (s(c.S_T + 1), s(c.S_T + 1), c.L_DG))
        A('v_add_u32 v44, %s, %s' % (s(c.S_T + 1), v(c.V_L16)))
        for q in range(4):
            A('ds_read_b128 v[48:51], v44 offset:%d' % (q * 1024))
            A('s_waitcnt lgkmcnt(0)')
            A('buffer_store_dwordx4 v[48:51], %s, %s, %s offen offset:%d' % (v(c.V_L16), s(c.S_WS, 4), s(c.S_T), q * 1024))
            A('s_waitcnt vmcnt(0)')
    A.label('L_end')
    A('s_endpgm')
    A.label('L_other')
    A('s_load_dwordx2 s[4:5], s[0:1], %d' % K_X)
    A('v_and_b32 v1, 63, v0')
    A('v_lshrrev_b32 v2, 6, v0')
    A('s_nop 0')
    A('v_readfirstlane_b32 s24, v2')
    A('s_sub_u32 s25, s20, 4')
    A('s_lshl_b32 s25, s25, 5')
    A('s_add_u32 s25, s25, s21')
    A('s_waitcnt lgkmcnt(0)')
    srd(A, 12, 4, 4 * MB)
    x_image(A, 25, 24, c.S_WS, 12, 30, 32)
    A('s_barrier')
    A('s_cmp_lg_u32 s24, 0')
    A('s_cbranch_scc1 L_oth2')
    A('v_mov_b32 v2, 1')
    A('v_mov_b32 v3, 68')
    A('s_mov_b64 exec, 1')
    A('buffer_atomic_add v2, v3, %s, 0 offen sc1' % s(c.S_DB, 4))
    A('s_mov_b64 exec, -1')
    A.label('L_oth2')
    if not ng:
        A('s_endpgm')
    if ng:
        from gside import gemm_side
        gemm_side(A, c, ng[0], opts)
    lines = finish(A, verbose=False)
    write_file(path, [(NAME + '_kernel', 256, 256, 147456)], [(NAME + '_kernel', lines, 512, 256)])


if __name__ == '__main__':
    from mkco import mkco
    for spec in sys.argv[1:]:
        opts = spec.split('+')
        p = 'd_%s.s' % spec.replace('+', '_')
        build(p, opts)
        mkco(p)
```

```python
import sys
sys.path.insert(0, 'gen')
from common import *
from chain2 import *
from gside import *
from build_chain2 import ticket


def other_side(A, s_x, s_j, S_WS, S_DB, g, L_exit, L_done, L_stream, f_out=None):
    A('s_load_dwordx2 s[52:53], s[0:1], %d' % K_X)
    A('s_load_dwordx2 s[54:55], s[0:1], %d' % K_GW)
    A('v_and_b32 v1, 63, v0')
    A('v_lshrrev_b32 v2, 6, v0')
    A('s_sub_u32 %s, %s, 4' % (s(g.S_XG), s(s_x)))
    A('s_mov_b32 %s, %s' % (s(g.S_J), s(s_j)))
    A('v_readfirstlane_b32 s24, v2')
    A('s_lshl_b32 s25, %s, 5' % s(g.S_XG))
    A('s_add_u32 s25, s25, %s' % s(g.S_J))
    A('s_waitcnt lgkmcnt(0)')
    srd(A, 12, 52, 4 * MB)
    srd(A, 36, 54, 2048)
    x_image(A, 25, 24, S_WS, 12, 30, 32, S_GW=36)
    A('s_barrier')
    L = A.new_label('oth')
    A('s_cmp_lg_u32 s24, 0')
    A('s_cbranch_scc1 %s' % L)
    A('v_mov_b32 v2, 1')
    A('v_mov_b32 v3, %d' % C_XI)
    A('s_mov_b64 exec, 1')
    A('buffer_atomic_add v2, v3, %s, 0 offen sc1' % s(S_DB, 4))
    A('s_mov_b64 exec, -1')
    A.label(L)
    A('s_cmp_eq_u32 %s, 0' % s(g.S_XG))
    A('s_cbranch_scc1 %s' % L_stream)
    g.emit(L_exit, L_done, f_out)


def gdiag(A, g):
    c = g.c
    A('s_memrealtime s[96:97]')
    A('s_lshl_b32 s30, %s, 5' % s(g.S_XG))
    A('s_add_u32 s30, s30, %s' % s(g.S_J))
    A('s_lshl_b32 s30, s30, 4')
    A('s_add_u32 s30, s30, 0x%x' % (DIAG + 0x8000))
    A('s_waitcnt vmcnt(0) lgkmcnt(0)')
    for k in range(4):
        A('s_sub_u32 s%d, s%d, s88' % (90 + 2 * k, 90 + 2 * k))
        A('v_mov_b32 v%d, s%d' % (40 + k, 90 + 2 * k))
    A('v_mov_b32 v44, 0')
    A('s_mov_b64 exec, 1')
    A('buffer_store_dwordx4 v[40:43], v44, s[8:11], s30 offen')
    A('s_mov_b64 exec, -1')


def build(path, opts):
    A = Asm()
    g = GSide(A, diag=True)
    A('s_cmp_ge_u32 s2, 256')
    A('s_cbranch_scc1 L_end')
    A('s_load_dwordx2 s[4:5], s[0:1], %d' % K_DBG)
    A('s_load_dwordx2 s[6:7], s[0:1], %d' % K_WS)
    A('s_getreg_b32 s20, hwreg(HW_REG_XCC_ID, 0, 4)')
    A('s_waitcnt lgkmcnt(0)')
    srd(A, 8, 6, WS_BYTES)
    srd(A, 16, 4, 256)
    ticket(A, 20, 21, 16)
    A('s_cmp_ge_u32 s21, 32')
    A('s_cbranch_scc1 L_end')
    A('s_cmp_lt_u32 s20, 4')
    A('s_cbranch_scc1 L_end')
    other_side(A, 20, 21, 8, 16, g, 'L_exit', 'L_done', 'L_end')
    A.label('L_exit')
    A('v_mov_b32 v28, 0xdead')
    A('v_mov_b32 v29, %d' % C_FAIL)
    A('buffer_store_dword v28, v29, %s, 0 offen sc1' % s(g.S_DB, 4))
    A('s_endpgm')
    A.label('L_done')
    gdiag(A, g)
    A.label('L_end')
    A('s_endpgm')
    lines = finish(A, verbose=False)
    write_file(path, [(NAME + '_kernel', 256, 256, 147456)], [(NAME + '_kernel', lines, 512, 256)])


if __name__ == '__main__':
    from mkco import mkco
    p = 'g_test.s'
    build(p, [])
    mkco(p)
```

```python
from asm import *
from layout import *

POLL_MAX = 1 << 17


def srd(A, d, ptr, nbytes):
    A('s_mov_b32 %s, %s' % (s(d), s(ptr)))
    A('s_mov_b32 %s, %s' % (s(d + 1), s(ptr + 1)))
    A('s_mov_b32 %s, 0x%x' % (s(d + 2), nbytes))
    A('s_mov_b32 %s, 0x20000' % s(d + 3))


MF = 'v_mfma_f32_16x16x32_bf16 %s, %s, %s, %s'


class Chain:
    S_WS = 8
    S_W = 12
    S_DB = 16
    S_X, S_J, S_H, S_C, S_WAVE = 20, 21, 22, 23, 24
    S_STEP = 25
    S_MB, S_OBB, S_WBB, S_SCBB = 26, 27, 28, 29
    S_MEMOFF, S_OOFF, S_WOFF, S_SCOFF, S_NMEM = 30, 31, 32, 33, 34
    S_PMEM, S_PO, S_PW, S_PSC = 35, 36, 37, 38
    S_X0, S_X1, S_KV, S_KMVM = 39, 40, 41, 42
    S_CNT = 43
    S_MP0, S_MP1, S_MSM = 44, 46, 48
    S_CSC = 50
    S_VT = 51
    S_T = 52
    S_M = 60
    S_RC = 70
    S_ST = 74
    S_TCH = 98
    V_L = 1
    V_GATH, V_L16, V_LW, V_XA, V_OST, V_MST = 2, 3, 4, 5, 6, 7
    V_SC = 8
    V_SCM, V_SCL, V_KM, V_VM, V_VRD, V_VRD2, V_PW, V_Z = 12, 13, 14, 15, 16, 17, 18, 19
    V_WA = 20
    V_TCH, V_L8, V_DG, V_C1 = 24, 25, 26, 27
    V_XB = 0
    V_ONE = 28
    V_POI = 28
    V_T = 32
    V_M = 40
    V_ACC = 56
    V_R = 88
    V_RD = 96
    V_F = 128
    V_KXF = 132
    V_VTF = 140
    V_VMF = 148
    V_PM = 156
    V_PA = 160
    V_XF = 192
    L_QK = 0
    L_V = 8192
    L_WO = 12288
    L_STAGE = 16384
    L_P = 16384
    L_KV = 49152
    L_VM = 53248
    L_FL = 53760
    L_DG = 65536

    def __init__(self, A, diag=False, nsteps=64, im='', prm=None, tag=''):
        self.A = A
        self.diag = diag
        self.nsteps = nsteps
        self.im = im
        self.tag = tag
        p = dict(na=8, nb=10, nd=8, ne=10, sa=10, nw1=7, touch=1, xl=1, pp=1)
        p.update(prm or {})
        self.p = p

    def stamp(self, k):
        if self.diag:
            self.A('s_memtime %s' % s(self.S_ST + 2 * k, 2))

    def dump(self):
        if not self.diag:
            return
        A, c = self.A, self
        A('s_waitcnt lgkmcnt(0)')
        t = c.V_RD
        for k in range(12):
            A('v_mov_b32 %s, %s' % (v(t + k), s(c.S_ST + 2 * k)))
        for k in range(4):
            A('v_mov_b32 %s, %s' % (v(t + 12 + k), s(c.S_RC + k)))
        A('s_mov_b64 exec, 1')
        for q in range(4):
            A('ds_write_b128 %s, %s offset:%d' % (v(c.V_DG), v(t + 4 * q, 4), q * 16))
        A('s_mov_b64 exec, -1')
        A('v_add_u32 %s, 64, %s' % (v(c.V_DG), v(c.V_DG)))
        A('s_waitcnt lgkmcnt(0)')

    def pmf(self, idx):
        c = self
        tt, t, m = idx >> 5, (idx >> 2) & 7, idx & 3
        acc = v(c.V_PA + tt * 16 + m * 4, 4)
        xf = v(c.V_XF + tt * 32 + t * 4, 4)
        wf = a((t * 6 + 2 + m) * 4, 4)
        cc = acc if t else '0'
        return MF % ((acc, wf, xf, cc) if m < 2 else (acc, xf, wf, cc))

    def P(self, lo, hi, fill=None):
        for k, idx in enumerate(range(lo, hi)):
            if self.p['pp']:
                self.A(self.pmf(idx))
            for f in (fill or {}).get(k, []):
                self.A(f)

    def pwrites(self, tt):
        c = self
        return ['ds_write_b128 %s, %s offset:%d' % (v(c.V_PW), v(c.V_PA + tt * 16 + m * 4, 4), (tt * 4 + m) * 1024) for m in range(4)]

    def xloads(self, tt):
        c = self
        if not c.p['xl']:
            return []
        return ['buffer_load_dwordx4 %s, %s, %s, %s offen offset:%d' % (v(c.V_XF + tt * 32 + t * 4, 4), v(c.V_XB if t >= 4 else c.V_XA), s(c.S_WS, 4),
                                                                      s(c.S_X1 if tt else c.S_X0), (t & 3) * 1024) for t in range(8)]

    def gather_loads(self, soff):
        c = self
        return ['buffer_load_dwordx4 %s, %s, %s, %s offen offset:%d sc1' % (v(c.V_M + 4 * k, 4), v(c.V_GATH), s(c.S_WS, 4), s(soff), k * 1024)
                for k in range(4)]

    def check(self, k, reg, two):
        c = self
        if two:
            return ['v_max_u32 %s, %s, %s' % (v(c.V_T + (k & 1)), v(reg), v(reg + 2)),
                    'v_cmp_eq_u32 %s, -1, %s' % (s(c.S_M + 2 * k, 2), v(c.V_T + (k & 1)))]
        return ['v_cmp_eq_u32 %s, -1, %s' % (s(c.S_M + 2 * k, 2), v(reg))]

    def or_masks(self, n):
        A, c = self.A, self
        T = c.S_T
        A('s_or_b64 %s, %s, %s' % (s(T, 2), s(c.S_M, 2), s(c.S_M + 2, 2)))
        for k in range(2, n):
            A('s_or_b64 %s, %s, %s' % (s(T, 2), s(T, 2), s(c.S_M + 2 * k, 2)))

    def retry(self, L_entry, loads, checks, L_back, L_exit, rc):
        A, c = self.A, self
        A.label(L_entry)
        A('s_mov_b32 %s, 0' % s(c.S_CNT))
        L = A.new_label('rt' + c.tag)
        A.label(L)
        for k, t in enumerate(loads):
            Ls = A.new_label('rs' + c.tag)
            A('s_cmp_eq_u64 %s, 0' % s(c.S_M + 2 * k, 2))
            A('s_cbranch_scc1 %s' % Ls)
            A(t)
            A.label(Ls)
        A('s_add_u32 %s, %s, 1' % (s(c.S_CNT), s(c.S_CNT)))
        if c.diag:
            A('s_add_u32 %s, %s, 1' % (s(c.S_RC + rc), s(c.S_RC + rc)))
        A('s_cmp_ge_u32 %s, 0x%x' % (s(c.S_CNT), POLL_MAX))
        A('s_cbranch_scc1 %s' % L_exit)
        A('s_waitcnt vmcnt(0)')
        for ch in checks:
            for t in ch:
                A(t)
        c.or_masks(len(loads))
        A('s_cbranch_scc1 %s' % L)
        A('s_branch %s' % L_back)

    def setup(self):
        A, c = self.A, self
        T = c.S_T
        A('v_and_b32 %s, 63, v0' % v(c.V_L))
        A('v_lshrrev_b32 %s, 6, v0' % v(c.V_T))
        A('s_nop 0')
        A('v_readfirstlane_b32 %s, %s' % (s(c.S_WAVE), v(c.V_T)))
        A('s_lshr_b32 %s, %s, 2' % (s(c.S_H), s(c.S_J)))
        A('s_lshl_b32 %s, %s, 3' % (s(T), s(c.S_X)))
        A('s_add_u32 %s, %s, %s' % (s(c.S_H), s(c.S_H), s(T)))
        A('s_and_b32 %s, %s, 3' % (s(c.S_C), s(c.S_J)))
        g, p, i, n = c.V_T, c.V_T + 1, c.V_T + 2, c.V_T + 3
        t0, t1 = c.V_T + 4, c.V_T + 5
        A('v_lshrrev_b32 %s, 4, %s' % (v(g), v(c.V_L)))
        A('v_bfe_u32 %s, %s, 3, 1' % (v(p), v(c.V_L)))
        A('v_and_b32 %s, 7, %s' % (v(i), v(c.V_L)))
        A('v_and_b32 %s, 15, %s' % (v(n), v(c.V_L)))
        A('v_lshlrev_b32 %s, 4, %s' % (v(c.V_L16), v(c.V_L)))
        A('v_lshlrev_b32 %s, 3, %s' % (v(c.V_L8), v(c.V_L)))
        A('v_add_u32 %s, 0x%x, %s' % (v(c.V_L8), c.L_VM, v(c.V_L8)))
        A('v_mov_b32 %s, 0x%x' % (v(c.V_Z), c.L_FL))
        A('v_mov_b32 %s, 1' % v(c.V_C1))
        A('v_lshlrev_b32 %s, 7, %s' % (v(t0), v(g)))
        A('v_lshl_add_u32 %s, %s, 4, %s' % (v(t0), v(i), v(t0)))
        A('v_mov_b32 %s, %s' % (v(c.V_KM), v(t0)))
        A('v_lshl_add_u32 %s, %s, 9, %s' % (v(c.V_GATH), v(p), v(t0)))
        A('s_lshl_b32 %s, %s, 12' % (s(T), s(c.S_WAVE)))
        A('v_add_u32 %s, %s, %s' % (v(c.V_GATH), s(T), v(c.V_GATH)))
        A('s_lshl_b32 %s, %s, 9' % (s(T), s(c.S_J)))
        A('v_add_u32 %s, %s, %s' % (v(c.V_OST), s(T), v(t0)))
        A('v_lshl_add_u32 %s, %s, 3, %s' % (v(c.V_MST), v(p), v(c.V_OST)))
        for k in range(4):
            A('s_add_u32 %s, %s, %d' % (s(T), s(c.S_C), k))
            A('s_and_b32 %s, %s, 3' % (s(T), s(T)))
            A('s_lshl_b32 %s, %s, 10' % (s(T), s(T)))
            A('v_add_u32 %s, %s, %s' % (v(c.V_SC + k), s(T), v(c.V_L16)))
            A('s_add_u32 %s, %s, %d' % (s(T), s(c.S_X), k))
            A('s_and_b32 %s, %s, 3' % (s(T), s(T)))
            A('s_lshl_b32 %s, %s, 10' % (s(T), s(T)))
            A('v_add_u32 %s, %s, %s' % (v(c.V_WA + k), s(T), v(c.V_L16)))
        A('v_and_b32 %s, 1, %s' % (v(t1), v(g)))
        A('v_lshlrev_b32 %s, 9, %s' % (v(c.V_SCM), v(t1)))
        A('v_lshl_add_u32 %s, %s, 4, %s' % (v(c.V_SCM), v(i), v(c.V_SCM)))
        A('s_lshl_b32 %s, %s, 2' % (s(T), s(c.S_C)))
        A('s_add_u32 %s, %s, 0x1000' % (s(T), s(T)))
        A('v_add_u32 %s, %s, %s' % (v(c.V_SCM), s(T), v(c.V_SCM)))
        A('v_add_u32 %s, 0x1000, %s' % (v(c.V_SCL), v(c.V_L16)))
        A('s_lshl_b32 %s, %s, 2' % (s(T), s(c.S_H)))
        A('s_add_u32 %s, %s, %s' % (s(T), s(T), s(c.S_C)))
        A('s_lshl_b32 %s, %s, 9' % (s(T), s(T)))
        A('v_add_u32 %s, %s, %s' % (v(c.V_KM), s(T), v(c.V_KM)))
        A('v_lshlrev_b32 %s, 4, %s' % (v(c.V_VM), v(n)))
        A('v_lshl_add_u32 %s, %s, 2, %s' % (v(c.V_VM), v(g), v(c.V_VM)))
        A('v_add_u32 %s, %s, %s' % (v(c.V_VM), s(T), v(c.V_VM)))
        A('s_lshl_b32 %s, %s, 14' % (s(T), s(c.S_WAVE)))
        A('v_add_u32 %s, %s, %s' % (v(c.V_XA), s(T), v(c.V_L16)))
        A('v_add_u32 %s, 0x1000, %s' % (v(c.V_XB), v(c.V_XA)))
        A('v_lshlrev_b32 %s, 7, %s' % (v(c.V_TCH), v(n)))
        A('s_lshl_b32 %s, %s, 11' % (s(T), s(c.S_J)))
        A('v_add_u32 %s, %s, %s' % (v(c.V_TCH), s(T), v(c.V_TCH)))
        A('v_lshrrev_b32 %s, 1, %s' % (v(t0), v(g)))
        A('v_lshl_add_u32 %s, %s, 4, %s' % (v(t0), v(t0), v(n)))
        A('v_lshlrev_b32 %s, 4, %s' % (v(t0), v(t0)))
        A('v_lshl_add_u32 %s, %s, 3, %s' % (v(t0), v(t1), v(t0)))
        A('v_add_u32 %s, 0x%x, %s' % (v(c.V_VRD), c.L_V, v(t0)))
        A('v_add_u32 %s, 2048, %s' % (v(c.V_VRD2), v(c.V_VRD)))
        A('s_lshl_b32 %s, %s, 10' % (s(T), s(c.S_WAVE)))
        A('v_add_u32 %s, %s, %s' % (v(c.V_LW), s(T), v(c.V_L16)))
        A('s_lshl_b32 %s, %s, 13' % (s(T), s(c.S_WAVE)))
        A('s_add_u32 %s, %s, 0x%x' % (s(T), s(T), c.L_P))
        A('v_add_u32 %s, %s, %s' % (v(c.V_PW), s(T), v(c.V_L16)))
        A('s_lshl_b32 %s, %s, 12' % (s(T), s(c.S_WAVE)))
        A('s_add_u32 %s, %s, 0x%x' % (s(T), s(T), c.L_DG))
        A('v_mov_b32 %s, %s' % (v(c.V_DG), s(T)))
        A('s_lshl_b32 %s, %s, 16' % (s(T), s(c.S_X)))
        A('s_add_u32 %s, %s, 0x%x' % (s(c.S_MB), s(T), MEMB))
        A('s_add_u32 %s, %s, 0x%x' % (s(c.S_OBB), s(T), OB))
        A('s_lshl_b32 %s, %s, 14' % (s(T), s(c.S_J)))
        A('s_add_u32 %s, %s, 0x%x' % (s(c.S_WBB), s(T), WB))
        A('s_lshl_b32 %s, %s, 15' % (s(T), s(c.S_H)))
        A('s_add_u32 %s, %s, 0x%x' % (s(c.S_SCBB), s(T), SCB))
        A('s_mov_b32 %s, 0x00ff00ff' % s(c.S_MP0))
        A('s_mov_b32 %s, 0x00ff00ff' % s(c.S_MP0 + 1))
        A('s_mov_b32 %s, 0xff00ff00' % s(c.S_MP1))
        A('s_mov_b32 %s, 0xff00ff00' % s(c.S_MP1 + 1))
        A('s_mov_b32 %s, 0' % s(c.S_MSM))
        A('s_mov_b32 %s, 0x00ff00ff' % s(c.S_MSM + 1))
        A('s_mov_b32 %s, 0x3e0293ee' % s(c.S_CSC))
        for k in range(4):
            A('v_mov_b32 %s, -1' % v(c.V_POI + k))
            A('s_mov_b32 %s, 0' % s(c.S_RC + k))
        for k in (1, 2, 3):
            A('v_mov_b32 %s, 0' % v(c.V_VMF + k))
            A('v_mov_b32 %s, 0' % v(c.V_VMF + 4 + k))
            A('v_mov_b32 %s, 0' % v(c.V_PM + k))

    def slot(self, dst, base, sh, add):
        c = self
        T = c.S_T + 2
        out = []
        if add:
            out.append('s_add_u32 %s, %s, %d' % (s(T), s(c.S_STEP), add))
            out.append('s_and_b32 %s, %s, 3' % (s(T), s(T)))
        else:
            out.append('s_and_b32 %s, %s, 3' % (s(T), s(c.S_STEP)))
        out.append('s_lshl_b32 %s, %s, %d' % (s(T), s(T), sh))
        out.append('s_add_u32 %s, %s, %s' % (s(dst), s(T), s(base)))
        return out

    def xoffs(self, add):
        c = self
        return ['s_add_u32 %s, %s, %d' % (s(c.S_X0), s(c.S_STEP), add),
                's_min_u32 %s, %s, 63' % (s(c.S_X0), s(c.S_X0)),
                's_lshl_b32 %s, %s, 16' % (s(c.S_X0), s(c.S_X0)),
                's_add_u32 %s, %s, 0x%x' % (s(c.S_X0), s(c.S_X0), XI),
                's_add_u32 %s, %s, 0x2000' % (s(c.S_X1), s(c.S_X0))]

    def poison_list(self):
        c = self
        ws = s(c.S_WS, 4)
        P4 = v(c.V_POI, 4)
        out = ['buffer_store_dwordx4 %s, %s, %s, %s offen sc1' % (P4, v(c.V_WA), ws, s(c.S_PW)),
               'buffer_store_dwordx4 %s, %s, %s, %s offen %s' % (P4, v(c.V_SC), ws, s(c.S_PSC), c.im),
               's_mov_b64 exec, %s' % s(c.S_MP0, 2),
               'buffer_store_dwordx4 %s, %s, %s, %s offen %s' % (P4, v(c.V_OST), ws, s(c.S_PO), c.im),
               'buffer_store_dwordx4 %s, %s, %s, %s offen %s' % (P4, v(c.V_OST), ws, s(c.S_PMEM), c.im),
               's_mov_b64 exec, %s' % s(c.S_MSM, 2)]
        for r in range(4):
            out.append('buffer_store_dword %s, %s, %s, %s offen offset:%d %s' % (v(c.V_POI), v(c.V_SCM), ws, s(c.S_PSC), r * 128, c.im))
        out.append('s_mov_b64 exec, -1')
        return out

    def initial_poison(self):
        A, c = self.A, self
        A('s_mov_b32 %s, %s' % (s(c.S_STEP), s(c.S_WAVE)))
        for t in c.slot(c.S_PMEM, c.S_MB, 14, 0) + c.slot(c.S_PO, c.S_OBB, 14, 0) + c.slot(c.S_PW, c.S_WBB, 12, 0) + c.slot(c.S_PSC, c.S_SCBB, 13, 0):
            A(t)
        for t in c.poison_list():
            A(t)

    def load_weights(self, xi_cnt, L_exit):
        A, c = self.A, self
        vsrc_qkv, vsrc_o, vtr, vtro = c.V_RD, c.V_RD + 1, c.V_RD + 2, c.V_RD + 3
        T = c.S_T
        t0, t1, t2 = c.V_T, c.V_T + 1, c.V_T + 2
        A('v_lshrrev_b32 %s, 2, %s' % (v(t0), v(c.V_L)))
        A('v_and_b32 %s, 3, %s' % (v(t1), v(c.V_L)))
        A('v_lshlrev_b32 %s, 13, %s' % (v(vsrc_qkv), v(t0)))
        A('v_lshl_add_u32 %s, %s, 4, %s' % (v(vsrc_qkv), v(t1), v(vsrc_qkv)))
        A('s_lshl_b32 %s, %s, 21' % (s(T), s(c.S_WAVE)))
        A('s_lshl_b32 %s, %s, 8' % (s(T + 1), s(c.S_H)))
        A('s_add_u32 %s, %s, %s' % (s(T), s(T), s(T + 1)))
        A('s_lshl_b32 %s, %s, 6' % (s(T + 1), s(c.S_C)))
        A('s_add_u32 %s, %s, %s' % (s(T), s(T), s(T + 1)))
        A('v_add_u32 %s, %s, %s' % (v(vsrc_qkv), s(T), v(vsrc_qkv)))
        A('v_lshlrev_b32 %s, 11, %s' % (v(vsrc_o), v(t0)))
        A('v_lshl_add_u32 %s, %s, 4, %s' % (v(vsrc_o), v(t1), v(vsrc_o)))
        A('s_lshl_b32 %s, %s, 21' % (s(T), s(c.S_X)))
        A('s_lshl_b32 %s, %s, 19' % (s(T + 1), s(c.S_WAVE)))
        A('s_add_u32 %s, %s, %s' % (s(T), s(T), s(T + 1)))
        A('s_lshl_b32 %s, %s, 6' % (s(T + 1), s(c.S_J)))
        A('s_add_u32 %s, %s, %s' % (s(T), s(T), s(T + 1)))
        A('v_add_u32 %s, %s, %s' % (v(vsrc_o), s(T), v(vsrc_o)))
        sbase = T + 2
        A('s_lshl_b32 %s, %s, 15' % (s(sbase), s(c.S_WAVE)))
        A('s_add_u32 %s, %s, 0x%x' % (s(sbase), s(sbase), c.L_STAGE))
        A('v_lshrrev_b32 %s, 4, %s' % (v(t0), v(c.V_L)))
        A('v_bfe_u32 %s, %s, 2, 2' % (v(t2), v(c.V_L)))
        A('v_lshl_add_u32 %s, %s, 3, %s' % (v(vtr), v(t0), v(t2)))
        A('v_lshlrev_b32 %s, 6, %s' % (v(vtr), v(vtr)))
        A('v_lshl_add_u32 %s, %s, 3, %s' % (v(vtr), v(t1), v(vtr)))
        A('v_add_u32 %s, %s, %s' % (v(vtr), s(sbase), v(vtr)))
        A('v_lshl_add_u32 %s, %s, 2, %s' % (v(vtro), v(t0), v(t2)))
        A('v_lshlrev_b32 %s, 6, %s' % (v(vtro), v(vtro)))
        A('v_lshl_add_u32 %s, %s, 4, %s' % (v(vtro), v(t1), v(vtro)))
        A('v_add_u32 %s, %s, %s' % (v(vtro), s(sbase), v(vtro)))
        mats = [(K_WK, vsrc_qkv, 8192, 1), (K_WV, vsrc_qkv, 8192, 2), (K_WQ, vsrc_qkv, 8192, 0), (K_WO, vsrc_o, 2048, 3)]
        ptr = c.S_M
        for k, m in enumerate(mats):
            A('s_load_dwordx2 %s, s[0:1], %d' % (s(ptr + 2 * k, 2), m[0]))
        A('s_waitcnt lgkmcnt(0)')

        def issue(m):
            ko, vs, stride, idx = mats[m]
            srd(A, c.S_W, ptr + 2 * m, 8 * MB)
            for q in range(16):
                A('s_add_u32 m0, %s, 0x%x' % (s(sbase), (m & 1) * 16384 + q * 1024))
                A('s_mov_b32 %s, 0x%x' % (s(T), q * 16 * stride))
                A('buffer_load_dwordx4 %s, %s, %s offen lds' % (v(vs), s(c.S_W, 4), s(T)))

        def readout(m):
            idx = mats[m][3]
            for t in range(8):
                for tau in range(2):
                    for hh in range(2):
                        if idx < 3:
                            A('ds_read_b64_tr_b16 %s, %s offset:%d' % (a((t * 6 + idx * 2 + tau) * 4 + 2 * hh, 2), v(vtr),
                                                                       (m & 1) * 16384 + t * 2048 + hh * 256 + tau * 32))
                        else:
                            A('ds_read_b64_tr_b16 %s, %s offset:%d' % (a(192 + (t * 2 + tau) * 4 + 2 * hh, 2), v(vtro),
                                                                       (m & 1) * 16384 + t * 2048 + hh * 1024 + tau * 8))
                if t & 1:
                    A('s_waitcnt lgkmcnt(0)')

        issue(0)
        issue(1)
        A('s_mov_b32 %s, 0' % s(c.S_STEP))
        A('s_waitcnt vmcnt(16)')
        readout(0)
        pv = c.V_T + 4
        A('v_mov_b32 %s, %d' % (v(pv + 1), xi_cnt))
        A('buffer_load_dword %s, %s, %s, 0 offen sc1' % (v(pv), v(pv + 1), s(c.S_DB, 4)))
        issue(2)
        A('s_waitcnt vmcnt(16)')
        Lp, Lq = A.new_label('xi' + c.tag), A.new_label('xi' + c.tag)
        A('s_mov_b32 %s, 0' % s(c.S_CNT))
        A.label(Lp)
        A('v_readfirstlane_b32 %s, %s' % (s(T + 4), v(pv)))
        A('s_cmp_ge_u32 %s, 128' % s(T + 4))
        A('s_cbranch_scc1 %s' % Lq)
        A('buffer_load_dword %s, %s, %s, 0 offen sc1' % (v(pv), v(pv + 1), s(c.S_DB, 4)))
        A('s_add_u32 %s, %s, 1' % (s(c.S_CNT), s(c.S_CNT)))
        A('s_cmp_ge_u32 %s, 0x%x' % (s(c.S_CNT), POLL_MAX))
        A('s_cbranch_scc1 %s' % L_exit)
        A('s_waitcnt vmcnt(0)')
        A('s_branch %s' % Lp)
        A.label(Lq)
        for t in c.xoffs(0) + c.xloads(0) + c.xloads(1):
            A(t)
        readout(1)
        issue(3)
        A('s_waitcnt vmcnt(16)')
        c.P(0, 64)
        for t in c.xoffs(1) + c.xloads(0) + c.xloads(1):
            A(t)
        A('s_mov_b64 exec, 0xffff')
        for k in (2, 3):
            A('s_mov_b32 %s, 0x%x' % (s(T + 4), XI + k * 65536))
            A('buffer_load_dword %s, %s, %s, %s offen' % (v(c.V_T + 4 + k), v(c.V_TCH), s(c.S_WS, 4), s(T + 4)))
        A('s_mov_b64 exec, -1')
        readout(2)
        A('s_waitcnt vmcnt(18)')
        readout(3)

    def kv_offsets(self, w, add):
        c = self
        T = c.S_T + 2
        return ['s_add_u32 %s, %s, %d' % (s(T), s(c.S_STEP), add),
                's_lshl_b32 %s, %s, 5' % (s(T), s(T)),
                's_add_u32 %s, %s, %s' % (s(T), s(T), s(c.S_H)),
                's_lshl_b32 %s, %s, 13' % (s(T), s(T)),
                's_lshl_b32 %s, %s, %d' % (s(T + 1), s(c.S_C), 10 if w == 2 else 11),
                's_add_u32 %s, %s, %s' % (s(T), s(T), s(T + 1)),
                's_add_u32 %s, %s, 0x%x' % (s(c.S_KV), s(T), KX if w == 2 else VT)]

    def kv_reduce(self, w):
        A, c = self.A, self
        R = c.V_RD
        ACC = c.V_ACC

        def reads(f, base):
            pcs = (f * 4, f * 4 + 1) if w == 2 else (2 + f, 6 + f)
            for ww in range(4):
                for q in range(2):
                    A('ds_read_b128 %s, %s offset:%d' % (v(base + ww * 8 + q * 4, 4), v(c.V_L16), c.L_P + ww * 8192 + pcs[q] * 1024))

        def sums(f, base, pend):
            for half in range(2):
                A('s_waitcnt lgkmcnt(%d)' % (pend + 4 - 4 * half))
                for r in range(0, 8, 2):
                    A('v_pk_add_f32 %s, %s, %s' % (v(base + half * 16 + r, 2), v(base + half * 16 + r, 2), v(base + half * 16 + 8 + r, 2)))
            for r in range(0, 8, 2):
                A('v_pk_add_f32 %s, %s, %s' % (v(base + r, 2), v(base + r, 2), v(base + 16 + r, 2)))
            d = c.V_R + 4 * f
            for q in range(4):
                A('v_cvt_pk_bf16_f32 %s, %s, %s' % (v(d + q), v(base + 2 * q), v(base + 2 * q + 1)))
            A('buffer_store_dwordx4 %s, %s, %s, %s offen sc1' % (v(d, 4), v(c.V_SCL if (w == 2 and f) else c.V_L16), s(c.S_WS, 4), s(c.S_KV))
              if w == 2 else
              'buffer_store_dwordx4 %s, %s, %s, %s offen offset:%d sc1' % (v(d, 4), v(c.V_L16), s(c.S_WS, 4), s(c.S_KV), f * 1024))
        reads(0, R)
        reads(1, ACC)
        sums(0, R, 8)
        sums(1, ACC, 0)
        for f in range(2):
            A('ds_write_b128 %s, %s offset:%d' % (v(c.V_L16), v(c.V_R + 4 * f, 4), c.L_KV + ((w - 2) * 2 + f) * 1024))

    def publish_mem0(self):
        A, c = self.A, self
        T = c.S_T
        A('s_load_dwordx2 %s, s[0:1], %d' % (s(c.S_M, 2), K_MEM0))
        A('s_waitcnt lgkmcnt(0)')
        srd(A, c.S_W, c.S_M, 16384)
        A('v_and_b32 %s, 7, %s' % (v(c.V_T), v(c.V_L)))
        A('v_lshlrev_b32 %s, 11, %s' % (v(c.V_T), v(c.V_T)))
        A('v_lshrrev_b32 %s, 3, %s' % (v(c.V_T + 1), v(c.V_L)))
        A('v_lshl_add_u32 %s, %s, 3, %s' % (v(c.V_T), v(c.V_T + 1), v(c.V_T)))
        A('s_lshl_b32 %s, %s, 6' % (s(T), s(c.S_J)))
        A('buffer_load_dwordx2 %s, %s, %s, %s offen' % (v(c.V_T + 2, 2), v(c.V_T), s(c.S_W, 4), s(T)))
        A('s_waitcnt vmcnt(0)')
        A('v_min_u32 %s, -2, %s' % (v(c.V_T + 2), v(c.V_T + 2)))
        A('v_min_u32 %s, -2, %s' % (v(c.V_T + 3), v(c.V_T + 3)))

    def publish_mem0_store(self):
        A, c = self.A, self
        A('buffer_store_dwordx2 %s, %s, %s, %s offen %s' % (v(c.V_T + 2, 2), v(c.V_MST), s(c.S_WS, 4), s(c.S_MB), c.im))

    def km_store(self):
        c = self
        t = c.V_T + 4
        out = ['v_min_u32 %s, -2, %s' % (v(t + q), v(c.V_F + q)) for q in range(4)]
        out += ['s_mov_b64 exec, %s' % s(c.S_MP1, 2),
                'buffer_store_dwordx4 %s, %s, %s, %s offen sc1' % (v(t, 4), v(c.V_KM), s(c.S_WS, 4), s(c.S_KMVM)),
                's_mov_b64 exec, -1']
        return out

    def vm_store(self):
        c = self
        return ['buffer_store_dword %s, %s, %s, %s offen sc1' % (v(c.V_VMF), v(c.V_VM), s(c.S_WS, 4), s(c.S_KMVM)),
                'buffer_store_dword %s, %s, %s, %s offen offset:256 sc1' % (v(c.V_VMF + 1), v(c.V_VM), s(c.S_WS, 4), s(c.S_KMVM))]

    def prologue2(self, start_wait, L_exit, L_done):
        A, c = self.A, self
        P0 = 64 - c.p['na'] - c.p['nb']
        A('s_barrier')
        for t in c.pwrites(0) + c.pwrites(1):
            A(t)
        A('v_mov_b32 %s, 0' % v(c.V_T))
        A('v_mov_b32 %s, 0' % v(c.V_T + 1))
        A('ds_write_b64 %s, %s' % (v(c.V_Z), v(c.V_T, 2)))
        A('s_waitcnt vmcnt(0) lgkmcnt(0)')
        A('s_barrier')
        L = [A.new_label('cw%d%s' % (w, c.tag)) for w in range(4)]
        for w in range(1, 4):
            A('s_cmp_eq_u32 %s, %d' % (s(c.S_WAVE), w))
            A('s_cbranch_scc1 %s' % L[w])
        for w in range(4):
            A.label(L[w])
            A('s_mov_b32 %s, 0' % s(c.S_STEP))
            if w >= 2:
                for t in c.kv_offsets(w, 0):
                    A(t)
                c.kv_reduce(w)
            if w == 1:
                c.publish_mem0()
            if w == 0:
                for k in range(4):
                    A('v_mov_b32 %s, 0x3f803f80' % v(c.V_ONE + k))
            c.P(0, P0)
            A('s_waitcnt lgkmcnt(0)')
            A('s_barrier')
            for t in c.pwrites(0):
                A(t)
            if w == 1:
                start_wait(L_exit)
                c.publish_mem0_store()
            A('s_mov_b32 %s, %s' % (s(c.S_MEMOFF), s(c.S_MB)))
            A('s_mov_b32 %s, 3' % s(c.S_VT))
            A('s_barrier')
            c.step_loop(w, L_exit, L_done)

    def step_loop(self, w, L_exit, L_done):
        A, c = self.A, self
        p = c.p
        ws = s(c.S_WS, 4)
        T = c.S_T
        tg = '%d%s' % (w, c.tag)
        na, nb, nd, ne = p['na'], p['nb'], p['nd'], p['ne']
        P0 = 64 - na - nb
        nc = 0 if w == 0 else 32 - nd - ne
        L_loop, L_qk, L_rm, L_wo, L_ro, L_last = [A.new_label(n + tg) for n in ('step', 'qk', 'rm', 'wo', 'ro', 'last')]
        tails = []
        A.label(L_loop)
        c.stamp(0)
        c.P(P0, P0 + na)
        gl = c.gather_loads(c.S_MEMOFF)
        for t in gl:
            A(t)
        misc = c.xoffs(2) + c.slot(c.S_OOFF, c.S_OBB, 14, 0)
        if w == 0:
            misc = ['ds_read_b128 %s, %s offset:%d' % (v(c.V_KXF + 4 * f, 4), v(c.V_L16), c.L_KV + f * 1024) for f in range(4)] + misc
            misc += c.slot(c.S_SCOFF, c.S_SCBB, 13, 0)
        if w <= 1:
            misc += ['s_lshl_b32 %s, %s, 16' % (s(c.S_KMVM), s(c.S_STEP)),
                     's_add_u32 %s, %s, 0x%x' % (s(c.S_KMVM), s(c.S_KMVM), KM if w == 0 else VM)]
        if w >= 2:
            misc += c.kv_offsets(w, 1)
        fill = {}
        for k, t in enumerate(misc):
            fill.setdefault(min(k // 3, max(nb - 1, 0)), []).append(t)
        if nb:
            c.P(P0 + na, 64, fill)
        else:
            for t in misc:
                A(t)
        c.stamp(1)
        A.label(L_qk)
        mchk = [c.check(k, c.V_M + 4 * k, True) for k in range(4)]
        xl = c.xloads(0)
        b0, b1 = c.V_ACC, c.V_ACC + 16
        R = c.V_R

        def comb(b, dst, r, hi):
            if hi:
                return 'v_add_f32_dpp %s, %s, %s row_ror:8 row_mask:0xf bank_mask:0xc' % (v(dst + r), v(b + 8 + r), v(b + 12 + r))
            return 'v_add_f32_dpp %s, %s, %s row_ror:8 row_mask:0xf bank_mask:0x3' % (v(dst + r), v(b + 4 + r), v(b + r))
        for k in range(4):
            A('s_waitcnt vmcnt(%d)' % (3 - k))
            q = 0
            for tau in range(2):
                for which, m, par in ((0, 0, 0), (1, 0, 1), (2, 1, 0), (3, 1, 1)):
                    acc = c.V_ACC + tau * 16 + which * 4
                    A(MF % (v(acc, 4), a(((2 * k + par) * 6 + m * 2 + tau) * 4, 4), v(c.V_M + 4 * k, 4), v(acc, 4) if k else '0'))
                    if q == 0:
                        for t in mchk[k]:
                            A(t)
                    if k == 0 and q >= 4:
                        A(c.pwrites(1)[q - 4])
                    if k == 3:
                        if q == 1:
                            c.or_masks(4)
                            A('s_cbranch_scc1 %s' % L_rm)
                        if q >= 2:
                            for t in xl[(q - 2) * 2:(q - 2) * 2 + 2] if q < 5 else []:
                                A(t)
                        if q == 5:
                            for r in range(4):
                                A(comb(b0, R, r, 0))
                        if q == 6:
                            for r in range(4):
                                A(comb(b0, R, r, 1))
                    q += 1
        tails.append(lambda: c.retry(L_rm, gl, mchk, L_qk, L_exit, 0))
        if w:
            A('ds_write_b128 %s, %s offset:%d' % (v(c.V_LW), v(R, 4), c.L_QK))
        for t in xl[6:8]:
            A(t)
        for r in range(4):
            A(comb(b1, R + 4, r, 0))
        for r in range(4):
            A(comb(b1, R + 4, r, 1))
        if w:
            A('ds_write_b128 %s, %s offset:%d' % (v(c.V_LW), v(R + 4, 4), c.L_QK + 4096))
        A('s_waitcnt lgkmcnt(0)')
        c.stamp(2)
        A('s_barrier')
        S = c.V_ACC + 16
        if w == 0:
            for ww in range(1, 4):
                for tau in range(2):
                    A('ds_read_b128 %s, %s offset:%d' % (v(c.V_RD + (ww - 1) * 8 + tau * 4, 4), v(c.V_L16), c.L_QK + tau * 4096 + ww * 1024))
            for ww in range(1, 4):
                A('s_waitcnt lgkmcnt(%d)' % (6 - 2 * ww))
                for r in range(0, 8, 2):
                    A('v_pk_add_f32 %s, %s, %s' % (v(R + r, 2), v(R + r, 2), v(c.V_RD + (ww - 1) * 8 + r, 2)))
            for q in range(4):
                A('v_cvt_pk_bf16_f32 %s, %s, %s' % (v(c.V_F + q), v(R + 2 * q), v(R + 2 * q + 1)))
            A('s_cmp_eq_u32 %s, %d' % (s(c.S_STEP), c.nsteps - 1))
            A('s_cbranch_scc1 %s' % L_last)
            A(MF % (v(S + 8, 4), v(c.V_F, 4), v(c.V_F, 4), '0'))
            A(MF % (v(S + 4, 4), v(c.V_KXF + 4, 4), v(c.V_F, 4), '0'))
            A(MF % (v(S, 4), v(c.V_KXF, 4), v(c.V_F, 4), '0'))
            A('s_mov_b64 exec, %s' % s(c.S_MSM, 2))
            for r in range(4):
                A('buffer_store_dword %s, %s, %s, %s offen offset:%d %s' % (v(S + 8 + r), v(c.V_SCM), ws, s(c.S_SCOFF), r * 128, c.im))
            A('s_mov_b64 exec, -1')
            for r in range(4):
                A('v_mov_b32_dpp %s, %s row_ror:8 row_mask:0xf bank_mask:0xc' % (v(S + r), v(S + 4 + r)))
            A('buffer_store_dwordx4 %s, %s, %s, %s offen %s' % (v(S, 4), v(c.V_SC), ws, s(c.S_SCOFF), c.im))
            c.stamp(3)

        def sc_loads(base):
            return ['buffer_load_dwordx4 %s, %s, %s, %s offen sc1' % (v(base + 4 * k, 4), v(c.V_SC + 1 + k if k < 3 else c.V_SCL), ws, s(c.S_SCOFF))
                    for k in range(4)]

        def sc_checks(base):
            out = [['v_cmp_eq_u32 %s, -1, %s' % (s(c.S_M + 2 * k, 2), v(base + 4 * k))] for k in range(3)]
            out.append(['v_max3_u32 %s, %s, %s, %s' % (v(c.V_T), v(base + 12), v(base + 13), v(base + 14)),
                        'v_max_u32 %s, %s, %s' % (v(c.V_T), v(c.V_T), v(base + 15)),
                        'v_cmp_eq_u32 %s, -1, %s' % (s(c.S_M + 6, 2), v(c.V_T))])
            return out

        def v_part(fill):
            q = 0
            for k in range(4):
                for tau in range(2):
                    for par in range(2):
                        acc = c.V_ACC + tau * 8 + par * 4
                        A(MF % (v(acc, 4), v(c.V_M + 4 * k, 4), a(((2 * k + par) * 6 + 4 + tau) * 4, 4), v(acc, 4) if k else '0'))
                        for t in fill.get(q, []):
                            A(t)
                        q += 1
            b = c.V_ACC
            for r in range(4):
                A('v_permlane32_swap_b32 %s, %s' % (v(b + r), v(b + 8 + r)))
            for r in range(4):
                A('v_permlane32_swap_b32 %s, %s' % (v(b + 4 + r), v(b + 12 + r)))
            for r in range(0, 4, 2):
                A('v_pk_add_f32 %s, %s, %s' % (v(R + r, 2), v(b + r, 2), v(b + 12 + r, 2)))
            A('ds_write_b128 %s, %s offset:%d' % (v(c.V_LW), v(R, 4), c.L_V))
            if w != 1:
                A('s_mov_b64 exec, 1')
                A('ds_add_u32 %s, %s' % (v(c.V_Z), v(c.V_C1)))
                A('s_mov_b64 exec, -1')

        SA, SB = c.V_RD, c.V_RD + 16
        if w == 0:
            v_part({p['sa']: sc_loads(SA)})
            for t in sc_loads(SB):
                A(t)
            c.stamp(4)
            L_b, L_j, L_rs, L_a = [A.new_label(n + tg) for n in ('scb', 'scj', 'scr', 'sca')]
            X = c.V_ACC

            def sc_sum(base):
                for r in range(0, 4, 2):
                    A('v_pk_add_f32 %s, %s, %s' % (v(X + r, 2), v(S + r, 2), v(base + r, 2)))
                    A('v_pk_add_f32 %s, %s, %s' % (v(base + 4 + r, 2), v(base + 4 + r, 2), v(base + 8 + r, 2)))
                A('v_pk_add_f32 %s, %s, %s' % (v(base + 12, 2), v(base + 12, 2), v(base + 14, 2)))
                for r in range(0, 4, 2):
                    A('v_pk_add_f32 %s, %s, %s' % (v(X + r, 2), v(X + r, 2), v(base + 4 + r, 2)))
                A('v_add_f32 %s, %s, %s' % (v(X + 4), v(base + 12), v(base + 13)))
            A('s_waitcnt vmcnt(4)')
            for ch in sc_checks(SA):
                for t in ch:
                    A(t)
            c.or_masks(4)
            A('s_cbranch_scc1 %s' % L_b)
            A.label(L_a)
            sc_sum(SA)
            A.label(L_j)

            def tail_b():
                A.label(L_b)
                if c.diag:
                    A('s_add_u32 %s, %s, 0x10000' % (s(c.S_RC + 1), s(c.S_RC + 1)))
                A('s_waitcnt vmcnt(0)')
                for ch in sc_checks(SB):
                    for t in ch:
                        A(t)
                c.or_masks(4)
                A('s_cbranch_scc1 %s' % L_rs)
                L_b2 = A.new_label('scb2' + tg)
                A.label(L_b2)
                sc_sum(SB)
                A('s_branch %s' % L_j)
                c.retry(L_rs, sc_loads(SB), sc_checks(SB), L_b2, L_exit, 1)
            tails.append(tail_b)
            c.stamp(5)
            m, t = c.V_T, c.V_T + 1
            PP = R + 4
            fl = c.V_T + 2
            L_vm, L_vr = A.new_label('vm' + tg), A.new_label('vr' + tg)
            A('ds_read_b32 %s, %s offset:4' % (v(fl), v(c.V_Z)))
            A('ds_read_b32 %s, %s' % (v(c.V_VMF), v(c.V_L8)))
            A('ds_read_b32 %s, %s offset:4' % (v(c.V_VMF + 4), v(c.V_L8)))
            A('v_max3_f32 %s, %s, %s, %s' % (v(m), v(X), v(X + 1), v(X + 2)))
            A('v_max3_f32 %s, %s, %s, %s' % (v(m), v(m), v(X + 3), v(X + 4)))
            A('v_max_f32_dpp %s, %s, %s row_ror:8 row_mask:0xf bank_mask:0xf' % (v(m), v(m), v(m)))
            A('v_mov_b32 %s, %s' % (v(t), v(m)))
            A('v_permlane16_swap_b32 %s, %s' % (v(m), v(t)))
            A('v_max_f32 %s, %s, %s' % (v(m), v(m), v(t)))
            A('v_mov_b32 %s, %s' % (v(t), v(m)))
            A('v_permlane32_swap_b32 %s, %s' % (v(m), v(t)))
            A('v_max_f32 %s, %s, %s' % (v(m), v(m), v(t)))
            A('v_mul_f32 %s, %s, %s' % (v(m), s(c.S_CSC), v(m)))
            for r in range(5):
                A('v_fma_f32 %s, %s, %s, -%s' % (v(X + r), v(X + r), s(c.S_CSC), v(m)))
            for r in range(5):
                A('v_exp_f32 %s, %s' % (v(X + r), v(X + r)))
            A('v_cvt_pk_bf16_f32 %s, %s, %s' % (v(PP), v(X), v(X + 1)))
            A('v_cvt_pk_bf16_f32 %s, %s, %s' % (v(PP + 1), v(X + 2), v(X + 3)))
            A('v_mov_b32_dpp %s, %s row_ror:8 row_mask:0xf bank_mask:0xf' % (v(t), v(X + 4)))
            A('v_mov_b32_dpp %s, %s row_ror:8 row_mask:0xf bank_mask:0xf' % (v(PP + 2), v(PP)))
            A('v_mov_b32_dpp %s, %s row_ror:8 row_mask:0xf bank_mask:0xf' % (v(PP + 3), v(PP + 1)))
            A('v_cvt_pk_bf16_f32 %s, %s, %s' % (v(c.V_PM), v(X + 4), v(t)))
            A('s_waitcnt lgkmcnt(0)')
            A('v_cmp_ne_u32 vcc, %s, %s' % (s(c.S_VT), v(fl)))
            O = S
            A(MF % (v(O + 8, 4), v(c.V_ONE, 4), v(PP, 4), '0'))
            A(MF % (v(O, 4), v(c.V_VTF, 4), v(PP, 4), '0'))
            A(MF % (v(O + 4, 4), v(c.V_VTF + 4, 4), v(PP, 4), '0'))
            A('s_cbranch_vccnz %s' % L_vr)
            A.label(L_vm)
            A(MF % (v(O + 8, 4), v(c.V_ONE, 4), v(c.V_PM, 4), v(O + 8, 4)))
            A(MF % (v(O, 4), v(c.V_VMF, 4), v(c.V_PM, 4), v(O, 4)))
            A(MF % (v(O + 4, 4), v(c.V_VMF + 4, 4), v(c.V_PM, 4), v(O + 4, 4)))

            def tail_vr():
                A.label(L_vr)
                A('s_mov_b32 %s, 0' % s(c.S_CNT))
                Lr = A.new_label('vrl' + tg)
                A.label(Lr)
                A('ds_read_b32 %s, %s offset:4' % (v(fl), v(c.V_Z)))
                A('ds_read_b32 %s, %s' % (v(c.V_VMF), v(c.V_L8)))
                A('ds_read_b32 %s, %s offset:4' % (v(c.V_VMF + 4), v(c.V_L8)))
                A('s_add_u32 %s, %s, 1' % (s(c.S_CNT), s(c.S_CNT)))
                if c.diag:
                    A('s_add_u32 %s, %s, 0x10000' % (s(c.S_RC + 2), s(c.S_RC + 2)))
                A('s_cmp_ge_u32 %s, 0x%x' % (s(c.S_CNT), POLL_MAX * 4))
                A('s_cbranch_scc1 %s' % L_exit)
                A('s_waitcnt lgkmcnt(0)')
                A('v_cmp_ne_u32 vcc, %s, %s' % (s(c.S_VT), v(fl)))
                A('s_cbranch_vccnz %s' % Lr)
                A('s_branch %s' % L_vm)
            tails.append(tail_vr)
            A('v_rcp_f32 %s, %s' % (v(t), v(O + 8)))
            for r in range(8):
                A('v_mul_f32 %s, %s, %s' % (v(O + r), v(O + r), v(t)))
            for q in range(4):
                A('v_cvt_pk_bf16_f32 %s, %s, %s' % (v(R + q), v(O + 2 * q), v(O + 2 * q + 1)))
            A('v_min_u32 %s, -2, %s' % (v(R), v(R)))
            A('s_mov_b64 exec, %s' % s(c.S_MP0, 2))
            A('buffer_store_dwordx4 %s, %s, %s, %s offen %s' % (v(R, 4), v(c.V_OST), ws, s(c.S_OOFF), c.im))
            A('s_mov_b64 exec, -1')
            c.stamp(6)
        else:
            v_part({})
            c.stamp(3)
            if w >= 2:
                A('s_cmp_eq_u32 %s, %d' % (s(c.S_STEP), c.nsteps - 1))
                A('s_cbranch_scc1 %s' % L_done)
                A('s_waitcnt lgkmcnt(0)')
                c.kv_reduce(w)
                A('s_waitcnt vmcnt(2)')
            else:
                A('s_waitcnt vmcnt(0)')
            c.stamp(4)
            c.P(0, nc)
            if w == 1:
                Lv = A.new_label('vc' + tg)
                A('s_mov_b32 %s, 0' % s(c.S_CNT))
                A.label(Lv)
                A('ds_read_b32 %s, %s' % (v(c.V_T), v(c.V_Z)))
                A('s_add_u32 %s, %s, 1' % (s(c.S_CNT), s(c.S_CNT)))
                A('s_cmp_ge_u32 %s, 0x%x' % (s(c.S_CNT), POLL_MAX * 4))
                A('s_cbranch_scc1 %s' % L_exit)
                A('s_waitcnt lgkmcnt(0)')
                A('v_cmp_ne_u32 vcc, %s, %s' % (s(c.S_VT), v(c.V_T)))
                A('s_cbranch_vccnz %s' % Lv)
                D = c.V_RD
                for ww in range(4):
                    A('ds_read2_b64 %s, %s offset0:%d offset1:%d' % (v(D + 4 * ww, 4), v(c.V_VRD if ww < 2 else c.V_VRD2), (ww & 1) * 128, (ww & 1) * 128 + 64))
                A('s_waitcnt lgkmcnt(2)')
                for r in range(0, 4, 2):
                    A('v_pk_add_f32 %s, %s, %s' % (v(D + r, 2), v(D + r, 2), v(D + 4 + r, 2)))
                A('s_waitcnt lgkmcnt(0)')
                for r in range(0, 4, 2):
                    A('v_pk_add_f32 %s, %s, %s' % (v(D + 8 + r, 2), v(D + 8 + r, 2), v(D + 12 + r, 2)))
                for r in range(0, 4, 2):
                    A('v_pk_add_f32 %s, %s, %s' % (v(D + r, 2), v(D + r, 2), v(D + 8 + r, 2)))
                A('v_cvt_pk_bf16_f32 %s, %s, %s' % (v(c.V_VMF), v(D), v(D + 1)))
                A('v_cvt_pk_bf16_f32 %s, %s, %s' % (v(c.V_VMF + 1), v(D + 2), v(D + 3)))
                A('v_mov_b32 %s, %s' % (v(c.V_T), s(c.S_VT)))
                A('ds_write_b64 %s, %s' % (v(c.V_L8), v(c.V_VMF, 2)))
                A('ds_write_b32 %s, %s offset:4' % (v(c.V_Z), v(c.V_T)))
                A('v_min_u32 %s, -2, %s' % (v(c.V_VMF), v(c.V_VMF)))
                A('v_min_u32 %s, -2, %s' % (v(c.V_VMF + 1), v(c.V_VMF + 1)))
                A('s_cmp_eq_u32 %s, %d' % (s(c.S_STEP), c.nsteps - 1))
                A('s_cbranch_scc1 %s' % L_last)
            c.stamp(5)
            for t in c.xloads(1):
                A(t)
            c.dump()
            A('s_waitcnt lgkmcnt(0)')
            c.stamp(6)
        A('s_barrier')
        c.P(nc, nc + nd)
        ol = c.gather_loads(c.S_OOFF)
        for t in ol:
            A(t)
        misc = c.slot(c.S_NMEM, c.S_MB, 14, 1)
        if w == 2:
            misc += c.slot(c.S_WOFF, c.S_WBB, 12, 0)
        if w == 3:
            misc += c.slot(c.S_PMEM, c.S_MB, 14, 3) + c.slot(c.S_PO, c.S_OBB, 14, 2) + c.slot(c.S_PW, c.S_WBB, 12, 2) + c.slot(c.S_PSC, c.S_SCBB, 13, 2)
            misc += ['s_add_u32 %s, %s, 4' % (s(c.S_TCH), s(c.S_STEP)), 's_min_u32 %s, %s, 63' % (s(c.S_TCH), s(c.S_TCH)),
                     's_lshl_b32 %s, %s, 16' % (s(c.S_TCH), s(c.S_TCH)),
                     's_add_u32 %s, %s, 0x%x' % (s(c.S_TCH), s(c.S_TCH), XI)]
        misc += ['s_add_u32 %s, %s, 3' % (s(c.S_VT), s(c.S_VT))]
        fill = {}
        for k, t in enumerate(misc):
            fill.setdefault(min(k // 3, max(ne - 1, 0)), []).append(t)
        if ne:
            c.P(nc + nd, nc + nd + ne, fill)
        else:
            for t in misc:
                A(t)
        pf = nc + nd + ne
        c.stamp(7)
        A.label(L_wo)
        ochk = [c.check(k, c.V_M + 4 * k, False) for k in range(4)]
        b = c.V_ACC
        for k in range(4):
            A('s_waitcnt vmcnt(%d)' % (3 - k))
            q = 0
            for tau in range(2):
                for par in range(2):
                    acc = c.V_ACC + tau * 8 + par * 4
                    A(MF % (v(acc, 4), a(192 + ((2 * k + par) * 2 + tau) * 4, 4), v(c.V_M + 4 * k, 4), v(acc, 4) if k else '0'))
                    if q == 0:
                        for t in ochk[k]:
                            A(t)
                    if w and k in (1, 2) and q >= 2:
                        A(c.pwrites(0)[(k - 1) * 2 + q - 2])
                    if k == 3 and q == 1:
                        c.or_masks(4)
                        A('s_cbranch_scc1 %s' % L_ro)
                    if k == 3 and q >= 2 and w == 0:
                        for t in c.xloads(1)[(q - 2) * 4:(q - 2) * 4 + 4]:
                            A(t)
                    q += 1
        tails.append(lambda: c.retry(L_ro, ol, ochk, L_wo, L_exit, 2))
        for r in range(4):
            A(comb(b, R, r, 0))
        for r in range(4):
            A(comb(b, R, r, 1))
        if w != 2:
            A('ds_write_b128 %s, %s offset:%d' % (v(c.V_LW), v(R, 4), c.L_WO))
        A('s_waitcnt lgkmcnt(0)')
        c.stamp(8)
        A('s_barrier')
        if w == 2:
            D = c.V_RD
            for q, ww in enumerate((0, 1, 3)):
                A('ds_read_b128 %s, %s offset:%d' % (v(D + 4 * q, 4), v(c.V_L16), c.L_WO + ww * 1024))
            A('s_waitcnt lgkmcnt(1)')
            for r in range(0, 4, 2):
                A('v_pk_add_f32 %s, %s, %s' % (v(R + r, 2), v(R + r, 2), v(D + r, 2)))
            A('s_waitcnt lgkmcnt(0)')
            for r in range(0, 4, 2):
                A('v_pk_add_f32 %s, %s, %s' % (v(D + 4 + r, 2), v(D + 4 + r, 2), v(D + 8 + r, 2)))
            for r in range(0, 4, 2):
                A('v_pk_add_f32 %s, %s, %s' % (v(R + r, 2), v(R + r, 2), v(D + 4 + r, 2)))
            A('buffer_store_dwordx4 %s, %s, %s, %s offen sc1' % (v(R, 4), v(c.V_WA), ws, s(c.S_WOFF)))
            sets = [c.V_ACC, c.V_ACC + 12, c.V_RD + 16]

            def w_loads(base):
                return ['buffer_load_dwordx4 %s, %s, %s, %s offen sc1' % (v(base + 4 * k, 4), v(c.V_WA + 1 + k), ws, s(c.S_WOFF)) for k in range(3)]

            def w_checks(base):
                return [['v_cmp_eq_u32 %s, -1, %s' % (s(c.S_M + 2 * k, 2), v(base + 4 * k))] for k in range(3)]

            def w_sum(base):
                for r in range(0, 4, 2):
                    A('v_pk_add_f32 %s, %s, %s' % (v(R + r, 2), v(R + r, 2), v(base + r, 2)))
                    A('v_pk_add_f32 %s, %s, %s' % (v(base + 4 + r, 2), v(base + 4 + r, 2), v(base + 8 + r, 2)))
                for r in range(0, 4, 2):
                    A('v_pk_add_f32 %s, %s, %s' % (v(R + r, 2), v(R + r, 2), v(base + 4 + r, 2)))
            c.stamp(9)
            n0, n1 = p.get('nw0', 0), p['nw1']
            c.P(pf, pf + n0)
            for t in w_loads(sets[0]):
                A(t)
            c.P(pf + n0, pf + n0 + n1)
            for t in w_loads(sets[1]):
                A(t)
            c.P(pf + n0 + n1, P0)
            for t in w_loads(sets[2]):
                A(t)
            Lw = [A.new_label('w%d%s' % (k, tg)) for k in range(5)]
            A('s_waitcnt vmcnt(6)')
            for ch in w_checks(sets[0]):
                A(ch[0])
            c.or_masks(3)
            A('s_cbranch_scc1 %s' % Lw[1])
            w_sum(sets[0])
            A.label(Lw[0])

            def tail_w():
                for k in (1, 2):
                    A.label(Lw[k])
                    if c.diag:
                        A('s_add_u32 %s, %s, 0x10000' % (s(c.S_RC + 3), s(c.S_RC + 3)))
                    A('s_waitcnt vmcnt(%d)' % (6 - 3 * k))
                    for ch in w_checks(sets[k]):
                        A(ch[0])
                    c.or_masks(3)
                    A('s_cbranch_scc1 %s' % Lw[k + 1])
                    if k == 2:
                        A.label(Lw[4])
                    w_sum(sets[k])
                    A('s_branch %s' % Lw[0])
                c.retry(Lw[3], w_loads(sets[2]), w_checks(sets[2]), Lw[4], L_exit, 3)
            tails.append(tail_w)
            A('v_cvt_pk_bf16_f32 %s, %s, %s' % (v(R), v(R), v(R + 1)))
            A('v_cvt_pk_bf16_f32 %s, %s, %s' % (v(R + 1), v(R + 2), v(R + 3)))
            A('v_min_u32 %s, -2, %s' % (v(R), v(R)))
            A('buffer_store_dwordx2 %s, %s, %s, %s offen %s' % (v(R, 2), v(c.V_MST), ws, s(c.S_NMEM), c.im))
            c.stamp(10)
        else:
            pre = c.km_store() if w == 0 else c.vm_store() if w == 1 else c.poison_list()
            if w == 3 and p['touch']:
                pre = pre + ['s_mov_b64 exec, 0xffff',
                             'buffer_load_dword %s, %s, %s, %s offen' % (v(c.V_T + 7), v(c.V_TCH), s(c.S_WS, 4), s(c.S_TCH)),
                             's_mov_b64 exec, -1']
            for t in pre:
                A(t)
            fill = {}
            if w == 0:
                fill[32 - pf - 1] = ['s_waitcnt vmcnt(1)']
                for q, t in enumerate(c.pwrites(0)):
                    fill[32 - pf + 2 + q] = [t]
            c.P(pf, P0, fill)
            c.stamp(9)
            if w == 0:
                c.dump()
            c.stamp(10)
        A('s_mov_b32 %s, %s' % (s(c.S_MEMOFF), s(c.S_NMEM)))
        A('s_add_u32 %s, %s, 1' % (s(c.S_STEP), s(c.S_STEP)))
        A('s_barrier')
        A('s_branch %s' % L_loop)
        if w <= 1:
            A.label(L_last)
            if w == 0:
                for t in c.km_store():
                    A(t)
                v_part({})
            else:
                for t in c.vm_store():
                    A(t)
            A('s_branch %s' % L_done)
        for t in tails:
            t()


def x_image(A, s_tile, s_wave, S_WS, S_X, T, VT, lds_base=0, S_GW=None):
    vd, vr, vl, t0, D = VT, VT + 4, VT + 6, VT + 7, VT + 12
    GW, GA = VT + 44, VT + 76
    if S_GW:
        A('v_and_b32 %s, 0x30, v1' % v(t0))
        A('s_lshl_b32 %s, %s, 9' % (s(T), s(s_wave)))
        for t in range(8):
            A('buffer_load_dwordx4 %s, %s, %s, %s offen offset:%d' % (v(GW + 4 * t, 4), v(t0), s(S_GW, 4), s(T), t * 64))
    A('v_lshrrev_b32 %s, 5, v1' % v(t0))
    A('v_and_b32 %s, 31, v1' % v(t0 + 1))
    A('v_xor_b32 %s, %s, %s' % (v(t0 + 1), v(t0 + 1), v(t0)))
    A('v_lshlrev_b32 %s, 11, %s' % (v(t0), v(t0)))
    A('s_lshl_b32 %s, %s, 15' % (s(T), s(s_tile)))
    A('s_lshl_b32 %s, %s, 9' % (s(T + 1), s(s_wave)))
    A('s_add_u32 %s, %s, %s' % (s(T), s(T), s(T + 1)))
    A('v_add_u32 %s, %s, %s' % (v(t0), s(T), v(t0)))
    for q in range(4):
        A('v_xor_b32 %s, %d, %s' % (v(vd + q), 2 * q, v(t0 + 1)))
        A('v_lshl_add_u32 %s, %s, 4, %s' % (v(vd + q), v(vd + q), v(t0)))
    A('s_lshl_b32 %s, %s, 13' % (s(T + 1), s(s_wave)))
    A('s_add_u32 %s, %s, 0x%x' % (s(T + 1), s(T + 1), lds_base))
    for q in range(8):
        A('s_add_u32 m0, %s, 0x%x' % (s(T + 1), q * 1024))
        A('s_mov_b32 %s, 0x%x' % (s(T + 2), q * 4096))
        A('buffer_load_dwordx4 %s, %s, %s offen lds' % (v(vd + (q & 3)), s(S_X, 4), s(T + 2)))
    A('v_lshrrev_b32 %s, 4, v1' % v(t0))
    A('v_and_b32 %s, 7, v1' % v(t0 + 1))
    A('v_xor_b32 %s, %s, %s' % (v(t0), v(t0), v(t0 + 1)))
    A('v_and_b32 %s, 15, v1' % v(t0 + 1))
    A('v_lshlrev_b32 %s, 9, %s' % (v(t0 + 1), v(t0 + 1)))
    A('v_add_u32 %s, %s, %s' % (v(t0 + 1), s(T + 1), v(t0 + 1)))
    A('v_lshl_add_u32 %s, %s, 4, %s' % (v(vr), v(t0), v(t0 + 1)))
    A('v_xor_b32 %s, 64, %s' % (v(vr + 1), v(vr)))
    A('v_lshlrev_b32 %s, 4, v1' % v(vl))
    A('s_lshr_b32 %s, %s, 1' % (s(T), s(s_tile)))
    A('s_lshl_b32 %s, %s, 16' % (s(T), s(T)))
    A('s_and_b32 %s, %s, 1' % (s(T + 2), s(s_tile)))
    A('s_lshl_b32 %s, %s, 13' % (s(T + 2), s(T + 2)))
    A('s_add_u32 %s, %s, %s' % (s(T), s(T), s(T + 2)))
    A('s_lshl_b32 %s, %s, 14' % (s(T + 2), s(s_wave)))
    A('s_add_u32 %s, %s, %s' % (s(T), s(T), s(T + 2)))
    A('s_add_u32 %s, %s, 0x%x' % (s(T), s(T), XI))
    A('s_add_u32 %s, %s, 0x1000' % (s(T + 2), s(T)))
    A('s_waitcnt vmcnt(0)')
    for t in range(8):
        A('ds_read_b128 %s, %s offset:%d' % (v(D + 4 * t, 4), v(vr + (t & 1)), (t >> 1) * 128))
    for t in range(8):
        A('s_waitcnt lgkmcnt(%d)' % (7 - t))
        A('buffer_store_dwordx4 %s, %s, %s, %s offen offset:%d sc1' % (v(D + 4 * t, 4), v(vl), s(S_WS, 4), s(T + 2 if t >= 4 else T), (t & 3) * 1024))
        if S_GW:
            A(MF % (v(GA, 4), v(GW + 4 * t, 4), v(D + 4 * t, 4), v(GA, 4) if t else '0'))
    if S_GW:
        Lg = A.new_label('xg')
        A('v_lshlrev_b32 %s, 2, v1' % v(t0))
        A('s_lshl_b32 %s, %s, 8' % (s(T), s(s_wave)))
        A('s_add_u32 %s, %s, 0x%x' % (s(T), s(T), lds_base + 32768))
        A('v_add_u32 %s, %s, %s' % (v(t0 + 1), s(T), v(t0)))
        A('ds_write_b32 %s, %s' % (v(t0 + 1), v(GA)))
        A('s_waitcnt lgkmcnt(0)')
        A('s_barrier')
        A('s_cmp_lg_u32 %s, 0' % s(s_wave))
        A('s_cbranch_scc1 %s' % Lg)
        for w in range(4):
            A('ds_read_b32 %s, %s offset:%d' % (v(GA + w), v(t0), lds_base + 32768 + w * 256))
        A('s_waitcnt lgkmcnt(0)')
        A('v_add_f32 %s, %s, %s' % (v(GA), v(GA), v(GA + 1)))
        A('v_add_f32 %s, %s, %s' % (v(GA + 2), v(GA + 2), v(GA + 3)))
        A('v_add_f32 %s, %s, %s' % (v(GA), v(GA), v(GA + 2)))
        A('v_mul_f32 %s, 0xbfb8aa3b, %s' % (v(GA), v(GA)))
        A('v_exp_f32 %s, %s' % (v(GA), v(GA)))
        A('v_add_f32 %s, 1.0, %s' % (v(GA), v(GA)))
        A('v_rcp_f32 %s, %s' % (v(GA), v(GA)))
        A('s_lshl_b32 %s, %s, 6' % (s(T), s(s_tile)))
        A('s_add_u32 %s, %s, 0x%x' % (s(T), s(T), GV))
        A('s_mov_b64 exec, 0xffff')
        A('buffer_store_dword %s, %s, %s, %s offen sc1' % (v(GA), v(t0), s(S_WS, 4), s(T)))
        A('s_mov_b64 exec, -1')
        A.label(Lg)
    A('s_waitcnt vmcnt(0)')
```

```python
from asm import *
from layout import *

NAME = 'gated_mix__memory_aug_recurrent_mem_tr__swiglu_ffn__prompt'


def header(launches):
    ref = open('cdna_kernels/%s.s.ref' % NAME).read().split('\n')
    out = []
    for l in ref:
        if l.startswith('; @launch'):
            break
        out.append(l)
    if len(launches) == 1 and launches[0][0] == NAME + '_kernel':
        _, g, b, lds = launches[0]
        out.append('; @launch grid=(%d,1,1) block=(%d,1,1) lds=%d' % (g, b, lds))
    else:
        for lab, g, b, lds in launches:
            out.append('; @launch kernel=%s grid=(%d,1,1) block=(%d,1,1) lds=%d' % (lab, g, b, lds))
    out.append('.amdgcn_target "amdgcn-amd-amdhsa--gfx950"')
    out.append('.text')
    return out


def kernel_text(label, lines):
    out = ['.globl %s' % label, '.p2align 8', '.type %s,@function' % label, label + ':']
    for l in lines:
        out.append(l if l.endswith(':') else '    ' + l)
    return out


def descriptor(label, vgpr, accum, sgpr=102):
    return ['.amdhsa_kernel %s' % label,
            '  .amdhsa_next_free_vgpr %d' % vgpr,
            '  .amdhsa_next_free_sgpr %d' % sgpr,
            '  .amdhsa_accum_offset %d' % accum,
            '  .amdhsa_group_segment_fixed_size 0',
            '  .amdhsa_kernarg_size 120',
            '  .amdhsa_user_sgpr_count 2',
            '  .amdhsa_user_sgpr_kernarg_segment_ptr 1',
            '  .amdhsa_system_sgpr_workgroup_id_x 1',
            '.end_amdhsa_kernel']


def finish(A, verbose=False):
    lines = hazard_pass(A.lines, verbose)
    errs = waitcnt_check(lines)
    for e in errs:
        print('WAITCNT:', e)
    return lines


def write_file(path, launches, kernels):
    out = header(launches)
    for lab, lines, vg, ac in kernels:
        out += kernel_text(lab, lines)
    out.append('.section .rodata,"a"')
    for lab, lines, vg, ac in kernels:
        out.append('.p2align 6')
        out += descriptor(lab, vg, ac)
    open(path, 'w').write('\n'.join(out) + '\n')
```

```python
from asm import *
from layout import *


def srd(A, d, ptr, nbytes):
    A('s_mov_b32 %s, %s' % (s(d), s(ptr)))
    A('s_mov_b32 %s, %s' % (s(d + 1), s(ptr + 1)))
    A('s_mov_b32 %s, 0x%x' % (s(d + 2), nbytes))
    A('s_mov_b32 %s, 0x20000' % s(d + 3))


class Gemm:
    S_WS = 8
    S_A = 12
    S_B = 16
    S_WAVE, S_WN, S_WM = 20, 21, 22
    S_SA, S_SB, S_DA, S_DB = 23, 24, 25, 26
    S_CNT = 27
    S_MA, S_MB = 28, 29
    S_T = 30
    V_L = 1
    V_XA = 2
    V_WA = 4
    V_DA = 12
    V_DB = 20
    V_N = 24
    V_G = 25
    V_L16 = 26
    V_T = 28
    V_W = 128
    V_X = 192
    L_A = 0
    L_B = 65536
    L_SP = 131072

    def __init__(self, A, opts=()):
        self.A = A
        self.opts = set(opts)
        self.hh_off = 1024

    def acc(self, fg, tm, tau=0):
        return ((fg * 8 + tm) * 2 + tau) * 4

    def wf(self, buf, fn):
        return self.V_W + buf * 32 + fn * 4

    def xf(self, buf, tm):
        return self.V_X + buf * 32 + tm * 4

    def setup(self):
        A, c = self.A, self
        A('v_and_b32 %s, 63, v0' % v(c.V_L))
        A('v_lshrrev_b32 %s, 6, v0' % v(c.V_T))
        A('s_nop 0')
        A('v_readfirstlane_b32 %s, %s' % (s(c.S_WAVE), v(c.V_T)))
        A('s_and_b32 %s, %s, 1' % (s(c.S_WN), s(c.S_WAVE)))
        A('s_lshr_b32 %s, %s, 1' % (s(c.S_WM), s(c.S_WAVE)))
        A('s_lshl_b32 %s, %s, 13' % (s(c.S_MA), s(c.S_WAVE)))
        A('s_lshl_b32 %s, %s, 12' % (s(c.S_MB), s(c.S_WAVE)))
        A('s_add_u32 %s, %s, 0x%x' % (s(c.S_MB), s(c.S_MB), c.L_B))
        A('v_lshrrev_b32 %s, 4, %s' % (v(c.V_G), v(c.V_L)))
        A('v_and_b32 %s, 15, %s' % (v(c.V_N), v(c.V_L)))
        A('v_lshlrev_b32 %s, 4, %s' % (v(c.V_L16), v(c.V_L)))

    def lds_addr_rows(self):
        A, c = self.A, self
        t0, t1 = c.V_T, c.V_T + 1
        A('v_lshrrev_b32 %s, 1, %s' % (v(t0), v(c.V_N)))
        A('v_xor_b32 %s, %s, %s' % (v(t0), v(t0), v(c.V_G)))
        A('v_lshlrev_b32 %s, 7, %s' % (v(t1), v(c.V_N)))
        A('s_lshl_b32 %s, %s, 14' % (s(c.S_T), s(c.S_WM)))
        A('v_add_u32 %s, %s, %s' % (v(t1), s(c.S_T), v(t1)))
        for q in range(2):
            A('v_xor_b32 %s, %d, %s' % (v(c.V_XA + q), 4 * q, v(t0)))
            A('v_lshl_add_u32 %s, %s, 4, %s' % (v(c.V_XA + q), v(c.V_XA + q), v(t1)))

    def lds_addr_frag(self):
        A, c = self.A, self
        A('s_lshl_b32 %s, %s, 14' % (s(c.S_T), s(c.S_WM)))
        A('v_add_u32 %s, %s, %s' % (v(c.V_XA), s(c.S_T), v(c.V_L16)))
        A('v_add_u32 %s, 0x400, %s' % (v(c.V_XA + 1), v(c.V_XA)))

    def lds_addr_w(self, glu=False, perm=False):
        A, c = self.A, self
        r, base, t, f = c.V_T, c.V_T + 1, c.V_T + 2, c.V_T + 3
        A('v_bfe_u32 %s, %s, 2, 2' % (v(r), v(c.V_L)))
        A('v_lshl_add_u32 %s, %s, %d, %s' % (v(base), v(c.V_G), 2 if perm else 3, v(r)))
        A('v_lshlrev_b32 %s, 8, %s' % (v(base), v(base)))
        A('v_and_b32 %s, 3, %s' % (v(t), v(c.V_L)))
        A('v_lshl_add_u32 %s, %s, 3, %s' % (v(base), v(t), v(base)))
        A('v_and_b32 %s, 1, %s' % (v(f), v(c.V_G)))
        A('v_lshl_or_b32 %s, %s, 2, %s' % (v(f), v(f), v(r)))
        if glu:
            A('s_lshl_b32 %s, %s, 2' % (s(c.S_T), s(c.S_WN)))
            A('v_xor_b32 %s, %s, %s' % (v(f), s(c.S_T), v(f)))
            A('v_add_u32 %s, 0x%x, %s' % (v(base), c.L_B, v(base)))
        else:
            A('s_lshl_b32 %s, %s, 13' % (s(c.S_T), s(c.S_WN)))
            A('s_add_u32 %s, %s, 0x%x' % (s(c.S_T), s(c.S_T), c.L_B))
            A('v_add_u32 %s, %s, %s' % (v(base), s(c.S_T), v(base)))
        for fn in range(8):
            A('v_xor_b32 %s, %d, %s' % (v(t), (fn & 3) if glu else fn, v(f)))
            A('v_lshl_add_u32 %s, %s, 5, %s' % (v(c.V_WA + fn), v(t), v(base)))
            if glu and fn >= 4:
                A('v_add_u32 %s, 0x2000, %s' % (v(c.V_WA + fn), v(c.V_WA + fn)))

    def dma_addr_rows(self, s_row0, lda_shift):
        A, c = self.A, self
        t0, t1, t2 = c.V_T, c.V_T + 1, c.V_T + 2
        A('s_lshl_b32 %s, %s, 6' % (s(c.S_T), s(c.S_WAVE)))
        A('s_add_u32 %s, %s, %s' % (s(c.S_T), s(c.S_T), s(s_row0)))
        A('v_lshrrev_b32 %s, 3, %s' % (v(t0), v(c.V_L)))
        A('v_add_u32 %s, %s, %s' % (v(t0), s(c.S_T), v(t0)))
        A('v_lshlrev_b32 %s, %d, %s' % (v(t0), lda_shift, v(t0)))
        A('v_and_b32 %s, 7, %s' % (v(t1), v(c.V_L)))
        A('v_xor_b32 %s, %s, %s' % (v(t1), v(t1), v(c.V_G)))
        for q in range(8):
            A('v_xor_b32 %s, %d, %s' % (v(t2), 4 * (q & 1), v(t1)))
            A('v_lshl_add_u32 %s, %s, 4, %s' % (v(c.V_DA + q), v(t2), v(t0)))
            k = ((8 * q) << lda_shift) - (q & 3) * 1024
            if k:
                A('v_add_u32 %s, 0x%x, %s' % (v(c.V_DA + q), k, v(c.V_DA + q)))
        A('s_mov_b32 %s, 128' % s(c.S_DA))

    def dma_addr_frag(self):
        A, c = self.A, self
        for q in range(8):
            A('s_add_u32 %s, %s, 0x%x' % (s(c.S_T), s(c.S_MA), (q >> 2) * 4096))
            A('v_add_u32 %s, %s, %s' % (v(c.V_DA + q), s(c.S_T), v(c.V_L16)))
        A('s_mov_b32 %s, 0x8000' % s(c.S_DA))

    def dma_addr_w(self, s_colbyte, ldb, perm=False):
        A, c = self.A, self
        t0, t1, t2 = c.V_T, c.V_T + 1, c.V_T + 2
        A('v_lshlrev_b32 %s, 1, %s' % (v(t2), v(c.V_G)))
        A('v_xor_b32 %s, %s, %s' % (v(t1), v(c.V_N), v(t2)))
        A('s_lshl_b32 %s, %s, 4' % (s(c.S_T), s(c.S_WN)))
        A('v_add_u32 %s, %s, %s' % (v(t0), s(c.S_T), v(c.V_G)))
        A('s_mov_b32 %s, %d' % (s(c.S_T), ldb))
        A('v_mul_lo_u32 %s, %s, %s' % (v(t0), v(t0), s(c.S_T)))
        A('v_add_u32 %s, %s, %s' % (v(t0), s(s_colbyte), v(t0)))
        for q in range(4):
            b = (q & 1) if perm else (q >> 1)
            A('v_xor_b32 %s, %d, %s' % (v(t2), 8 * b, v(t1)))
            A('v_lshl_add_u32 %s, %s, 4, %s' % (v(c.V_DB + q), v(t2), v(t0)))
            if q:
                A('v_add_u32 %s, 0x%x, %s' % (v(c.V_DB + q), 4 * q * ldb - q * 1024, v(c.V_DB + q)))
        A('s_mov_b32 %s, %d' % (s(c.S_DB), 32 * ldb))

    def dma_a(self, abuf):
        c = self
        out = []
        for q in range(8):
            pre = []
            if q % 4 == 0:
                pre = ['s_add_u32 m0, %s, 0x%x' % (s(c.S_MA), c.L_A + abuf * 32768 + (q >> 2) * 4096)]
            post = ['s_add_u32 %s, %s, %s' % (s(c.S_SA), s(c.S_SA), s(c.S_DA))] if q == 7 else []
            out.append((pre, 'buffer_load_dwordx4 %s, %s, %s offen offset:%d lds' % (v(c.V_DA + q), s(c.S_A, 4), s(c.S_SA), (q & 3) * 1024), post))
        return out

    def dma_b(self, bbuf):
        c = self
        out = []
        for q in range(4):
            pre = ['s_add_u32 m0, %s, 0x%x' % (s(c.S_MB), bbuf * 16384)] if q == 0 else []
            post = ['s_add_u32 %s, %s, %s' % (s(c.S_SB), s(c.S_SB), s(c.S_DB))] if q == 3 else []
            out.append((pre, 'buffer_load_dwordx4 %s, %s, %s offen offset:%d lds' % (v(c.V_DB + q), s(c.S_B, 4), s(c.S_SB), q * 1024), post))
        return out

    def reads(self, step, perm):
        c = self
        fb = step & 1
        half = step & 1
        abuf = (step >> 1) & 1
        bbuf = step & 3
        out = []
        for t in range(8):
            out.append('ds_read_b128 %s, %s offset:%d' % (v(c.xf(fb, t), 4), v(c.V_XA + half), abuf * 32768 + t * 2048))
            for hh in range(2):
                out.append('ds_read_b64_tr_b16 %s, %s offset:%d' % (v(c.wf(fb, t) + 2 * hh, 2), v(c.V_WA + t),
                                                                   bbuf * 16384 + hh * (4096 if perm else 1024)))
        return out

    def emit_dma(self, d):
        A = self.A
        for p in d[0]:
            A(p)
        A(d[1])
        for p in d[2]:
            A(p)

    def prologue(self):
        A, c = self.A, self
        for d in c.dma_b(0) + c.dma_a(0) + c.dma_b(1) + c.dma_b(2) + c.dma_a(1) + c.dma_b(3):
            c.emit_dma(d)
        A('s_waitcnt vmcnt(20)')
        A('s_barrier')

    def tile_start(self, perm):
        A, c = self.A, self
        for r in c.reads(0, perm):
            A(r)
        A('s_waitcnt vmcnt(16) lgkmcnt(0)')
        A('s_barrier')

    def iteration(self, ph, perm, first=False):
        A, c = self.A, self
        fb = ph & 1
        rd = c.reads((ph + 1) & 3, perm)
        dm = (c.dma_a(((ph + 3) >> 1) & 1) if ph & 1 else []) + c.dma_b(ph)
        fill = [[] for _ in range(64)]
        for k, r in enumerate(rd):
            fill[2 * k].append(r)
        for k, d in enumerate(dm):
            g = 3 + 4 * k
            if d[0]:
                fill[g - 2] = fill[g - 2] + d[0]
            fill[g] = fill[g] + [d[1]]
            if d[2]:
                fill[g + 2] = fill[g + 2] + d[2]
        k = 0
        for fn in range(8):
            for tm in range(8):
                ac = a(c.acc(fn >> 1, tm, fn & 1), 4)
                if k == 63:
                    A('s_waitcnt vmcnt(%d) lgkmcnt(0)' % (16 if ph & 1 else 8))
                    A('s_barrier')
                A('v_mfma_f32_16x16x32_bf16 %s, %s, %s, %s' % (ac, v(c.wf(fb, fn), 4), v(c.xf(fb, tm), 4), '0' if first else ac))
                for f in fill[k]:
                    A(f)
                k += 1

    def main(self, perm, switch):
        A, c = self.A, self
        L1, L0, Lns = A.new_label('g1'), A.new_label('g0'), A.new_label('gns')
        c.iteration(0, perm, first=True)
        A('s_branch %s' % L1)
        A.label(L0)
        A('s_cmp_lg_u32 %s, 1' % s(c.S_CNT))
        A('s_cbranch_scc1 %s' % Lns)
        switch()
        A.label(Lns)
        c.iteration(0, perm)
        A.label(L1)
        c.iteration(1, perm)
        c.iteration(2, perm)
        A('s_sub_u32 %s, %s, 1' % (s(c.S_CNT), s(c.S_CNT)))
        c.iteration(3, perm)
        A('s_cmp_lg_u32 %s, 0' % s(c.S_CNT))
        A('s_cbranch_scc1 %s' % L0)

    def null_switch(self):
        A, c = self.A, self
        A('s_mov_b32 %s, 0' % s(c.S_A + 2))
        A('s_mov_b32 %s, 0' % s(c.S_B + 2))

    def rd8(self, tmp, areg):
        for r in range(8):
            self.A('v_accvgpr_read_b32 %s, %s' % (v(tmp + r), a(areg + r)))

    def pk8(self, dst, tmp):
        for q in range(4):
            self.A('v_cvt_pk_bf16_f32 %s, %s, %s' % (v(dst + q), v(tmp + 2 * q), v(tmp + 2 * q + 1)))

    def epi_frag(self, s_base, off, mod='sc1'):
        A, c = self.A, self
        n = 0
        for tm in range(8):
            A('s_add_u32 %s, %s, 0x%x' % (s(c.S_T), s(s_base), off(0, tm)))
            for fg in range(4):
                d = c.V_T + 16 + (n % 8) * 4
                t = c.V_T + (n % 2) * 8
                c.rd8(t, c.acc(fg, tm))
                c.pk8(d, t)
                A('buffer_store_dwordx4 %s, %s, %s, %s offen offset:%d %s' % (v(d, 4), v(c.V_L16), s(c.S_WS, 4), s(c.S_T), off(fg, tm) - off(0, tm), mod))
                n += 1

    def epi_glu(self, s_base, v_g):
        A, c = self.A, self
        A('s_mov_b32 %s, 0xbfb8aa3b' % s(c.S_T + 1))
        n = 0
        for tm in range(8):
            if tm % 2 == 0:
                A('s_add_u32 %s, %s, 0x%x' % (s(c.S_T), s(s_base), tm * 2048))
            for fg in range(2):
                b = c.V_T + (n % 2) * 24
                gt, up, e = b, b + 8, b + 16
                d = c.V_T + 48 + (n % 4) * 4
                c.rd8(gt, c.acc(fg, tm))
                for r in range(8):
                    A('v_mul_f32 %s, %s, %s' % (v(e + r), s(c.S_T + 1), v(gt + r)))
                for r in range(8):
                    A('v_exp_f32 %s, %s' % (v(e + r), v(e + r)))
                    A('v_accvgpr_read_b32 %s, %s' % (v(up + r), a(c.acc(fg + 2, tm) + r)))
                for r in range(0, 8, 2):
                    A('v_pk_add_f32 %s, %s, 1.0 op_sel_hi:[1,0]' % (v(e + r, 2), v(e + r, 2)))
                for r in range(8):
                    A('v_rcp_f32 %s, %s' % (v(e + r), v(e + r)))
                    if r % 2 == 1:
                        A('v_pk_mul_f32 %s, %s, %s' % (v(gt + r - 1, 2), v(gt + r - 1, 2), v(up + r - 1, 2)))
                for r in range(8):
                    A('v_mul_f32 %s, %s, %s' % (v(e + r), v(e + r), v(v_g + tm)))
                for r in range(0, 8, 2):
                    A('v_pk_mul_f32 %s, %s, %s' % (v(gt + r, 2), v(gt + r, 2), v(e + r, 2)))
                c.pk8(d, gt)
                A('buffer_store_dwordx4 %s, %s, %s, %s offen offset:%d sc1' % (v(d, 4), v(c.V_L16), s(c.S_WS, 4), s(c.S_T), (tm & 1) * 2048 + fg * 1024))
                n += 1
```

```python
from asm import *
from layout import *
from gemm import Gemm, srd

POLL_MAX = 1 << 17
C_TICKET = 0
C_Q = 32
C_START = 64
C_XI = 68
C_H = 72
C_FAIL = 104
C_GT = 108
C_FT = 128


def poll_dword(A, srd_db, voff, vtmp, st, scnt, cond, L_exit, tag):
    L, Ld = A.new_label('pl' + tag), A.new_label('pd' + tag)
    A('s_mov_b32 %s, 0' % s(scnt))
    A.label(L)
    A('buffer_load_dword %s, %s, %s, 0 offen sc1' % (v(vtmp), v(voff), s(srd_db, 4)))
    A('s_add_u32 %s, %s, 1' % (s(scnt), s(scnt)))
    A('s_cmp_ge_u32 %s, 0x%x' % (s(scnt), POLL_MAX))
    A('s_cbranch_scc1 %s' % L_exit)
    A('s_waitcnt vmcnt(0)')
    A('v_readfirstlane_b32 %s, %s' % (s(st), v(vtmp)))
    cond(st)
    A('s_cbranch_scc0 %s' % L)


def signal(A, c, srd_db, s_off, s_val, tag):
    L = A.new_label('sg' + tag)
    A('s_waitcnt vmcnt(0)')
    A('s_barrier')
    A('s_cmp_lg_u32 %s, 0' % s(c.S_WAVE))
    A('s_cbranch_scc1 %s' % L)
    A('v_mov_b32 %s, %s' % (v(c.V_T), s(s_val)))
    A('v_mov_b32 %s, %s' % (v(c.V_T + 1), s(s_off)))
    A('s_mov_b64 exec, 1')
    A('buffer_atomic_add %s, %s, %s, 0 offen sc1' % (v(c.V_T), v(c.V_T + 1), s(srd_db, 4)))
    A('s_mov_b64 exec, -1')
    A.label(L)


def epi_combine(A, c, parts, dest, s_dst, S_OUT=None):
    T = c.S_T
    np_ = len(parts)
    per = 4 * np_
    depth = min(8, 128 // (4 * per))
    B0 = 128

    def loads(tm):
        out = []
        for p, sp in enumerate(parts):
            out.append('s_add_u32 %s, %s, 0x%x' % (s(T + 2), s(sp), tm * 32768))
            for fg in range(4):
                d = B0 + ((tm % depth) * per + p * 4 + fg) * 4
                out.append('buffer_load_dwordx4 %s, %s, %s, %s offen offset:%d' % (v(d, 4), v(c.V_L16), s(c.S_WS, 4), s(T + 2), fg * 1024))
        return out
    vo = c.V_T + 60
    if dest == 'out':
        A('v_and_b32 %s, 1, %s' % (v(vo), v(c.V_G)))
        A('v_lshlrev_b32 %s, 5, %s' % (v(vo), v(vo)))
        A('v_lshrrev_b32 %s, 1, %s' % (v(vo + 1), v(c.V_G)))
        A('v_lshl_add_u32 %s, %s, 4, %s' % (v(vo), v(vo + 1), v(vo)))
        A('v_lshl_add_u32 %s, %s, 11, %s' % (v(vo), v(c.V_N), v(vo)))
    A('s_mov_b32 %s, 0xffff0000' % s(T + 3))
    issued = []
    for tm in range(depth):
        for t in loads(tm):
            A(t)
        issued += [('l', tm)] * per
    n = 0
    for tm in range(8):
        last = max(k for k, e in enumerate(issued) if e == ('l', tm))
        A('s_waitcnt vmcnt(%d)' % min(63, len(issued) - 1 - last))
        A('s_add_u32 %s, %s, 0x%x' % (s(T), s(s_dst), tm * 32768))
        for fg in range(4):
            t = c.V_T + (n % 2) * 8
            u = c.V_T + 16 + (n % 2) * 8
            d = c.V_T + 32 + (n % 4) * 4
            c.rd8(t, c.acc(fg, tm))
            for p in range(np_):
                sreg = B0 + ((tm % depth) * per + p * 4 + fg) * 4
                for q in range(4):
                    A('v_lshlrev_b32 %s, 16, %s' % (v(u + 2 * q), v(sreg + q)))
                    A('v_and_b32 %s, %s, %s' % (v(u + 2 * q + 1), s(T + 3), v(sreg + q)))
                for q in range(4):
                    A('v_pk_add_f32 %s, %s, %s' % (v(t + 2 * q, 2), v(t + 2 * q, 2), v(u + 2 * q, 2)))
            c.pk8(d, t)
            if dest == 'frag':
                A('buffer_store_dwordx4 %s, %s, %s, %s offen offset:%d sc1' % (v(d, 4), v(c.V_L16), s(c.S_WS, 4), s(T), fg * 1024))
            else:
                A('v_permlane16_swap_b32 %s, %s' % (v(d), v(d + 2)))
                A('v_permlane16_swap_b32 %s, %s' % (v(d + 1), v(d + 3)))
                A('buffer_store_dwordx4 %s, %s, %s, %s offen offset:%d' % (v(d, 4), v(vo), s(S_OUT, 4), s(T), fg * 64))
            issued.append(('s', tm))
            n += 1
        if tm + depth < 8:
            for t in loads(tm + depth):
                A(t)
            issued += [('l', tm + depth)] * per


class GSide:
    S_DB = 48
    P_X, P_WQ, P_WG, P_WU, P_WD, P_OUT = 52, 54, 56, 58, 60, 62
    S_XG, S_J, S_SLOT = 64, 65, 66
    S_TY, S_RB, S_CB = 67, 68, 69
    S_NTY, S_NRB, S_NCB = 70, 71, 72
    S_EB = 73
    S_U = 74
    S_OUT = 84
    V_G8 = 112

    def __init__(self, A, tag='', diag=False):
        self.A = A
        self.c = Gemm(A)
        self.tag = tag
        self.diag = diag

    def decode(self):
        A, g = self.A, self
        U = g.S_U
        L1, Lq, Ld = [A.new_label(n + g.tag) for n in ('d1', 'dq', 'dd')]
        A('s_cmp_lg_u32 %s, 0' % s(g.S_SLOT))
        A('s_cbranch_scc1 %s' % L1)
        A('s_sub_u32 %s, %s, 1' % (s(U), s(g.S_XG)))
        A('s_lshl_b32 %s, %s, 5' % (s(U), s(U)))
        A('s_add_u32 %s, %s, %s' % (s(U), s(U), s(g.S_J)))
        A('s_mul_i32 %s, %s, 43' % (s(g.S_NCB), s(U)))
        A('s_lshr_b32 %s, %s, 8' % (s(g.S_NCB), s(g.S_NCB)))
        A('s_mul_i32 %s, %s, 6' % (s(U + 1), s(g.S_NCB)))
        A('s_sub_u32 %s, %s, %s' % (s(g.S_NRB), s(U), s(U + 1)))
        A('s_mov_b32 %s, 0' % s(g.S_NTY))
        A('s_branch %s' % Ld)
        A.label(L1)
        A('s_mul_i32 %s, %s, 3' % (s(U), s(g.S_SLOT)))
        A('s_add_u32 %s, %s, %s' % (s(U), s(U), s(g.S_XG)))
        A('s_cmp_eq_u32 %s, 4' % s(U))
        A('s_cbranch_scc1 %s' % Lq)
        A('s_sub_u32 %s, %s, 5' % (s(U), s(U)))
        A('s_lshl_b32 %s, %s, 2' % (s(g.S_NCB), s(U)))
        A('s_lshr_b32 %s, %s, 3' % (s(U + 1), s(g.S_J)))
        A('s_add_u32 %s, %s, %s' % (s(g.S_NCB), s(g.S_NCB), s(U + 1)))
        A('s_and_b32 %s, %s, 7' % (s(g.S_NRB), s(g.S_J)))
        A('s_cmp_ge_u32 %s, 7' % s(U))
        A('s_cselect_b32 %s, 2, 1' % s(g.S_NTY))
        A('s_branch %s' % Ld)
        A.label(Lq)
        A('s_and_b32 %s, %s, 1' % (s(g.S_NRB), s(g.S_J)))
        A('s_add_u32 %s, %s, 6' % (s(g.S_NRB), s(g.S_NRB)))
        A('s_lshr_b32 %s, %s, 1' % (s(g.S_NCB), s(g.S_J)))
        A('s_mov_b32 %s, 0' % s(g.S_NTY))
        A.label(Ld)

    def target(self):
        A, g, c = self.A, self, self.c
        U = g.S_U
        Lh, Lu, Ld = [A.new_label(n + g.tag) for n in ('th', 'tu', 'td')]
        srd(A, c.S_A, g.P_X, 4 * MB)
        A('s_lshl_b32 %s, %s, 8' % (s(U), s(g.S_NRB)))
        c.dma_addr_rows(U, 11)
        A('s_mov_b32 %s, 0' % s(c.S_SA))
        A('s_mov_b32 %s, 0' % s(c.S_SB))
        A('s_cmp_lg_u32 %s, 0' % s(g.S_NTY))
        A('s_cbranch_scc1 %s' % Lh)
        srd(A, c.S_B, g.P_WQ, 8 * MB)
        A('s_lshl_b32 %s, %s, 9' % (s(U), s(g.S_NCB)))
        A('s_lshl_b32 %s, %s, 8' % (s(U + 1), s(c.S_WM)))
        A('s_add_u32 %s, %s, %s' % (s(U), s(U), s(U + 1)))
        c.dma_addr_w(U, 8192)
        A('s_branch %s' % Ld)
        A.label(Lh)
        srd(A, c.S_B, g.P_WG, 7 * MB)
        A('s_cmp_eq_u32 %s, 0' % s(c.S_WM))
        A('s_cbranch_scc1 %s' % Lu)
        srd(A, c.S_B, g.P_WU, 7 * MB)
        A.label(Lu)
        A('s_lshl_b32 %s, %s, 8' % (s(U), s(g.S_NCB)))
        c.dma_addr_w(U, 7168)
        A.label(Ld)

    def stamp(self, k):
        if self.diag:
            self.A('s_memrealtime %s' % s(88 + 2 * k, 2))

    def emit(self, L_exit, L_done, f_out=None):
        A, g, c = self.A, self, self.c
        U = g.S_U
        for p, k in ((g.P_X, K_X), (g.P_WQ, K_WQ), (g.P_WG, K_WG), (g.P_WU, K_WU), (g.P_WD, K_WD), (g.P_OUT, K_OUT)):
            A('s_load_dwordx2 %s, s[0:1], %d' % (s(p, 2), k))
        srd(A, g.S_DB, 4, 256)
        c.setup()
        A('s_waitcnt lgkmcnt(0)')
        A('s_mov_b32 %s, 0' % s(g.S_SLOT))
        g.decode()
        g.target()
        g.stamp(0)
        c.prologue()
        Lj, Lh, Lm, Leh, Lsg, Lf = [A.new_label(n + g.tag) for n in ('job', 'jh', 'jm', 'eh', 'js', 'jf')]
        A.label(Lj)
        A('s_mov_b32 %s, %s' % (s(g.S_TY), s(g.S_NTY)))
        A('s_mov_b32 %s, %s' % (s(g.S_RB), s(g.S_NRB)))
        A('s_mov_b32 %s, %s' % (s(g.S_CB), s(g.S_NCB)))
        A('s_add_u32 %s, %s, 1' % (s(g.S_SLOT), s(g.S_SLOT)))
        A('s_mov_b32 %s, 8' % s(c.S_CNT))
        c.lds_addr_rows()
        A('s_cmp_lg_u32 %s, 0' % s(g.S_TY))
        A('s_cbranch_scc1 %s' % Lh)
        c.lds_addr_w()
        A('s_lshl_b32 %s, %s, 1' % (s(U), s(g.S_RB)))
        A('s_add_u32 %s, %s, %s' % (s(U), s(U), s(c.S_WM)))
        A('s_lshl_b32 %s, %s, 6' % (s(U), s(U)))
        A('s_add_u32 %s, %s, %s' % (s(U), s(U), s(g.S_CB)))
        A('s_lshl_b32 %s, %s, 1' % (s(U), s(U)))
        A('s_add_u32 %s, %s, %s' % (s(U), s(U), s(c.S_WN)))
        A('s_lshl_b32 %s, %s, 13' % (s(U), s(U)))
        A('s_add_u32 %s, %s, 0x%x' % (s(g.S_EB), s(U), QX))
        A('s_branch %s' % Lm)
        A.label(Lh)
        c.lds_addr_w(glu=True)
        A('s_mul_i32 %s, %s, 28' % (s(U), s(g.S_RB)))
        A('s_add_u32 %s, %s, %s' % (s(U), s(U), s(g.S_CB)))
        A('s_lshl_b32 %s, %s, 1' % (s(U), s(U)))
        A('s_add_u32 %s, %s, %s' % (s(U), s(U), s(c.S_WN)))
        A('s_lshl_b32 %s, %s, 1' % (s(U), s(U)))
        A('s_add_u32 %s, %s, %s' % (s(U), s(U), s(c.S_WM)))
        A('s_lshl_b32 %s, %s, 14' % (s(U), s(U)))
        A('s_add_u32 %s, %s, 0x%x' % (s(g.S_EB), s(U), HB))
        A.label(Lm)
        c.tile_start(False)

        def switch():
            Ln, Ls = A.new_label('sn' + g.tag), A.new_label('ss' + g.tag)
            A('s_lshl_b32 %s, %s, 1' % (s(U), s(g.S_RB)))
            A('s_add_u32 %s, %s, %s' % (s(U), s(U), s(c.S_WM)))
            A('s_lshl_b32 %s, %s, 9' % (s(U), s(U)))
            A('s_add_u32 %s, %s, 0x%x' % (s(U), s(U), GV))
            A('v_lshlrev_b32 %s, 2, %s' % (v(c.V_T), v(c.V_N)))
            for tm in range(8):
                A('buffer_load_dword %s, %s, %s, %s offen offset:%d sc1' % (v(g.V_G8 + tm), v(c.V_T), s(c.S_WS, 4), s(U), tm * 64))
            g.decode()
            A('s_cmp_eq_u32 %s, 2' % s(g.S_NTY))
            A('s_cbranch_scc1 %s' % Ln)
            g.target()
            A('s_branch %s' % Ls)
            A.label(Ln)
            c.null_switch()
            A.label(Ls)
        c.main(False, switch)
        A('s_cmp_lg_u32 %s, 0' % s(g.S_TY))
        A('s_cbranch_scc1 %s' % Leh)
        c.epi_frag(g.S_EB, lambda fg, tm: (tm >> 1) * 32 * 8192 + (tm & 1) * 4096 + fg * 1024)
        A('s_lshl_b32 %s, %s, 2' % (s(U), s(g.S_RB)))
        A('s_add_u32 %s, %s, %d' % (s(U), s(U), C_Q))
        A('s_mov_b32 %s, 1' % s(U + 1))
        A('v_mov_b32 %s, %d' % (v(c.V_T + 2), C_XI))
        poll_dword(A, g.S_DB, c.V_T + 2, c.V_T + 3, U + 2, U + 3, lambda st: A('s_cmp_ge_u32 %s, 128' % s(st)), L_exit, g.tag)
        A('s_branch %s' % Lsg)
        A.label(Leh)
        for tm in range(8):
            A('v_sub_f32 %s, 1.0, %s' % (v(g.V_G8 + tm), v(g.V_G8 + tm)))
        c.epi_glu(g.S_EB, g.V_G8)
        A('s_lshl_b32 %s, %s, 2' % (s(U), s(g.S_RB)))
        A('s_add_u32 %s, %s, %d' % (s(U), s(U), C_H))
        A('s_cmp_ge_u32 %s, 14' % s(g.S_CB))
        A('s_cselect_b32 %s, 0x100, 1' % s(U + 1))
        A('s_cmp_ge_u32 %s, 21' % s(g.S_CB))
        A('s_cselect_b32 %s, 0x10000, %s' % (s(U + 1), s(U + 1)))
        A.label(Lsg)
        signal(A, c, g.S_DB, U, U + 1, g.tag)
        A('s_cmp_lg_u32 %s, 2' % s(g.S_NTY))
        A('s_cbranch_scc1 %s' % Lj)
        g.stamp(1)
        A('s_and_b32 %s, %s, 7' % (s(g.S_RB), s(g.S_J)))
        A('s_lshr_b32 %s, %s, 3' % (s(g.S_CB), s(g.S_J)))
        A('s_cmp_eq_u32 %s, 3' % s(g.S_XG))
        A('s_cselect_b32 %s, 0, %s' % (s(g.S_TY), s(g.S_XG)))
        A('s_cselect_b32 %s, 14, 7' % s(c.S_CNT))
        A('s_mul_i32 %s, %s, 7' % (s(U), s(g.S_TY)))
        A('s_add_u32 %s, %s, 7' % (s(U), s(U)))
        A('s_cmp_eq_u32 %s, 0' % s(g.S_TY))
        A('s_cselect_b32 %s, 0, %s' % (s(U), s(U)))
        A('s_lshl_b32 %s, %s, 18' % (s(c.S_SB), s(U)))
        A('s_mul_i32 %s, %s, 28' % (s(U + 1), s(g.S_RB)))
        A('s_add_u32 %s, %s, %s' % (s(U + 1), s(U + 1), s(U)))
        A('s_lshl_b32 %s, %s, 16' % (s(U + 1), s(U + 1)))
        A('s_add_u32 %s, %s, 0x%x' % (s(c.S_SA), s(U + 1), HB))
        srd(A, c.S_A, 6, WS_BYTES)
        srd(A, c.S_B, g.P_WD, 7 * MB)
        c.lds_addr_frag()
        c.lds_addr_w(perm=True)
        c.dma_addr_frag()
        A('s_lshl_b32 %s, %s, 9' % (s(U), s(g.S_CB)))
        A('s_lshl_b32 %s, %s, 8' % (s(U + 1), s(c.S_WM)))
        A('s_add_u32 %s, %s, %s' % (s(U), s(U), s(U + 1)))
        c.dma_addr_w(U, 2048, perm=True)
        A('s_lshl_b32 %s, %s, 2' % (s(U), s(g.S_RB)))
        A('s_add_u32 %s, %s, %d' % (s(U), s(U), C_H))
        A('v_mov_b32 %s, %s' % (v(c.V_T + 2), s(U)))
        A('s_lshl_b32 %s, %s, 3' % (s(U + 4), s(g.S_TY)))

        def hc(st):
            A('s_lshr_b32 %s, %s, %s' % (s(st), s(st), s(U + 4)))
            A('s_and_b32 %s, %s, 0xff' % (s(st), s(st)))
            A('s_cmp_ge_u32 %s, %s' % (s(st), s(c.S_CNT)))
        poll_dword(A, g.S_DB, c.V_T + 2, c.V_T + 3, U + 2, U + 3, hc, L_exit, g.tag)
        g.stamp(2)
        c.prologue()
        c.tile_start(True)
        c.main(True, c.null_switch)
        g.stamp(3)
        A('s_lshl_b32 %s, %s, 1' % (s(U), s(g.S_RB)))
        A('s_add_u32 %s, %s, %s' % (s(U), s(U), s(c.S_WM)))
        A('s_lshl_b32 %s, %s, 5' % (s(U), s(U)))
        A('s_add_u32 %s, %s, %s' % (s(U), s(U), s(g.S_CB)))
        A('s_lshl_b32 %s, %s, 1' % (s(U), s(U)))
        A('s_add_u32 %s, %s, %s' % (s(U), s(U), s(c.S_WN)))
        A('s_lshl_b32 %s, %s, 12' % (s(g.S_EB), s(U)))
        A('s_lshl_b32 %s, %s, 2' % (s(U + 5), s(g.S_J)))
        A('s_add_u32 %s, %s, %d' % (s(U + 5), s(U + 5), C_FT))
        Lo = A.new_label('own' + g.tag)
        A('s_cmp_eq_u32 %s, 2' % s(g.S_TY))
        A('s_cbranch_scc1 %s' % Lo)
        A('s_lshl_b32 %s, %s, 22' % (s(U), s(g.S_TY)))
        A('s_add_u32 %s, %s, %s' % (s(U), s(U), s(g.S_EB)))
        A('s_add_u32 %s, %s, 0x%x' % (s(U), s(U), FP))
        c.epi_frag(U, lambda fg, tm: tm * 32768 + fg * 1024)
        A('s_mov_b32 %s, 1' % s(U + 1))
        signal(A, c, g.S_DB, U + 5, U + 1, g.tag)
        A('s_branch %s' % L_done)
        A.label(Lo)
        A('v_mov_b32 %s, %s' % (v(c.V_T + 2), s(U + 5)))

        def fc(st):
            A('s_and_b32 %s, %s, 0xff' % (s(st), s(st)))
            A('s_cmp_ge_u32 %s, 2' % s(st))
        poll_dword(A, g.S_DB, c.V_T + 2, c.V_T + 3, U + 2, U + 3, fc, L_exit, g.tag)
        A('s_add_u32 %s, %s, 0x%x' % (s(U), s(g.S_EB), FP))
        A('s_add_u32 %s, %s, 0x%x' % (s(U + 1), s(g.S_EB), FP + 4 * MB))
        if f_out:
            f_out(self)
        else:
            A('s_add_u32 %s, %s, 0x%x' % (s(U + 2), s(g.S_EB), BB))
            epi_combine(A, c, [U, U + 1], 'frag', U + 2)
        A('s_branch %s' % L_done)
```

```python
MB = 1 << 20
WS_BYTES = 256 * MB
MEMB = 0
OB = 0x40000
WB = 0x80000
SCB = 0x100000
PROG = 0x200000
DIAG = 0x208000
WB2 = 0x300000
KM = 0x400000
VM = 0x800000
KX = 0x1000000
VT = 0x2200000
QX = 0x3400000
OX = 0x4400000
HB = 0x5000000
BB = 0x6000000
AP = 0x6400000
FP = 0x6800000
GV = 0x7000000
XI = 0x7400000
DIAG2 = 0x8000000
K_X, K_MEM0, K_WQ, K_WK, K_WV, K_WO, K_SEG, K_BX, K_WG, K_WU, K_WD, K_GW, K_OUT, K_DBG, K_WS = [8 * i for i in range(15)]
```

```python
import sys
sys.path.insert(0, 'gen')
from common import *
from chain2 import *
from gside import *
from attn import Attn
from build_chain2 import ticket
from build_g import other_side
import gemm

OI = 0x9000000
OP = 0xA000000


def k_main(prm):
    A = Asm()
    c = Chain(A, prm=prm)
    g = GSide(A, tag='g')
    A('s_cmp_ge_u32 s2, 256')
    A('s_cbranch_scc1 L_end')
    A('s_load_dwordx2 s[4:5], s[0:1], %d' % K_DBG)
    A('s_load_dwordx2 s[6:7], s[0:1], %d' % K_WS)
    A('s_getreg_b32 %s, hwreg(HW_REG_XCC_ID, 0, 4)' % s(c.S_X))
    A('s_waitcnt lgkmcnt(0)')
    srd(A, c.S_WS, 6, WS_BYTES)
    srd(A, c.S_DB, 4, 256)
    ticket(A, c.S_X, c.S_J, c.S_DB)
    A('s_cmp_ge_u32 %s, 32' % s(c.S_J))
    A('s_cbranch_scc1 L_end')
    A('s_cmp_ge_u32 %s, 4' % s(c.S_X))
    A('s_cbranch_scc1 L_other')
    c.setup()
    c.initial_poison()
    A('s_waitcnt vmcnt(0)')
    A('s_barrier')
    A('s_cmp_lg_u32 %s, 0' % s(c.S_WAVE))
    A('s_cbranch_scc1 L_arr')
    A('v_mov_b32 %s, %d' % (v(c.V_T + 1), C_START))
    A('s_mov_b64 exec, 1')
    A('buffer_atomic_add %s, %s, %s, 0 offen sc1' % (v(c.V_C1), v(c.V_T + 1), s(c.S_DB, 4)))
    A('s_mov_b64 exec, -1')
    A.label('L_arr')
    c.load_weights(C_XI, 'L_end')

    def start_wait(L_exit):
        t = c.V_T + 4
        A('v_mov_b32 %s, %d' % (v(t + 1), C_START))
        poll_dword(A, c.S_DB, t + 1, t, c.S_T, c.S_CNT, lambda st: A('s_cmp_ge_u32 %s, 128' % s(st)), L_exit, 'sb')
    c.prologue2(start_wait, 'L_end', 'L_end')
    A.label('L_other')
    other_side(A, c.S_X, c.S_J, c.S_WS, c.S_DB, g, 'L_end', 'L_end', 'L_end')
    A.label('L_end')
    A('s_endpgm')
    return finish(A)


def k_attn():
    A = Asm()
    c = Attn(A)
    A('s_cmp_ge_u32 s2, 512')
    A('s_cbranch_scc1 L_aend')
    A('s_load_dwordx2 s[6:7], s[0:1], %d' % K_WS)
    A('v_and_b32 v1, 63, v0')
    A('v_lshrrev_b32 v2, 6, v0')
    A('s_nop 0')
    A('v_readfirstlane_b32 s3, v2')
    A('s_lshl_b32 s20, s2, 2')
    A('s_add_u32 s20, s20, s3')
    c.setup()
    A('s_waitcnt lgkmcnt(0)')
    srd(A, 8, 6, WS_BYTES)
    ws = 's[8:11]'
    A('s_lshl_b32 s21, s20, 13')
    A('s_lshl_b32 s22, s20, 11')
    for k, base in enumerate((QX, QX + 4096, KX, KX + 4096, VT, VT + 4096)):
        A('s_add_u32 s%d, s21, 0x%x' % (24 + k, base))
    A('s_add_u32 s30, s22, 0x%x' % KM)
    A('s_add_u32 s31, s22, 0x%x' % VM)
    A('s_lshr_b32 s23, s20, 5')
    A('s_lshl_b32 s32, s23, 7')
    A('s_add_u32 s32, s32, 0x%x' % GV)

    def ld4(dst, sreg):
        for q in range(4):
            A('buffer_load_dwordx4 %s, %s, %s, s%d offen offset:%d' % (v(dst + 4 * q, 4), v(c.V_L16), ws, sreg, q * 1024))
    ld4(c.V_Q, 24)
    for q in range(4):
        A('buffer_load_dwordx4 %s, %s, %s, s30 offen offset:%d' % (v(c.V_KM + 4 * q, 4), v(c.V_KMA), ws, q * 512))
    ld4(c.V_K, 26)
    ld4(c.V_VT, 28)
    ld4(c.V_VT + 16, 29)
    for et in range(8):
        A('buffer_load_dwordx2 %s, %s, %s, s31 offen offset:%d' % (v(c.V_VM + 2 * et, 2), v(c.V_VMA), ws, et * 256))
    for tq in range(2):
        A('buffer_load_dword %s, %s, %s, s32 offen offset:%d' % (v(c.V_G + tq), v(c.V_N4), ws, tq * 64))
    ld4(c.V_Q + 16, 25)
    ld4(c.V_K + 16, 27)
    A('s_lshr_b32 s33, s23, 3')
    A('s_lshl_b32 s33, s33, 5')
    A('s_and_b32 s34, s20, 31')
    A('s_add_u32 s33, s33, s34')
    A('s_lshl_b32 s33, s33, 4')
    A('s_and_b32 s34, s23, 7')
    A('s_add_u32 s33, s33, s34')
    A('s_lshl_b32 s33, s33, 12')
    A('s_add_u32 s33, s33, 0x%x' % OI)
    A('s_add_u32 s34, s33, 0x8000')
    for tq in range(2):
        A('s_waitcnt vmcnt(%d)' % (26 if tq == 0 else 4))
        c.scores(tq)
        c.softmax(tq)
        if tq == 0:
            A('s_waitcnt vmcnt(8)')
        c.pv(range(8), c.V_G + tq)
        for eg in range(4):
            A('buffer_store_dwordx4 %s, %s, %s, s%d offen offset:%d' % (v(c.V_PK + eg * 4, 4), v(c.V_L16), ws, 33 + (eg >> 1), tq * 2048 + (eg & 1) * 1024))
    A.label('L_aend')
    A('s_endpgm')
    return finish(A)


def k_out():
    A = Asm()
    g = GSide(A, tag='o')
    c = g.c
    U = g.S_U
    A('s_cmp_ge_u32 s2, 128')
    A('s_cbranch_scc1 L_oend')
    A('s_load_dwordx2 s[4:5], s[0:1], %d' % K_DBG)
    A('s_load_dwordx2 s[6:7], s[0:1], %d' % K_WS)
    A('s_load_dwordx2 %s, s[0:1], %d' % (s(g.P_WD, 2), K_WO))
    A('s_load_dwordx2 %s, s[0:1], %d' % (s(g.P_OUT, 2), K_OUT))
    c.setup()
    A('s_and_b32 %s, s2, 7' % s(g.S_RB))
    A('s_bfe_u32 %s, s2, 0x20003' % s(g.S_CB))
    A('s_lshr_b32 %s, s2, 5' % s(g.S_TY))
    A('s_and_b32 %s, s2, 31' % s(g.S_J))
    A('s_waitcnt lgkmcnt(0)')
    srd(A, c.S_WS, 6, WS_BYTES)
    srd(A, g.S_DB, 4, 256)
    srd(A, g.S_OUT, g.P_OUT, 4 * MB)
    srd(A, c.S_A, 6, WS_BYTES)
    srd(A, c.S_B, g.P_WD, 8 * MB)
    A('s_mov_b32 %s, 8' % s(c.S_CNT))
    A('s_lshl_b32 %s, %s, 21' % (s(c.S_SB), s(g.S_TY)))
    A('s_lshl_b32 %s, %s, 2' % (s(U), s(g.S_RB)))
    A('s_add_u32 %s, %s, %s' % (s(U), s(U), s(g.S_TY)))
    A('s_lshl_b32 %s, %s, 19' % (s(U), s(U)))
    A('s_add_u32 %s, %s, 0x%x' % (s(c.S_SA), s(U), OI))
    c.lds_addr_frag()
    c.lds_addr_w(perm=True)
    c.dma_addr_frag()
    A('s_lshl_b32 %s, %s, 9' % (s(U), s(g.S_CB)))
    A('s_lshl_b32 %s, %s, 8' % (s(U + 1), s(c.S_WM)))
    A('s_add_u32 %s, %s, %s' % (s(U), s(U), s(U + 1)))
    c.dma_addr_w(U, 2048, perm=True)
    c.prologue()
    c.tile_start(True)
    c.main(True, c.null_switch)
    A('s_lshl_b32 %s, %s, 1' % (s(U), s(g.S_RB)))
    A('s_add_u32 %s, %s, %s' % (s(U), s(U), s(c.S_WM)))
    A('s_lshl_b32 %s, %s, 18' % (s(U + 6), s(U)))
    A('s_lshl_b32 %s, %s, 5' % (s(U), s(U)))
    A('s_add_u32 %s, %s, %s' % (s(U), s(U), s(g.S_CB)))
    A('s_lshl_b32 %s, %s, 1' % (s(U), s(U)))
    A('s_add_u32 %s, %s, %s' % (s(U), s(U), s(c.S_WN)))
    A('s_lshl_b32 %s, %s, 12' % (s(g.S_EB), s(U)))
    A('s_and_b32 %s, %s, 7' % (s(U), s(U)))
    A('s_lshl_b32 %s, %s, 8' % (s(U), s(U)))
    A('s_add_u32 %s, %s, %s' % (s(U + 6), s(U + 6), s(U)))
    A('s_lshl_b32 %s, %s, 2' % (s(U + 5), s(g.S_J)))
    A('s_add_u32 %s, %s, %d' % (s(U + 5), s(U + 5), C_FT))
    A('s_cmp_eq_u32 %s, 3' % s(g.S_TY))
    A('s_cbranch_scc1 L_oown')
    A('s_lshl_b32 %s, %s, 22' % (s(U), s(g.S_TY)))
    A('s_add_u32 %s, %s, %s' % (s(U), s(U), s(g.S_EB)))
    A('s_add_u32 %s, %s, 0x%x' % (s(U), s(U), OP))
    c.epi_frag(U, lambda fg, tm: tm * 32768 + fg * 1024)
    A('s_mov_b32 %s, 1' % s(U + 1))
    signal(A, c, g.S_DB, U + 5, U + 1, 'o')
    A('s_endpgm')
    A.label('L_oown')
    A('v_mov_b32 %s, %s' % (v(c.V_T + 2), s(U + 5)))
    poll_dword(A, g.S_DB, c.V_T + 2, c.V_T + 3, U + 2, U + 3, lambda st: A('s_cmp_ge_u32 %s, 3' % s(st)), 'L_oend', 'o')
    for k in range(3):
        A('s_add_u32 %s, %s, 0x%x' % (s(U + k), s(g.S_EB), OP + k * 4 * MB))
    A('s_add_u32 %s, %s, 0x%x' % (s(U + 3), s(g.S_EB), BB))
    epi_combine(A, c, [U, U + 1, U + 2, U + 3], 'out', U + 6, g.S_OUT)
    A.label('L_oend')
    A('s_endpgm')
    return finish(A)


if __name__ == '__main__':
    from mkco import mkco
    p = sys.argv[1] if len(sys.argv) > 1 else 'cdna_kernels/%s.s' % NAME
    write_file(p, [(NAME + '_kernel', 256, 256, 147456), ('attn_kernel', 512, 256, 0), ('outp_kernel', 128, 256, 147456)],
               [(NAME + '_kernel', k_main({}), 512, 256), ('attn_kernel', k_attn(), 224, 224), ('outp_kernel', k_out(), 512, 256)])
    mkco(p)
```

```python
import sys
sys.path.insert(0, 'gen')
from common import *
from chain2 import *


def ticket(A, sx, sj, srd_dbg):
    A('v_lshrrev_b32 v1, 6, v0')
    A('s_nop 0')
    A('v_readfirstlane_b32 s3, v1')
    A('s_cmp_lg_u32 s3, 0')
    A('s_cbranch_scc1 L_tk')
    A('v_mov_b32 v1, 1')
    A('s_lshl_b32 s3, %s, 2' % s(sx))
    A('v_mov_b32 v2, s3')
    A('s_mov_b64 exec, 1')
    A('buffer_atomic_add v1, v2, %s, 0 offen sc0 sc1' % s(srd_dbg, 4))
    A('s_waitcnt vmcnt(0)')
    A('v_mov_b32 v2, 0')
    A('ds_write_b32 v2, v1')
    A('s_waitcnt lgkmcnt(0)')
    A('s_mov_b64 exec, -1')
    A.label('L_tk')
    A('s_barrier')
    A('v_mov_b32 v2, 0')
    A('ds_read_b32 v1, v2')
    A('s_waitcnt lgkmcnt(0)')
    A('v_readfirstlane_b32 %s, v1' % s(sj))
    A('s_barrier')


def build(path, opts):
    prm = {}
    for o in opts:
        for k in ('na', 'nb', 'nd', 'ne', 'sa', 'nw0', 'nw1', 'touch', 'xl', 'pp', 'ws0', 'ws1', 'gs', 'os'):
            if o.startswith(k) and o[len(k):].isdigit():
                prm[k] = int(o[len(k):])
    diag = True if 'diag' in opts else 'lite' if 'lite' in opts else False
    A = Asm()
    c = Chain(A, diag=diag, prm=prm)
    L_exit, L_done = 'L_exit', 'L_done'
    A('s_cmp_ge_u32 s2, 256')
    A('s_cbranch_scc1 L_end')
    A('s_load_dwordx2 s[4:5], s[0:1], %d' % K_DBG)
    A('s_load_dwordx2 s[6:7], s[0:1], %d' % K_WS)
    A('s_getreg_b32 %s, hwreg(HW_REG_XCC_ID, 0, 4)' % s(c.S_X))
    A('s_waitcnt lgkmcnt(0)')
    srd(A, c.S_WS, 6, WS_BYTES)
    srd(A, c.S_DB, 4, 256)
    ticket(A, c.S_X, c.S_J, c.S_DB)
    A('s_cmp_ge_u32 %s, 32' % s(c.S_J))
    A('s_cbranch_scc1 L_end')
    A('s_cmp_ge_u32 %s, 4' % s(c.S_X))
    A('s_cbranch_scc1 L_other')
    A('s_memtime s[100:101]')
    c.setup()
    c.initial_poison()
    A('s_waitcnt vmcnt(0)')
    A('s_barrier')
    A('s_cmp_lg_u32 %s, 0' % s(c.S_WAVE))
    A('s_cbranch_scc1 L_arr')
    A('v_mov_b32 %s, 64' % v(c.V_T + 1))
    A('s_mov_b64 exec, 1')
    A('buffer_atomic_add %s, %s, %s, 0 offen sc1' % (v(c.V_C1), v(c.V_T + 1), s(c.S_DB, 4)))
    A('s_mov_b64 exec, -1')
    A.label('L_arr')
    c.load_weights(68, L_exit)

    def start_wait(L_exit):
        t = c.V_T + 4
        A('v_mov_b32 %s, 64' % v(t + 1))
        A('s_mov_b32 %s, 0' % s(c.S_CNT))
        A.label('L_sb')
        A('buffer_load_dword %s, %s, %s, 0 offen sc1' % (v(t), v(t + 1), s(c.S_DB, 4)))
        A('s_add_u32 %s, %s, 1' % (s(c.S_CNT), s(c.S_CNT)))
        A('s_cmp_ge_u32 %s, 0x%x' % (s(c.S_CNT), POLL_MAX))
        A('s_cbranch_scc1 %s' % L_exit)
        A('s_waitcnt vmcnt(0)')
        A('v_readfirstlane_b32 %s, %s' % (s(c.S_T), v(t)))
        A('s_cmp_lt_u32 %s, 128' % s(c.S_T))
        A('s_cbranch_scc1 L_sb')
        A('s_memrealtime s[2:3]')
    c.prologue2(start_wait, L_exit, L_done)
    A.label(L_exit)
    A('v_mov_b32 %s, 0xdead' % v(c.V_T))
    A('v_mov_b32 %s, 104' % v(c.V_T + 1))
    A('buffer_store_dword %s, %s, %s, 0 offen sc1' % (v(c.V_T), v(c.V_T + 1), s(c.S_DB, 4)))
    A('s_endpgm')
    A.label(L_done)
    A('s_memtime s[98:99]')
    A('s_memrealtime s[4:5]')
    A('s_lshl_b32 %s, %s, 5' % (s(c.S_T), s(c.S_X)))
    A('s_add_u32 %s, %s, %s' % (s(c.S_T), s(c.S_T), s(c.S_J)))
    A('s_lshl_b32 %s, %s, 2' % (s(c.S_T), s(c.S_T)))
    A('s_add_u32 %s, %s, %s' % (s(c.S_T), s(c.S_T), s(c.S_WAVE)))
    A('s_lshl_b32 %s, %s, 4' % (s(c.S_T + 1), s(c.S_T)))
    A('s_add_u32 %s, %s, 0x%x' % (s(c.S_T + 1), s(c.S_T + 1), DIAG))
    A('s_waitcnt vmcnt(0) lgkmcnt(0)')
    A('s_sub_u32 s4, s4, s2')
    A('v_mov_b32 v40, s100')
    A('v_mov_b32 v41, s98')
    A('v_mov_b32 v42, s4')
    A('v_mov_b32 v43, 0')
    A('s_mov_b64 exec, 1')
    A('buffer_store_dwordx4 v[40:43], v43, %s, %s offen' % (s(c.S_WS, 4), s(c.S_T + 1)))
    A('s_mov_b64 exec, -1')
    if diag:
        A('s_lshl_b32 %s, %s, 12' % (s(c.S_T), s(c.S_T)))
        A('s_add_u32 %s, %s, 0x%x' % (s(c.S_T), s(c.S_T), DIAG2))
        A('s_lshl_b32 %s, %s, 12' % (s(c.S_T + 1), s(c.S_WAVE)))
        A('s_add_u32 %s, %s, 0x%x' % (s(c.S_T + 1), s(c.S_T + 1), c.L_DG))
        A('v_add_u32 v44, %s, %s' % (s(c.S_T + 1), v(c.V_L16)))
        for q in range(4):
            A('ds_read_b128 v[48:51], v44 offset:%d' % (q * 1024))
            A('s_waitcnt lgkmcnt(0)')
            A('buffer_store_dwordx4 v[48:51], %s, %s, %s offen offset:%d' % (v(c.V_L16), s(c.S_WS, 4), s(c.S_T), q * 1024))
            A('s_waitcnt vmcnt(0)')
    A.label('L_end')
    A('s_endpgm')
    A.label('L_other')
    from build_g import other_side, gdiag
    from gside import GSide
    g = GSide(A, tag='g', diag=True)
    if 'gemm' in opts:
        other_side(A, c.S_X, c.S_J, c.S_WS, c.S_DB, g, 'L_end', 'L_gdone', 'L_end')
        A.label('L_gdone')
        gdiag(A, g)
        A('s_endpgm')
    else:
        g.emit = lambda *a: A('s_endpgm')
        other_side(A, c.S_X, c.S_J, c.S_WS, c.S_DB, g, 'L_end', 'L_end', 'L_end')
    lines = finish(A, verbose=False)
    write_file(path, [(NAME + '_kernel', 256, 256, 147456)], [(NAME + '_kernel', lines, 512, 256)])


if __name__ == '__main__':
    from mkco import mkco
    for spec in sys.argv[1:]:
        opts = spec.split('+')
        p = 'd_%s.s' % spec.replace('+', '_')
        build(p, opts)
        mkco(p)
```

```python
from asm import *
from layout import *

POLL_MAX = 1 << 17


def srd(A, d, ptr, nbytes):
    A('s_mov_b32 %s, %s' % (s(d), s(ptr)))
    A('s_mov_b32 %s, %s' % (s(d + 1), s(ptr + 1)))
    A('s_mov_b32 %s, 0x%x' % (s(d + 2), nbytes))
    A('s_mov_b32 %s, 0x20000' % s(d + 3))


MF = 'v_mfma_f32_16x16x32_bf16 %s, %s, %s, %s'


class Chain:
    S_WS = 8
    S_W = 12
    S_DB = 16
    S_X, S_J, S_H, S_C, S_WAVE = 20, 21, 22, 23, 24
    S_STEP = 25
    S_MB, S_OBB, S_WBB, S_SCBB = 26, 27, 28, 29
    S_MEMOFF, S_OOFF, S_WOFF, S_SCOFF, S_NMEM = 30, 31, 32, 33, 34
    S_PMEM, S_PO, S_PW, S_PSC = 35, 36, 37, 38
    S_X0, S_X1, S_KV, S_KMVM = 39, 40, 41, 42
    S_CNT = 43
    S_MP0, S_MP1, S_MSM = 44, 46, 48
    S_CSC = 50
    S_VT = 51
    S_T = 52
    S_M = 60
    S_RC = 70
    S_ST = 74
    S_TCH = 98
    V_L = 1
    V_GATH, V_L16, V_LW, V_XA, V_OST, V_MST = 2, 3, 4, 5, 6, 7
    V_SC = 8
    V_SCM, V_SCL, V_KM, V_VM, V_VRD, V_VRD2, V_PW, V_Z = 12, 13, 14, 15, 16, 17, 18, 19
    V_WA = 20
    V_TCH, V_L8, V_DG, V_C1 = 24, 25, 26, 27
    V_XB = 0
    V_ONE = 28
    V_POI = 28
    V_T = 32
    V_M = 40
    V_ACC = 56
    V_R = 88
    V_RD = 96
    V_F = 128
    V_KXF = 132
    V_VTF = 140
    V_VMF = 148
    V_PM = 156
    V_PA = 160
    V_XF = 192
    L_QK = 0
    L_V = 8192
    L_WO = 12288
    L_STAGE = 16384
    L_P = 16384
    L_KV = 49152
    L_VM = 53248
    L_FL = 53760
    L_DG = 65536

    def __init__(self, A, diag=False, nsteps=64, im='', prm=None, tag=''):
        self.A = A
        self.diag = diag
        self.nsteps = nsteps
        self.im = im
        self.tag = tag
        p = dict(na=8, nb=10, nd=8, ne=10, sa=10, nw1=7, touch=1, xl=1, pp=1)
        p.update(prm or {})
        self.p = p

    def stamp(self, k):
        if self.diag is True:
            self.A('s_memtime %s' % s(self.S_ST + 2 * k, 2))

    def lstamp(self, w, k):
        if self.diag == 'lite' and w == 3:
            self.A('s_memtime %s' % s(self.S_ST + 2 * k, 2))

    def dump(self):
        if not self.diag:
            return
        A, c = self.A, self
        A('s_waitcnt lgkmcnt(0)')
        t = c.V_RD
        for k in range(12):
            A('v_mov_b32 %s, %s' % (v(t + k), s(c.S_ST + 2 * k)))
        for k in range(4):
            A('v_mov_b32 %s, %s' % (v(t + 12 + k), s(c.S_RC + k)))
        A('s_mov_b64 exec, 1')
        for q in range(4):
            A('ds_write_b128 %s, %s offset:%d' % (v(c.V_DG), v(t + 4 * q, 4), q * 16))
        A('s_mov_b64 exec, -1')
        A('v_add_u32 %s, 64, %s' % (v(c.V_DG), v(c.V_DG)))
        A('s_waitcnt lgkmcnt(0)')

    def pmf(self, idx):
        c = self
        tt, t, m = idx >> 5, (idx >> 2) & 7, idx & 3
        acc = v(c.V_PA + tt * 16 + m * 4, 4)
        xf = v(c.V_XF + tt * 32 + t * 4, 4)
        wf = a((t * 6 + 2 + m) * 4, 4)
        cc = acc if t else '0'
        return MF % ((acc, wf, xf, cc) if m < 2 else (acc, xf, wf, cc))

    def P(self, lo, hi, fill=None):
        for k, idx in enumerate(range(lo, hi)):
            if self.p['pp']:
                self.A(self.pmf(idx))
            for f in (fill or {}).get(k, []):
                self.A(f)

    def pwrites(self, tt):
        c = self
        return ['ds_write_b128 %s, %s offset:%d' % (v(c.V_PW), v(c.V_PA + tt * 16 + m * 4, 4), (tt * 4 + m) * 1024) for m in range(4)]

    def xloads(self, tt):
        c = self
        if not c.p['xl']:
            return []
        return ['buffer_load_dwordx4 %s, %s, %s, %s offen offset:%d' % (v(c.V_XF + tt * 32 + t * 4, 4), v(c.V_XB if t >= 4 else c.V_XA), s(c.S_WS, 4),
                                                                      s(c.S_X1 if tt else c.S_X0), (t & 3) * 1024) for t in range(8)]

    def gather_loads(self, soff):
        c = self
        return ['buffer_load_dwordx4 %s, %s, %s, %s offen offset:%d sc1' % (v(c.V_M + 4 * k, 4), v(c.V_GATH), s(c.S_WS, 4), s(soff), k * 1024)
                for k in range(4)]

    def check(self, k, reg, two):
        c = self
        if two:
            return ['v_max_u32 %s, %s, %s' % (v(c.V_T + (k & 1)), v(reg), v(reg + 2)),
                    'v_cmp_eq_u32 %s, -1, %s' % (s(c.S_M + 2 * k, 2), v(c.V_T + (k & 1)))]
        return ['v_cmp_eq_u32 %s, -1, %s' % (s(c.S_M + 2 * k, 2), v(reg))]

    def or_masks(self, n):
        A, c = self.A, self
        T = c.S_T
        A('s_or_b64 %s, %s, %s' % (s(T, 2), s(c.S_M, 2), s(c.S_M + 2, 2)))
        for k in range(2, n):
            A('s_or_b64 %s, %s, %s' % (s(T, 2), s(T, 2), s(c.S_M + 2 * k, 2)))

    def retry(self, L_entry, loads, checks, L_back, L_exit, rc):
        A, c = self.A, self
        A.label(L_entry)
        A('s_mov_b32 %s, 0' % s(c.S_CNT))
        L = A.new_label('rt' + c.tag)
        A.label(L)
        for k, t in enumerate(loads):
            Ls = A.new_label('rs' + c.tag)
            A('s_cmp_eq_u64 %s, 0' % s(c.S_M + 2 * k, 2))
            A('s_cbranch_scc1 %s' % Ls)
            A(t)
            A.label(Ls)
        A('s_add_u32 %s, %s, 1' % (s(c.S_CNT), s(c.S_CNT)))
        if c.diag:
            A('s_add_u32 %s, %s, 1' % (s(c.S_RC + rc), s(c.S_RC + rc)))
        A('s_cmp_ge_u32 %s, 0x%x' % (s(c.S_CNT), POLL_MAX))
        A('s_cbranch_scc1 %s' % L_exit)
        A('s_waitcnt vmcnt(0)')
        for ch in checks:
            for t in ch:
                A(t)
        c.or_masks(len(loads))
        A('s_cbranch_scc1 %s' % L)
        A('s_branch %s' % L_back)

    def setup(self):
        A, c = self.A, self
        T = c.S_T
        A('v_and_b32 %s, 63, v0' % v(c.V_L))
        A('v_lshrrev_b32 %s, 6, v0' % v(c.V_T))
        A('s_nop 0')
        A('v_readfirstlane_b32 %s, %s' % (s(c.S_WAVE), v(c.V_T)))
        A('s_lshr_b32 %s, %s, 2' % (s(c.S_H), s(c.S_J)))
        A('s_lshl_b32 %s, %s, 3' % (s(T), s(c.S_X)))
        A('s_add_u32 %s, %s, %s' % (s(c.S_H), s(c.S_H), s(T)))
        A('s_and_b32 %s, %s, 3' % (s(c.S_C), s(c.S_J)))
        g, p, i, n = c.V_T, c.V_T + 1, c.V_T + 2, c.V_T + 3
        t0, t1 = c.V_T + 4, c.V_T + 5
        A('v_lshrrev_b32 %s, 4, %s' % (v(g), v(c.V_L)))
        A('v_bfe_u32 %s, %s, 3, 1' % (v(p), v(c.V_L)))
        A('v_and_b32 %s, 7, %s' % (v(i), v(c.V_L)))
        A('v_and_b32 %s, 15, %s' % (v(n), v(c.V_L)))
        A('v_lshlrev_b32 %s, 4, %s' % (v(c.V_L16), v(c.V_L)))
        A('v_lshlrev_b32 %s, 3, %s' % (v(c.V_L8), v(c.V_L)))
        A('v_add_u32 %s, 0x%x, %s' % (v(c.V_L8), c.L_VM, v(c.V_L8)))
        A('v_mov_b32 %s, 0x%x' % (v(c.V_Z), c.L_FL))
        A('v_mov_b32 %s, 1' % v(c.V_C1))
        A('v_lshlrev_b32 %s, 7, %s' % (v(t0), v(g)))
        A('v_lshl_add_u32 %s, %s, 4, %s' % (v(t0), v(i), v(t0)))
        A('v_mov_b32 %s, %s' % (v(c.V_KM), v(t0)))
        A('v_lshl_add_u32 %s, %s, 9, %s' % (v(c.V_GATH), v(p), v(t0)))
        A('s_lshl_b32 %s, %s, 12' % (s(T), s(c.S_WAVE)))
        A('v_add_u32 %s, %s, %s' % (v(c.V_GATH), s(T), v(c.V_GATH)))
        A('s_lshl_b32 %s, %s, 9' % (s(T), s(c.S_J)))
        A('v_add_u32 %s, %s, %s' % (v(c.V_OST), s(T), v(t0)))
        A('v_lshl_add_u32 %s, %s, 3, %s' % (v(c.V_MST), v(p), v(c.V_OST)))
        for k in range(4):
            A('s_add_u32 %s, %s, %d' % (s(T), s(c.S_C), k))
            A('s_and_b32 %s, %s, 3' % (s(T), s(T)))
            A('s_lshl_b32 %s, %s, 10' % (s(T), s(T)))
            A('v_add_u32 %s, %s, %s' % (v(c.V_SC + k), s(T), v(c.V_L16)))
            A('s_add_u32 %s, %s, %d' % (s(T), s(c.S_X), k))
            A('s_and_b32 %s, %s, 3' % (s(T), s(T)))
            A('s_lshl_b32 %s, %s, 10' % (s(T), s(T)))
            A('v_add_u32 %s, %s, %s' % (v(c.V_WA + k), s(T), v(c.V_L16)))
        A('v_and_b32 %s, 1, %s' % (v(t1), v(g)))
        A('v_lshlrev_b32 %s, 9, %s' % (v(c.V_SCM), v(t1)))
        A('v_lshl_add_u32 %s, %s, 4, %s' % (v(c.V_SCM), v(i), v(c.V_SCM)))
        A('s_lshl_b32 %s, %s, 2' % (s(T), s(c.S_C)))
        A('s_add_u32 %s, %s, 0x1000' % (s(T), s(T)))
        A('v_add_u32 %s, %s, %s' % (v(c.V_SCM), s(T), v(c.V_SCM)))
        A('v_add_u32 %s, 0x1000, %s' % (v(c.V_SCL), v(c.V_L16)))
        A('s_lshl_b32 %s, %s, 2' % (s(T), s(c.S_H)))
        A('s_add_u32 %s, %s, %s' % (s(T), s(T), s(c.S_C)))
        A('s_lshl_b32 %s, %s, 9' % (s(T), s(T)))
        A('v_add_u32 %s, %s, %s' % (v(c.V_KM), s(T), v(c.V_KM)))
        A('v_lshlrev_b32 %s, 4, %s' % (v(c.V_VM), v(n)))
        A('v_lshl_add_u32 %s, %s, 2, %s' % (v(c.V_VM), v(g), v(c.V_VM)))
        A('v_add_u32 %s, %s, %s' % (v(c.V_VM), s(T), v(c.V_VM)))
        A('s_lshl_b32 %s, %s, 14' % (s(T), s(c.S_WAVE)))
        A('v_add_u32 %s, %s, %s' % (v(c.V_XA), s(T), v(c.V_L16)))
        A('v_add_u32 %s, 0x1000, %s' % (v(c.V_XB), v(c.V_XA)))
        A('v_lshlrev_b32 %s, 7, %s' % (v(c.V_TCH), v(n)))
        A('s_lshl_b32 %s, %s, 11' % (s(T), s(c.S_J)))
        A('v_add_u32 %s, %s, %s' % (v(c.V_TCH), s(T), v(c.V_TCH)))
        A('v_lshrrev_b32 %s, 1, %s' % (v(t0), v(g)))
        A('v_lshl_add_u32 %s, %s, 4, %s' % (v(t0), v(t0), v(n)))
        A('v_lshlrev_b32 %s, 4, %s' % (v(t0), v(t0)))
        A('v_lshl_add_u32 %s, %s, 3, %s' % (v(t0), v(t1), v(t0)))
        A('v_add_u32 %s, 0x%x, %s' % (v(c.V_VRD), c.L_V, v(t0)))
        A('v_add_u32 %s, 2048, %s' % (v(c.V_VRD2), v(c.V_VRD)))
        A('s_lshl_b32 %s, %s, 10' % (s(T), s(c.S_WAVE)))
        A('v_add_u32 %s, %s, %s' % (v(c.V_LW), s(T), v(c.V_L16)))
        A('s_lshl_b32 %s, %s, 13' % (s(T), s(c.S_WAVE)))
        A('s_add_u32 %s, %s, 0x%x' % (s(T), s(T), c.L_P))
        A('v_add_u32 %s, %s, %s' % (v(c.V_PW), s(T), v(c.V_L16)))
        A('s_lshl_b32 %s, %s, 12' % (s(T), s(c.S_WAVE)))
        A('s_add_u32 %s, %s, 0x%x' % (s(T), s(T), c.L_DG))
        A('v_mov_b32 %s, %s' % (v(c.V_DG), s(T)))
        A('s_lshl_b32 %s, %s, 16' % (s(T), s(c.S_X)))
        A('s_add_u32 %s, %s, 0x%x' % (s(c.S_MB), s(T), MEMB))
        A('s_add_u32 %s, %s, 0x%x' % (s(c.S_OBB), s(T), OB))
        A('s_lshl_b32 %s, %s, 14' % (s(T), s(c.S_J)))
        A('s_add_u32 %s, %s, 0x%x' % (s(c.S_WBB), s(T), WB))
        A('s_lshl_b32 %s, %s, 15' % (s(T), s(c.S_H)))
        A('s_add_u32 %s, %s, 0x%x' % (s(c.S_SCBB), s(T), SCB))
        A('s_mov_b32 %s, 0x00ff00ff' % s(c.S_MP0))
        A('s_mov_b32 %s, 0x00ff00ff' % s(c.S_MP0 + 1))
        A('s_mov_b32 %s, 0xff00ff00' % s(c.S_MP1))
        A('s_mov_b32 %s, 0xff00ff00' % s(c.S_MP1 + 1))
        A('s_mov_b32 %s, 0' % s(c.S_MSM))
        A('s_mov_b32 %s, 0x00ff00ff' % s(c.S_MSM + 1))
        A('s_mov_b32 %s, 0x3e0293ee' % s(c.S_CSC))
        for k in range(4):
            A('v_mov_b32 %s, -1' % v(c.V_POI + k))
            A('s_mov_b32 %s, 0' % s(c.S_RC + k))
        for k in (1, 2, 3):
            A('v_mov_b32 %s, 0' % v(c.V_VMF + k))
            A('v_mov_b32 %s, 0' % v(c.V_VMF + 4 + k))
            A('v_mov_b32 %s, 0' % v(c.V_PM + k))

    def slot(self, dst, base, sh, add):
        c = self
        T = c.S_T + 2
        out = []
        if add:
            out.append('s_add_u32 %s, %s, %d' % (s(T), s(c.S_STEP), add))
            out.append('s_and_b32 %s, %s, 3' % (s(T), s(T)))
        else:
            out.append('s_and_b32 %s, %s, 3' % (s(T), s(c.S_STEP)))
        out.append('s_lshl_b32 %s, %s, %d' % (s(T), s(T), sh))
        out.append('s_add_u32 %s, %s, %s' % (s(dst), s(T), s(base)))
        return out

    def xoffs(self, add):
        c = self
        return ['s_add_u32 %s, %s, %d' % (s(c.S_X0), s(c.S_STEP), add),
                's_min_u32 %s, %s, 63' % (s(c.S_X0), s(c.S_X0)),
                's_lshl_b32 %s, %s, 16' % (s(c.S_X0), s(c.S_X0)),
                's_add_u32 %s, %s, 0x%x' % (s(c.S_X0), s(c.S_X0), XI),
                's_add_u32 %s, %s, 0x2000' % (s(c.S_X1), s(c.S_X0))]

    def poison_list(self):
        c = self
        ws = s(c.S_WS, 4)
        P4 = v(c.V_POI, 4)
        out = ['buffer_store_dwordx4 %s, %s, %s, %s offen sc1' % (P4, v(c.V_WA), ws, s(c.S_PW)),
               'buffer_store_dwordx4 %s, %s, %s, %s offen %s' % (P4, v(c.V_SC), ws, s(c.S_PSC), c.im),
               's_mov_b64 exec, %s' % s(c.S_MP0, 2),
               'buffer_store_dwordx4 %s, %s, %s, %s offen %s' % (P4, v(c.V_OST), ws, s(c.S_PO), c.im),
               'buffer_store_dwordx4 %s, %s, %s, %s offen %s' % (P4, v(c.V_OST), ws, s(c.S_PMEM), c.im),
               's_mov_b64 exec, %s' % s(c.S_MSM, 2)]
        for r in range(4):
            out.append('buffer_store_dword %s, %s, %s, %s offen offset:%d %s' % (v(c.V_POI), v(c.V_SCM), ws, s(c.S_PSC), r * 128, c.im))
        out.append('s_mov_b64 exec, -1')
        return out

    def initial_poison(self):
        A, c = self.A, self
        A('s_mov_b32 %s, %s' % (s(c.S_STEP), s(c.S_WAVE)))
        for t in c.slot(c.S_PMEM, c.S_MB, 14, 0) + c.slot(c.S_PO, c.S_OBB, 14, 0) + c.slot(c.S_PW, c.S_WBB, 12, 0) + c.slot(c.S_PSC, c.S_SCBB, 13, 0):
            A(t)
        for t in c.poison_list():
            A(t)

    def load_weights(self, xi_cnt, L_exit):
        A, c = self.A, self
        vsrc_qkv, vsrc_o, vtr, vtro = c.V_RD, c.V_RD + 1, c.V_RD + 2, c.V_RD + 3
        T = c.S_T
        t0, t1, t2 = c.V_T, c.V_T + 1, c.V_T + 2
        A('v_lshrrev_b32 %s, 2, %s' % (v(t0), v(c.V_L)))
        A('v_and_b32 %s, 3, %s' % (v(t1), v(c.V_L)))
        A('v_lshlrev_b32 %s, 13, %s' % (v(vsrc_qkv), v(t0)))
        A('v_lshl_add_u32 %s, %s, 4, %s' % (v(vsrc_qkv), v(t1), v(vsrc_qkv)))
        A('s_lshl_b32 %s, %s, 21' % (s(T), s(c.S_WAVE)))
        A('s_lshl_b32 %s, %s, 8' % (s(T + 1), s(c.S_H)))
        A('s_add_u32 %s, %s, %s' % (s(T), s(T), s(T + 1)))
        A('s_lshl_b32 %s, %s, 6' % (s(T + 1), s(c.S_C)))
        A('s_add_u32 %s, %s, %s' % (s(T), s(T), s(T + 1)))
        A('v_add_u32 %s, %s, %s' % (v(vsrc_qkv), s(T), v(vsrc_qkv)))
        A('v_lshlrev_b32 %s, 11, %s' % (v(vsrc_o), v(t0)))
        A('v_lshl_add_u32 %s, %s, 4, %s' % (v(vsrc_o), v(t1), v(vsrc_o)))
        A('s_lshl_b32 %s, %s, 21' % (s(T), s(c.S_X)))
        A('s_lshl_b32 %s, %s, 19' % (s(T + 1), s(c.S_WAVE)))
        A('s_add_u32 %s, %s, %s' % (s(T), s(T), s(T + 1)))
        A('s_lshl_b32 %s, %s, 6' % (s(T + 1), s(c.S_J)))
        A('s_add_u32 %s, %s, %s' % (s(T), s(T), s(T + 1)))
        A('v_add_u32 %s, %s, %s' % (v(vsrc_o), s(T), v(vsrc_o)))
        sbase = T + 2
        A('s_lshl_b32 %s, %s, 15' % (s(sbase), s(c.S_WAVE)))
        A('s_add_u32 %s, %s, 0x%x' % (s(sbase), s(sbase), c.L_STAGE))
        A('v_lshrrev_b32 %s, 4, %s' % (v(t0), v(c.V_L)))
        A('v_bfe_u32 %s, %s, 2, 2' % (v(t2), v(c.V_L)))
        A('v_lshl_add_u32 %s, %s, 3, %s' % (v(vtr), v(t0), v(t2)))
        A('v_lshlrev_b32 %s, 6, %s' % (v(vtr), v(vtr)))
        A('v_lshl_add_u32 %s, %s, 3, %s' % (v(vtr), v(t1), v(vtr)))
        A('v_add_u32 %s, %s, %s' % (v(vtr), s(sbase), v(vtr)))
        A('v_lshl_add_u32 %s, %s, 2, %s' % (v(vtro), v(t0), v(t2)))
        A('v_lshlrev_b32 %s, 6, %s' % (v(vtro), v(vtro)))
        A('v_lshl_add_u32 %s, %s, 4, %s' % (v(vtro), v(t1), v(vtro)))
        A('v_add_u32 %s, %s, %s' % (v(vtro), s(sbase), v(vtro)))
        mats = [(K_WK, vsrc_qkv, 8192, 1), (K_WV, vsrc_qkv, 8192, 2), (K_WQ, vsrc_qkv, 8192, 0), (K_WO, vsrc_o, 2048, 3)]
        ptr = c.S_M
        for k, m in enumerate(mats):
            A('s_load_dwordx2 %s, s[0:1], %d' % (s(ptr + 2 * k, 2), m[0]))
        A('s_waitcnt lgkmcnt(0)')

        def issue(m):
            ko, vs, stride, idx = mats[m]
            srd(A, c.S_W, ptr + 2 * m, 8 * MB)
            for q in range(16):
                A('s_add_u32 m0, %s, 0x%x' % (s(sbase), (m & 1) * 16384 + q * 1024))
                A('s_mov_b32 %s, 0x%x' % (s(T), q * 16 * stride))
                A('buffer_load_dwordx4 %s, %s, %s offen lds' % (v(vs), s(c.S_W, 4), s(T)))

        def readout(m):
            idx = mats[m][3]
            for t in range(8):
                for tau in range(2):
                    for hh in range(2):
                        if idx < 3:
                            A('ds_read_b64_tr_b16 %s, %s offset:%d' % (a((t * 6 + idx * 2 + tau) * 4 + 2 * hh, 2), v(vtr),
                                                                       (m & 1) * 16384 + t * 2048 + hh * 256 + tau * 32))
                        else:
                            A('ds_read_b64_tr_b16 %s, %s offset:%d' % (a(192 + (t * 2 + tau) * 4 + 2 * hh, 2), v(vtro),
                                                                       (m & 1) * 16384 + t * 2048 + hh * 1024 + tau * 8))
                if t & 1:
                    A('s_waitcnt lgkmcnt(0)')

        issue(0)
        issue(1)
        A('s_mov_b32 %s, 0' % s(c.S_STEP))
        A('s_waitcnt vmcnt(16)')
        readout(0)
        pv = c.V_T + 4
        A('v_mov_b32 %s, %d' % (v(pv + 1), xi_cnt))
        A('buffer_load_dword %s, %s, %s, 0 offen sc1' % (v(pv), v(pv + 1), s(c.S_DB, 4)))
        issue(2)
        A('s_waitcnt vmcnt(16)')
        Lp, Lq = A.new_label('xi' + c.tag), A.new_label('xi' + c.tag)
        A('s_mov_b32 %s, 0' % s(c.S_CNT))
        A.label(Lp)
        A('v_readfirstlane_b32 %s, %s' % (s(T + 4), v(pv)))
        A('s_cmp_ge_u32 %s, 128' % s(T + 4))
        A('s_cbranch_scc1 %s' % Lq)
        A('buffer_load_dword %s, %s, %s, 0 offen sc1' % (v(pv), v(pv + 1), s(c.S_DB, 4)))
        A('s_add_u32 %s, %s, 1' % (s(c.S_CNT), s(c.S_CNT)))
        A('s_cmp_ge_u32 %s, 0x%x' % (s(c.S_CNT), POLL_MAX))
        A('s_cbranch_scc1 %s' % L_exit)
        A('s_waitcnt vmcnt(0)')
        A('s_branch %s' % Lp)
        A.label(Lq)
        for t in c.xoffs(0) + c.xloads(0) + c.xloads(1):
            A(t)
        readout(1)
        issue(3)
        A('s_waitcnt vmcnt(16)')
        c.P(0, 64)
        for t in c.xoffs(1) + c.xloads(0) + c.xloads(1):
            A(t)
        A('s_mov_b64 exec, 0xffff')
        for k in (2, 3):
            A('s_mov_b32 %s, 0x%x' % (s(T + 4), XI + k * 65536))
            A('buffer_load_dword %s, %s, %s, %s offen' % (v(c.V_T + 4 + k), v(c.V_TCH), s(c.S_WS, 4), s(T + 4)))
        A('s_mov_b64 exec, -1')
        readout(2)
        A('s_waitcnt vmcnt(18)')
        readout(3)

    def kv_offsets(self, w, add):
        c = self
        T = c.S_T + 2
        return ['s_add_u32 %s, %s, %d' % (s(T), s(c.S_STEP), add),
                's_lshl_b32 %s, %s, 5' % (s(T), s(T)),
                's_add_u32 %s, %s, %s' % (s(T), s(T), s(c.S_H)),
                's_lshl_b32 %s, %s, 13' % (s(T), s(T)),
                's_lshl_b32 %s, %s, %d' % (s(T + 1), s(c.S_C), 10 if w == 2 else 11),
                's_add_u32 %s, %s, %s' % (s(T), s(T), s(T + 1)),
                's_add_u32 %s, %s, 0x%x' % (s(c.S_KV), s(T), KX if w == 2 else VT)]

    def kv_reduce(self, w):
        A, c = self.A, self
        R = c.V_RD
        ACC = c.V_ACC

        def reads(f, base):
            pcs = (f * 4, f * 4 + 1) if w == 2 else (2 + f, 6 + f)
            for ww in range(4):
                for q in range(2):
                    A('ds_read_b128 %s, %s offset:%d' % (v(base + ww * 8 + q * 4, 4), v(c.V_L16), c.L_P + ww * 8192 + pcs[q] * 1024))

        def sums(f, base, pend):
            for half in range(2):
                A('s_waitcnt lgkmcnt(%d)' % (pend + 4 - 4 * half))
                for r in range(0, 8, 2):
                    A('v_pk_add_f32 %s, %s, %s' % (v(base + half * 16 + r, 2), v(base + half * 16 + r, 2), v(base + half * 16 + 8 + r, 2)))
            for r in range(0, 8, 2):
                A('v_pk_add_f32 %s, %s, %s' % (v(base + r, 2), v(base + r, 2), v(base + 16 + r, 2)))
            d = c.V_R + 4 * f
            for q in range(4):
                A('v_cvt_pk_bf16_f32 %s, %s, %s' % (v(d + q), v(base + 2 * q), v(base + 2 * q + 1)))
            A('buffer_store_dwordx4 %s, %s, %s, %s offen sc1' % (v(d, 4), v(c.V_SCL if (w == 2 and f) else c.V_L16), s(c.S_WS, 4), s(c.S_KV))
              if w == 2 else
              'buffer_store_dwordx4 %s, %s, %s, %s offen offset:%d sc1' % (v(d, 4), v(c.V_L16), s(c.S_WS, 4), s(c.S_KV), f * 1024))
        reads(0, R)
        reads(1, ACC)
        sums(0, R, 8)
        sums(1, ACC, 0)
        for f in range(2):
            A('ds_write_b128 %s, %s offset:%d' % (v(c.V_L16), v(c.V_R + 4 * f, 4), c.L_KV + ((w - 2) * 2 + f) * 1024))

    def publish_mem0(self):
        A, c = self.A, self
        T = c.S_T
        A('s_load_dwordx2 %s, s[0:1], %d' % (s(c.S_M, 2), K_MEM0))
        A('s_waitcnt lgkmcnt(0)')
        srd(A, c.S_W, c.S_M, 16384)
        A('v_and_b32 %s, 7, %s' % (v(c.V_T), v(c.V_L)))
        A('v_lshlrev_b32 %s, 11, %s' % (v(c.V_T), v(c.V_T)))
        A('v_lshrrev_b32 %s, 3, %s' % (v(c.V_T + 1), v(c.V_L)))
        A('v_lshl_add_u32 %s, %s, 3, %s' % (v(c.V_T), v(c.V_T + 1), v(c.V_T)))
        A('s_lshl_b32 %s, %s, 6' % (s(T), s(c.S_J)))
        A('buffer_load_dwordx2 %s, %s, %s, %s offen' % (v(c.V_T + 2, 2), v(c.V_T), s(c.S_W, 4), s(T)))
        A('s_waitcnt vmcnt(0)')
        A('v_min_u32 %s, -2, %s' % (v(c.V_T + 2), v(c.V_T + 2)))
        A('v_min_u32 %s, -2, %s' % (v(c.V_T + 3), v(c.V_T + 3)))

    def publish_mem0_store(self):
        A, c = self.A, self
        A('buffer_store_dwordx2 %s, %s, %s, %s offen %s' % (v(c.V_T + 2, 2), v(c.V_MST), s(c.S_WS, 4), s(c.S_MB), c.im))

    def km_store(self):
        c = self
        t = c.V_T + 4
        out = ['v_min_u32 %s, -2, %s' % (v(t + q), v(c.V_F + q)) for q in range(4)]
        out += ['s_mov_b64 exec, %s' % s(c.S_MP1, 2),
                'buffer_store_dwordx4 %s, %s, %s, %s offen sc1' % (v(t, 4), v(c.V_KM), s(c.S_WS, 4), s(c.S_KMVM)),
                's_mov_b64 exec, -1']
        return out

    def vm_store(self):
        c = self
        return ['buffer_store_dword %s, %s, %s, %s offen sc1' % (v(c.V_VMF), v(c.V_VM), s(c.S_WS, 4), s(c.S_KMVM)),
                'buffer_store_dword %s, %s, %s, %s offen offset:256 sc1' % (v(c.V_VMF + 1), v(c.V_VM), s(c.S_WS, 4), s(c.S_KMVM))]

    def prologue2(self, start_wait, L_exit, L_done):
        A, c = self.A, self
        P0 = 64 - c.p['na'] - c.p['nb']
        A('s_barrier')
        for t in c.pwrites(0) + c.pwrites(1):
            A(t)
        A('v_mov_b32 %s, 0' % v(c.V_T))
        A('v_mov_b32 %s, 0' % v(c.V_T + 1))
        A('ds_write_b64 %s, %s' % (v(c.V_Z), v(c.V_T, 2)))
        A('s_waitcnt vmcnt(0) lgkmcnt(0)')
        A('s_barrier')
        L = [A.new_label('cw%d%s' % (w, c.tag)) for w in range(4)]
        for w in range(1, 4):
            A('s_cmp_eq_u32 %s, %d' % (s(c.S_WAVE), w))
            A('s_cbranch_scc1 %s' % L[w])
        for w in range(4):
            A.label(L[w])
            A('s_mov_b32 %s, 0' % s(c.S_STEP))
            if w >= 2:
                for t in c.kv_offsets(w, 0):
                    A(t)
                c.kv_reduce(w)
            if w == 1:
                c.publish_mem0()
            if w == 0:
                for k in range(4):
                    A('v_mov_b32 %s, 0x3f803f80' % v(c.V_ONE + k))
            c.P(0, P0)
            A('s_waitcnt lgkmcnt(0)')
            A('s_barrier')
            for t in c.pwrites(0):
                A(t)
            if w == 1:
                start_wait(L_exit)
                c.publish_mem0_store()
            A('s_mov_b32 %s, %s' % (s(c.S_MEMOFF), s(c.S_MB)))
            A('s_mov_b32 %s, 3' % s(c.S_VT))
            A('s_barrier')
            c.step_loop(w, L_exit, L_done)

    def step_loop(self, w, L_exit, L_done):
        A, c = self.A, self
        p = c.p
        ws = s(c.S_WS, 4)
        T = c.S_T
        tg = '%d%s' % (w, c.tag)
        na, nb, nd, ne = p['na'], p['nb'], p['nd'], p['ne']
        P0 = 64 - na - nb
        nc = 0 if w == 0 else 32 - nd - ne
        L_loop, L_qk, L_rm, L_wo, L_ro, L_last = [A.new_label(n + tg) for n in ('step', 'qk', 'rm', 'wo', 'ro', 'last')]
        tails = []
        A.label(L_loop)
        c.stamp(0)
        c.lstamp(w, 0)
        c.P(P0, P0 + na)
        if p.get('gs'):
            A('s_sleep %d' % p['gs'])
        gl = c.gather_loads(c.S_MEMOFF)
        for t in gl:
            A(t)
        misc = c.xoffs(2) + c.slot(c.S_OOFF, c.S_OBB, 14, 0)
        if w == 0:
            misc = ['ds_read_b128 %s, %s offset:%d' % (v(c.V_KXF + 4 * f, 4), v(c.V_L16), c.L_KV + f * 1024) for f in range(4)] + misc
            misc += c.slot(c.S_SCOFF, c.S_SCBB, 13, 0)
        if w <= 1:
            misc += ['s_lshl_b32 %s, %s, 16' % (s(c.S_KMVM), s(c.S_STEP)),
                     's_add_u32 %s, %s, 0x%x' % (s(c.S_KMVM), s(c.S_KMVM), KM if w == 0 else VM)]
        if w >= 2:
            misc += c.kv_offsets(w, 1)
        fill = {}
        for k, t in enumerate(misc):
            fill.setdefault(min(k // 3, max(nb - 1, 0)), []).append(t)
        if nb:
            c.P(P0 + na, 64, fill)
        else:
            for t in misc:
                A(t)
        c.stamp(1)
        A.label(L_qk)
        mchk = [c.check(k, c.V_M + 4 * k, True) for k in range(4)]
        xl = c.xloads(0)
        b0, b1 = c.V_ACC, c.V_ACC + 16
        R = c.V_R

        def comb(b, dst, r, hi):
            if hi:
                return 'v_add_f32_dpp %s, %s, %s row_ror:8 row_mask:0xf bank_mask:0xc' % (v(dst + r), v(b + 8 + r), v(b + 12 + r))
            return 'v_add_f32_dpp %s, %s, %s row_ror:8 row_mask:0xf bank_mask:0x3' % (v(dst + r), v(b + 4 + r), v(b + r))
        for k in range(4):
            A('s_waitcnt vmcnt(%d)' % (3 - k))
            q = 0
            for tau in range(2):
                for which, m, par in ((0, 0, 0), (1, 0, 1), (2, 1, 0), (3, 1, 1)):
                    acc = c.V_ACC + tau * 16 + which * 4
                    A(MF % (v(acc, 4), a(((2 * k + par) * 6 + m * 2 + tau) * 4, 4), v(c.V_M + 4 * k, 4), v(acc, 4) if k else '0'))
                    if q == 0:
                        for t in mchk[k]:
                            A(t)
                    if k == 0 and q >= 4:
                        A(c.pwrites(1)[q - 4])
                    if k == 3:
                        if q == 1:
                            c.or_masks(4)
                            A('s_cbranch_scc1 %s' % L_rm)
                        if q >= 2:
                            for t in xl[(q - 2) * 2:(q - 2) * 2 + 2] if q < 5 else []:
                                A(t)
                        if q == 5:
                            for r in range(4):
                                A(comb(b0, R, r, 0))
                        if q == 6:
                            for r in range(4):
                                A(comb(b0, R, r, 1))
                    q += 1
        tails.append(lambda: c.retry(L_rm, gl, mchk, L_qk, L_exit, 0))
        if w:
            A('ds_write_b128 %s, %s offset:%d' % (v(c.V_LW), v(R, 4), c.L_QK))
        for t in xl[6:8]:
            A(t)
        for r in range(4):
            A(comb(b1, R + 4, r, 0))
        for r in range(4):
            A(comb(b1, R + 4, r, 1))
        if w:
            A('ds_write_b128 %s, %s offset:%d' % (v(c.V_LW), v(R + 4, 4), c.L_QK + 4096))
        A('s_waitcnt lgkmcnt(0)')
        c.stamp(2)
        A('s_barrier')
        c.lstamp(w, 1)
        S = c.V_ACC + 16
        if w == 0:
            for ww in range(1, 4):
                for tau in range(2):
                    A('ds_read_b128 %s, %s offset:%d' % (v(c.V_RD + (ww - 1) * 8 + tau * 4, 4), v(c.V_L16), c.L_QK + tau * 4096 + ww * 1024))
            for ww in range(1, 4):
                A('s_waitcnt lgkmcnt(%d)' % (6 - 2 * ww))
                for r in range(0, 8, 2):
                    A('v_pk_add_f32 %s, %s, %s' % (v(R + r, 2), v(R + r, 2), v(c.V_RD + (ww - 1) * 8 + r, 2)))
            for q in range(4):
                A('v_cvt_pk_bf16_f32 %s, %s, %s' % (v(c.V_F + q), v(R + 2 * q), v(R + 2 * q + 1)))
            A('s_cmp_eq_u32 %s, %d' % (s(c.S_STEP), c.nsteps - 1))
            A('s_cbranch_scc1 %s' % L_last)
            A(MF % (v(S + 8, 4), v(c.V_F, 4), v(c.V_F, 4), '0'))
            A(MF % (v(S + 4, 4), v(c.V_KXF + 4, 4), v(c.V_F, 4), '0'))
            A(MF % (v(S, 4), v(c.V_KXF, 4), v(c.V_F, 4), '0'))
            A('s_mov_b64 exec, %s' % s(c.S_MSM, 2))
            for r in range(4):
                A('buffer_store_dword %s, %s, %s, %s offen offset:%d %s' % (v(S + 8 + r), v(c.V_SCM), ws, s(c.S_SCOFF), r * 128, c.im))
            A('s_mov_b64 exec, -1')
            for r in range(4):
                A('v_mov_b32_dpp %s, %s row_ror:8 row_mask:0xf bank_mask:0xc' % (v(S + r), v(S + 4 + r)))
            A('buffer_store_dwordx4 %s, %s, %s, %s offen %s' % (v(S, 4), v(c.V_SC), ws, s(c.S_SCOFF), c.im))
            c.stamp(3)

        def sc_loads(base):
            return ['buffer_load_dwordx4 %s, %s, %s, %s offen sc1' % (v(base + 4 * k, 4), v(c.V_SC + 1 + k if k < 3 else c.V_SCL), ws, s(c.S_SCOFF))
                    for k in range(4)]

        def sc_checks(base):
            out = [['v_cmp_eq_u32 %s, -1, %s' % (s(c.S_M + 2 * k, 2), v(base + 4 * k))] for k in range(3)]
            out.append(['v_max3_u32 %s, %s, %s, %s' % (v(c.V_T), v(base + 12), v(base + 13), v(base + 14)),
                        'v_max_u32 %s, %s, %s' % (v(c.V_T), v(c.V_T), v(base + 15)),
                        'v_cmp_eq_u32 %s, -1, %s' % (s(c.S_M + 6, 2), v(c.V_T))])
            return out

        def v_part(fill):
            q = 0
            for k in range(4):
                for tau in range(2):
                    for par in range(2):
                        acc = c.V_ACC + tau * 8 + par * 4
                        A(MF % (v(acc, 4), v(c.V_M + 4 * k, 4), a(((2 * k + par) * 6 + 4 + tau) * 4, 4), v(acc, 4) if k else '0'))
                        for t in fill.get(q, []):
                            A(t)
                        q += 1
            b = c.V_ACC
            for r in range(4):
                A('v_permlane32_swap_b32 %s, %s' % (v(b + r), v(b + 8 + r)))
            for r in range(4):
                A('v_permlane32_swap_b32 %s, %s' % (v(b + 4 + r), v(b + 12 + r)))
            for r in range(0, 4, 2):
                A('v_pk_add_f32 %s, %s, %s' % (v(R + r, 2), v(b + r, 2), v(b + 12 + r, 2)))
            A('ds_write_b128 %s, %s offset:%d' % (v(c.V_LW), v(R, 4), c.L_V))
            if w != 1:
                A('s_mov_b64 exec, 1')
                A('ds_add_u32 %s, %s' % (v(c.V_Z), v(c.V_C1)))
                A('s_mov_b64 exec, -1')

        SA, SB = c.V_RD, c.V_RD + 16
        if w == 0:
            v_part({p['sa']: sc_loads(SA)})
            for t in sc_loads(SB):
                A(t)
            c.stamp(4)
            L_b, L_j, L_rs, L_a = [A.new_label(n + tg) for n in ('scb', 'scj', 'scr', 'sca')]
            X = c.V_ACC

            def sc_sum(base):
                for r in range(0, 4, 2):
                    A('v_pk_add_f32 %s, %s, %s' % (v(X + r, 2), v(S + r, 2), v(base + r, 2)))
                    A('v_pk_add_f32 %s, %s, %s' % (v(base + 4 + r, 2), v(base + 4 + r, 2), v(base + 8 + r, 2)))
                A('v_pk_add_f32 %s, %s, %s' % (v(base + 12, 2), v(base + 12, 2), v(base + 14, 2)))
                for r in range(0, 4, 2):
                    A('v_pk_add_f32 %s, %s, %s' % (v(X + r, 2), v(X + r, 2), v(base + 4 + r, 2)))
                A('v_add_f32 %s, %s, %s' % (v(X + 4), v(base + 12), v(base + 13)))
            A('s_waitcnt vmcnt(4)')
            for ch in sc_checks(SA):
                for t in ch:
                    A(t)
            c.or_masks(4)
            A('s_cbranch_scc1 %s' % L_b)
            A.label(L_a)
            sc_sum(SA)
            A.label(L_j)

            def tail_b():
                A.label(L_b)
                if c.diag:
                    A('s_add_u32 %s, %s, 0x10000' % (s(c.S_RC + 1), s(c.S_RC + 1)))
                A('s_waitcnt vmcnt(0)')
                for ch in sc_checks(SB):
                    for t in ch:
                        A(t)
                c.or_masks(4)
                A('s_cbranch_scc1 %s' % L_rs)
                L_b2 = A.new_label('scb2' + tg)
                A.label(L_b2)
                sc_sum(SB)
                A('s_branch %s' % L_j)
                c.retry(L_rs, sc_loads(SB), sc_checks(SB), L_b2, L_exit, 1)
            tails.append(tail_b)
            c.stamp(5)
            m, t = c.V_T, c.V_T + 1
            PP = R + 4
            fl = c.V_T + 2
            L_vm, L_vr = A.new_label('vm' + tg), A.new_label('vr' + tg)
            A('ds_read_b32 %s, %s offset:4' % (v(fl), v(c.V_Z)))
            A('ds_read_b32 %s, %s' % (v(c.V_VMF), v(c.V_L8)))
            A('ds_read_b32 %s, %s offset:4' % (v(c.V_VMF + 4), v(c.V_L8)))
            A('v_max3_f32 %s, %s, %s, %s' % (v(m), v(X), v(X + 1), v(X + 2)))
            A('v_max3_f32 %s, %s, %s, %s' % (v(m), v(m), v(X + 3), v(X + 4)))
            A('v_max_f32_dpp %s, %s, %s row_ror:8 row_mask:0xf bank_mask:0xf' % (v(m), v(m), v(m)))
            A('v_mov_b32 %s, %s' % (v(t), v(m)))
            A('v_permlane16_swap_b32 %s, %s' % (v(m), v(t)))
            A('v_max_f32 %s, %s, %s' % (v(m), v(m), v(t)))
            A('v_mov_b32 %s, %s' % (v(t), v(m)))
            A('v_permlane32_swap_b32 %s, %s' % (v(m), v(t)))
            A('v_max_f32 %s, %s, %s' % (v(m), v(m), v(t)))
            A('v_mul_f32 %s, %s, %s' % (v(m), s(c.S_CSC), v(m)))
            for r in range(5):
                A('v_fma_f32 %s, %s, %s, -%s' % (v(X + r), v(X + r), s(c.S_CSC), v(m)))
            for r in range(5):
                A('v_exp_f32 %s, %s' % (v(X + r), v(X + r)))
            A('v_cvt_pk_bf16_f32 %s, %s, %s' % (v(PP), v(X), v(X + 1)))
            A('v_cvt_pk_bf16_f32 %s, %s, %s' % (v(PP + 1), v(X + 2), v(X + 3)))
            A('v_mov_b32_dpp %s, %s row_ror:8 row_mask:0xf bank_mask:0xf' % (v(t), v(X + 4)))
            A('v_mov_b32_dpp %s, %s row_ror:8 row_mask:0xf bank_mask:0xf' % (v(PP + 2), v(PP)))
            A('v_mov_b32_dpp %s, %s row_ror:8 row_mask:0xf bank_mask:0xf' % (v(PP + 3), v(PP + 1)))
            A('v_cvt_pk_bf16_f32 %s, %s, %s' % (v(c.V_PM), v(X + 4), v(t)))
            A('s_waitcnt lgkmcnt(0)')
            A('v_cmp_ne_u32 vcc, %s, %s' % (s(c.S_VT), v(fl)))
            O = S
            A(MF % (v(O + 8, 4), v(c.V_ONE, 4), v(PP, 4), '0'))
            A(MF % (v(O, 4), v(c.V_VTF, 4), v(PP, 4), '0'))
            A(MF % (v(O + 4, 4), v(c.V_VTF + 4, 4), v(PP, 4), '0'))
            A('s_cbranch_vccnz %s' % L_vr)
            A.label(L_vm)
            A(MF % (v(O + 8, 4), v(c.V_ONE, 4), v(c.V_PM, 4), v(O + 8, 4)))
            A(MF % (v(O, 4), v(c.V_VMF, 4), v(c.V_PM, 4), v(O, 4)))
            A(MF % (v(O + 4, 4), v(c.V_VMF + 4, 4), v(c.V_PM, 4), v(O + 4, 4)))

            def tail_vr():
                A.label(L_vr)
                A('s_mov_b32 %s, 0' % s(c.S_CNT))
                Lr = A.new_label('vrl' + tg)
                A.label(Lr)
                A('ds_read_b32 %s, %s offset:4' % (v(fl), v(c.V_Z)))
                A('ds_read_b32 %s, %s' % (v(c.V_VMF), v(c.V_L8)))
                A('ds_read_b32 %s, %s offset:4' % (v(c.V_VMF + 4), v(c.V_L8)))
                A('s_add_u32 %s, %s, 1' % (s(c.S_CNT), s(c.S_CNT)))
                if c.diag:
                    A('s_add_u32 %s, %s, 0x10000' % (s(c.S_RC + 2), s(c.S_RC + 2)))
                A('s_cmp_ge_u32 %s, 0x%x' % (s(c.S_CNT), POLL_MAX * 4))
                A('s_cbranch_scc1 %s' % L_exit)
                A('s_waitcnt lgkmcnt(0)')
                A('v_cmp_ne_u32 vcc, %s, %s' % (s(c.S_VT), v(fl)))
                A('s_cbranch_vccnz %s' % Lr)
                A('s_branch %s' % L_vm)
            tails.append(tail_vr)
            A('v_rcp_f32 %s, %s' % (v(t), v(O + 8)))
            for r in range(8):
                A('v_mul_f32 %s, %s, %s' % (v(O + r), v(O + r), v(t)))
            for q in range(4):
                A('v_cvt_pk_bf16_f32 %s, %s, %s' % (v(R + q), v(O + 2 * q), v(O + 2 * q + 1)))
            A('v_min_u32 %s, -2, %s' % (v(R), v(R)))
            A('s_mov_b64 exec, %s' % s(c.S_MP0, 2))
            A('buffer_store_dwordx4 %s, %s, %s, %s offen %s' % (v(R, 4), v(c.V_OST), ws, s(c.S_OOFF), c.im))
            A('s_mov_b64 exec, -1')
            c.stamp(6)
        else:
            v_part({})
            c.stamp(3)
            if w >= 2:
                A('s_cmp_eq_u32 %s, %d' % (s(c.S_STEP), c.nsteps - 1))
                A('s_cbranch_scc1 %s' % L_done)
                A('s_waitcnt lgkmcnt(0)')
                c.kv_reduce(w)
                A('s_waitcnt vmcnt(2)')
            else:
                A('s_waitcnt vmcnt(0)')
            c.stamp(4)
            c.P(0, nc)
            if w == 1:
                Lv = A.new_label('vc' + tg)
                A('s_mov_b32 %s, 0' % s(c.S_CNT))
                A.label(Lv)
                A('ds_read_b32 %s, %s' % (v(c.V_T), v(c.V_Z)))
                A('s_add_u32 %s, %s, 1' % (s(c.S_CNT), s(c.S_CNT)))
                A('s_cmp_ge_u32 %s, 0x%x' % (s(c.S_CNT), POLL_MAX * 4))
                A('s_cbranch_scc1 %s' % L_exit)
                A('s_waitcnt lgkmcnt(0)')
                A('v_cmp_ne_u32 vcc, %s, %s' % (s(c.S_VT), v(c.V_T)))
                A('s_cbranch_vccnz %s' % Lv)
                D = c.V_RD
                for ww in range(4):
                    A('ds_read2_b64 %s, %s offset0:%d offset1:%d' % (v(D + 4 * ww, 4), v(c.V_VRD if ww < 2 else c.V_VRD2), (ww & 1) * 128, (ww & 1) * 128 + 64))
                A('s_waitcnt lgkmcnt(2)')
                for r in range(0, 4, 2):
                    A('v_pk_add_f32 %s, %s, %s' % (v(D + r, 2), v(D + r, 2), v(D + 4 + r, 2)))
                A('s_waitcnt lgkmcnt(0)')
                for r in range(0, 4, 2):
                    A('v_pk_add_f32 %s, %s, %s' % (v(D + 8 + r, 2), v(D + 8 + r, 2), v(D + 12 + r, 2)))
                for r in range(0, 4, 2):
                    A('v_pk_add_f32 %s, %s, %s' % (v(D + r, 2), v(D + r, 2), v(D + 8 + r, 2)))
                A('v_cvt_pk_bf16_f32 %s, %s, %s' % (v(c.V_VMF), v(D), v(D + 1)))
                A('v_cvt_pk_bf16_f32 %s, %s, %s' % (v(c.V_VMF + 1), v(D + 2), v(D + 3)))
                A('v_mov_b32 %s, %s' % (v(c.V_T), s(c.S_VT)))
                A('ds_write_b64 %s, %s' % (v(c.V_L8), v(c.V_VMF, 2)))
                A('ds_write_b32 %s, %s offset:4' % (v(c.V_Z), v(c.V_T)))
                A('v_min_u32 %s, -2, %s' % (v(c.V_VMF), v(c.V_VMF)))
                A('v_min_u32 %s, -2, %s' % (v(c.V_VMF + 1), v(c.V_VMF + 1)))
                A('s_cmp_eq_u32 %s, %d' % (s(c.S_STEP), c.nsteps - 1))
                A('s_cbranch_scc1 %s' % L_last)
            c.stamp(5)
            for t in c.xloads(1):
                A(t)
            if c.diag is True or w == 3:
                c.dump()
            A('s_waitcnt lgkmcnt(0)')
            c.stamp(6)
        A('s_barrier')
        c.lstamp(w, 6)
        c.P(nc, nc + nd)
        if p.get('os'):
            A('s_sleep %d' % p['os'])
        ol = c.gather_loads(c.S_OOFF)
        for t in ol:
            A(t)
        misc = c.slot(c.S_NMEM, c.S_MB, 14, 1)
        if w == 2:
            misc += c.slot(c.S_WOFF, c.S_WBB, 12, 0)
        if w == 3:
            misc += c.slot(c.S_PMEM, c.S_MB, 14, 3) + c.slot(c.S_PO, c.S_OBB, 14, 2) + c.slot(c.S_PW, c.S_WBB, 12, 2) + c.slot(c.S_PSC, c.S_SCBB, 13, 2)
            misc += ['s_add_u32 %s, %s, 4' % (s(c.S_TCH), s(c.S_STEP)), 's_min_u32 %s, %s, 63' % (s(c.S_TCH), s(c.S_TCH)),
                     's_lshl_b32 %s, %s, 16' % (s(c.S_TCH), s(c.S_TCH)),
                     's_add_u32 %s, %s, 0x%x' % (s(c.S_TCH), s(c.S_TCH), XI)]
        misc += ['s_add_u32 %s, %s, 3' % (s(c.S_VT), s(c.S_VT))]
        fill = {}
        for k, t in enumerate(misc):
            fill.setdefault(min(k // 3, max(ne - 1, 0)), []).append(t)
        if ne:
            c.P(nc + nd, nc + nd + ne, fill)
        else:
            for t in misc:
                A(t)
        pf = nc + nd + ne
        c.stamp(7)
        A.label(L_wo)
        ochk = [c.check(k, c.V_M + 4 * k, False) for k in range(4)]
        b = c.V_ACC
        for k in range(4):
            A('s_waitcnt vmcnt(%d)' % (3 - k))
            q = 0
            for tau in range(2):
                for par in range(2):
                    acc = c.V_ACC + tau * 8 + par * 4
                    A(MF % (v(acc, 4), a(192 + ((2 * k + par) * 2 + tau) * 4, 4), v(c.V_M + 4 * k, 4), v(acc, 4) if k else '0'))
                    if q == 0:
                        for t in ochk[k]:
                            A(t)
                    if w and k in (1, 2) and q >= 2:
                        A(c.pwrites(0)[(k - 1) * 2 + q - 2])
                    if k == 3 and q == 1:
                        c.or_masks(4)
                        A('s_cbranch_scc1 %s' % L_ro)
                    if k == 3 and q >= 2 and w == 0:
                        for t in c.xloads(1)[(q - 2) * 4:(q - 2) * 4 + 4]:
                            A(t)
                    q += 1
        tails.append(lambda: c.retry(L_ro, ol, ochk, L_wo, L_exit, 2))
        for r in range(4):
            A(comb(b, R, r, 0))
        for r in range(4):
            A(comb(b, R, r, 1))
        if w != 2:
            A('ds_write_b128 %s, %s offset:%d' % (v(c.V_LW), v(R, 4), c.L_WO))
        A('s_waitcnt lgkmcnt(0)')
        c.stamp(8)
        A('s_barrier')
        c.lstamp(w, 7)
        if w == 2:
            D = c.V_RD
            for q, ww in enumerate((0, 1, 3)):
                A('ds_read_b128 %s, %s offset:%d' % (v(D + 4 * q, 4), v(c.V_L16), c.L_WO + ww * 1024))
            A('s_waitcnt lgkmcnt(1)')
            for r in range(0, 4, 2):
                A('v_pk_add_f32 %s, %s, %s' % (v(R + r, 2), v(R + r, 2), v(D + r, 2)))
            A('s_waitcnt lgkmcnt(0)')
            for r in range(0, 4, 2):
                A('v_pk_add_f32 %s, %s, %s' % (v(D + 4 + r, 2), v(D + 4 + r, 2), v(D + 8 + r, 2)))
            for r in range(0, 4, 2):
                A('v_pk_add_f32 %s, %s, %s' % (v(R + r, 2), v(R + r, 2), v(D + 4 + r, 2)))
            A('buffer_store_dwordx4 %s, %s, %s, %s offen sc1' % (v(R, 4), v(c.V_WA), ws, s(c.S_WOFF)))
            sets = [c.V_ACC, c.V_ACC + 12, c.V_RD + 16]

            def w_loads(base):
                return ['buffer_load_dwordx4 %s, %s, %s, %s offen sc1' % (v(base + 4 * k, 4), v(c.V_WA + 1 + k), ws, s(c.S_WOFF)) for k in range(3)]

            def w_checks(base):
                return [['v_cmp_eq_u32 %s, -1, %s' % (s(c.S_M + 2 * k, 2), v(base + 4 * k))] for k in range(3)]

            def w_sum(base):
                for r in range(0, 4, 2):
                    A('v_pk_add_f32 %s, %s, %s' % (v(R + r, 2), v(R + r, 2), v(base + r, 2)))
                    A('v_pk_add_f32 %s, %s, %s' % (v(base + 4 + r, 2), v(base + 4 + r, 2), v(base + 8 + r, 2)))
                for r in range(0, 4, 2):
                    A('v_pk_add_f32 %s, %s, %s' % (v(R + r, 2), v(R + r, 2), v(base + 4 + r, 2)))
            c.stamp(9)
            n0, n1 = p.get('nw0', 0), p['nw1']
            c.P(pf, pf + n0)
            if p.get('ws0'):
                A('s_sleep %d' % p['ws0'])
            for t in w_loads(sets[0]):
                A(t)
            c.P(pf + n0, pf + n0 + n1)
            if p.get('ws1'):
                A('s_sleep %d' % p['ws1'])
            for t in w_loads(sets[1]):
                A(t)
            c.P(pf + n0 + n1, P0)
            if p.get('ws1'):
                A('s_sleep %d' % p['ws1'])
            for t in w_loads(sets[2]):
                A(t)
            Lw = [A.new_label('w%d%s' % (k, tg)) for k in range(5)]
            A('s_waitcnt vmcnt(6)')
            for ch in w_checks(sets[0]):
                A(ch[0])
            c.or_masks(3)
            A('s_cbranch_scc1 %s' % Lw[1])
            w_sum(sets[0])
            A.label(Lw[0])

            def tail_w():
                for k in (1, 2):
                    A.label(Lw[k])
                    if c.diag:
                        A('s_add_u32 %s, %s, 0x10000' % (s(c.S_RC + 3), s(c.S_RC + 3)))
                    A('s_waitcnt vmcnt(%d)' % (6 - 3 * k))
                    for ch in w_checks(sets[k]):
                        A(ch[0])
                    c.or_masks(3)
                    A('s_cbranch_scc1 %s' % Lw[k + 1])
                    if k == 2:
                        A.label(Lw[4])
                    w_sum(sets[k])
                    A('s_branch %s' % Lw[0])
                c.retry(Lw[3], w_loads(sets[2]), w_checks(sets[2]), Lw[4], L_exit, 3)
            tails.append(tail_w)
            A('v_cvt_pk_bf16_f32 %s, %s, %s' % (v(R), v(R), v(R + 1)))
            A('v_cvt_pk_bf16_f32 %s, %s, %s' % (v(R + 1), v(R + 2), v(R + 3)))
            A('v_min_u32 %s, -2, %s' % (v(R), v(R)))
            A('buffer_store_dwordx2 %s, %s, %s, %s offen %s' % (v(R, 2), v(c.V_MST), ws, s(c.S_NMEM), c.im))
            c.stamp(10)
        else:
            pre = c.km_store() if w == 0 else c.vm_store() if w == 1 else c.poison_list()
            if w == 3 and p['touch']:
                pre = pre + ['s_mov_b64 exec, 0xffff',
                             'buffer_load_dword %s, %s, %s, %s offen' % (v(c.V_T + 7), v(c.V_TCH), s(c.S_WS, 4), s(c.S_TCH)),
                             's_mov_b64 exec, -1']
            for t in pre:
                A(t)
            fill = {}
            if w == 0:
                fill[32 - pf - 1] = ['s_waitcnt vmcnt(1)']
                for q, t in enumerate(c.pwrites(0)):
                    fill[32 - pf + 2 + q] = [t]
            c.P(pf, P0, fill)
            c.stamp(9)
            if w == 0 and c.diag is True:
                c.dump()
            c.stamp(10)
        A('s_mov_b32 %s, %s' % (s(c.S_MEMOFF), s(c.S_NMEM)))
        A('s_add_u32 %s, %s, 1' % (s(c.S_STEP), s(c.S_STEP)))
        A('s_barrier')
        A('s_branch %s' % L_loop)
        if w <= 1:
            A.label(L_last)
            if w == 0:
                for t in c.km_store():
                    A(t)
                v_part({})
            else:
                for t in c.vm_store():
                    A(t)
            A('s_branch %s' % L_done)
        for t in tails:
            t()


def x_image(A, s_tile, s_wave, S_WS, S_X, T, VT, lds_base=0, S_GW=None):
    vd, vr, vl, t0, D = VT, VT + 4, VT + 6, VT + 7, VT + 12
    GW, GA = VT + 44, VT + 76
    if S_GW:
        A('v_and_b32 %s, 0x30, v1' % v(t0))
        A('s_lshl_b32 %s, %s, 9' % (s(T), s(s_wave)))
        for t in range(8):
            A('buffer_load_dwordx4 %s, %s, %s, %s offen offset:%d' % (v(GW + 4 * t, 4), v(t0), s(S_GW, 4), s(T), t * 64))
    A('v_lshrrev_b32 %s, 5, v1' % v(t0))
    A('v_and_b32 %s, 31, v1' % v(t0 + 1))
    A('v_xor_b32 %s, %s, %s' % (v(t0 + 1), v(t0 + 1), v(t0)))
    A('v_lshlrev_b32 %s, 11, %s' % (v(t0), v(t0)))
    A('s_lshl_b32 %s, %s, 15' % (s(T), s(s_tile)))
    A('s_lshl_b32 %s, %s, 9' % (s(T + 1), s(s_wave)))
    A('s_add_u32 %s, %s, %s' % (s(T), s(T), s(T + 1)))
    A('v_add_u32 %s, %s, %s' % (v(t0), s(T), v(t0)))
    for q in range(4):
        A('v_xor_b32 %s, %d, %s' % (v(vd + q), 2 * q, v(t0 + 1)))
        A('v_lshl_add_u32 %s, %s, 4, %s' % (v(vd + q), v(vd + q), v(t0)))
    A('s_lshl_b32 %s, %s, 13' % (s(T + 1), s(s_wave)))
    A('s_add_u32 %s, %s, 0x%x' % (s(T + 1), s(T + 1), lds_base))
    for q in range(8):
        A('s_add_u32 m0, %s, 0x%x' % (s(T + 1), q * 1024))
        A('s_mov_b32 %s, 0x%x' % (s(T + 2), q * 4096))
        A('buffer_load_dwordx4 %s, %s, %s offen lds' % (v(vd + (q & 3)), s(S_X, 4), s(T + 2)))
    A('v_lshrrev_b32 %s, 4, v1' % v(t0))
    A('v_and_b32 %s, 7, v1' % v(t0 + 1))
    A('v_xor_b32 %s, %s, %s' % (v(t0), v(t0), v(t0 + 1)))
    A('v_and_b32 %s, 15, v1' % v(t0 + 1))
    A('v_lshlrev_b32 %s, 9, %s' % (v(t0 + 1), v(t0 + 1)))
    A('v_add_u32 %s, %s, %s' % (v(t0 + 1), s(T + 1), v(t0 + 1)))
    A('v_lshl_add_u32 %s, %s, 4, %s' % (v(vr), v(t0), v(t0 + 1)))
    A('v_xor_b32 %s, 64, %s' % (v(vr + 1), v(vr)))
    A('v_lshlrev_b32 %s, 4, v1' % v(vl))
    A('s_lshr_b32 %s, %s, 1' % (s(T), s(s_tile)))
    A('s_lshl_b32 %s, %s, 16' % (s(T), s(T)))
    A('s_and_b32 %s, %s, 1' % (s(T + 2), s(s_tile)))
    A('s_lshl_b32 %s, %s, 13' % (s(T + 2), s(T + 2)))
    A('s_add_u32 %s, %s, %s' % (s(T), s(T), s(T + 2)))
    A('s_lshl_b32 %s, %s, 14' % (s(T + 2), s(s_wave)))
    A('s_add_u32 %s, %s, %s' % (s(T), s(T), s(T + 2)))
    A('s_add_u32 %s, %s, 0x%x' % (s(T), s(T), XI))
    A('s_add_u32 %s, %s, 0x1000' % (s(T + 2), s(T)))
    A('s_waitcnt vmcnt(0)')
    for t in range(8):
        A('ds_read_b128 %s, %s offset:%d' % (v(D + 4 * t, 4), v(vr + (t & 1)), (t >> 1) * 128))
    for t in range(8):
        A('s_waitcnt lgkmcnt(%d)' % (7 - t))
        A('buffer_store_dwordx4 %s, %s, %s, %s offen offset:%d sc1' % (v(D + 4 * t, 4), v(vl), s(S_WS, 4), s(T + 2 if t >= 4 else T), (t & 3) * 1024))
        if S_GW:
            A(MF % (v(GA, 4), v(GW + 4 * t, 4), v(D + 4 * t, 4), v(GA, 4) if t else '0'))
    if S_GW:
        Lg = A.new_label('xg')
        A('v_lshlrev_b32 %s, 2, v1' % v(t0))
        A('s_lshl_b32 %s, %s, 8' % (s(T), s(s_wave)))
        A('s_add_u32 %s, %s, 0x%x' % (s(T), s(T), lds_base + 32768))
        A('v_add_u32 %s, %s, %s' % (v(t0 + 1), s(T), v(t0)))
        A('ds_write_b32 %s, %s' % (v(t0 + 1), v(GA)))
        A('s_waitcnt lgkmcnt(0)')
        A('s_barrier')
        A('s_cmp_lg_u32 %s, 0' % s(s_wave))
        A('s_cbranch_scc1 %s' % Lg)
        for w in range(4):
            A('ds_read_b32 %s, %s offset:%d' % (v(GA + w), v(t0), lds_base + 32768 + w * 256))
        A('s_waitcnt lgkmcnt(0)')
        A('v_add_f32 %s, %s, %s' % (v(GA), v(GA), v(GA + 1)))
        A('v_add_f32 %s, %s, %s' % (v(GA + 2), v(GA + 2), v(GA + 3)))
        A('v_add_f32 %s, %s, %s' % (v(GA), v(GA), v(GA + 2)))
        A('v_mul_f32 %s, 0xbfb8aa3b, %s' % (v(GA), v(GA)))
        A('v_exp_f32 %s, %s' % (v(GA), v(GA)))
        A('v_add_f32 %s, 1.0, %s' % (v(GA), v(GA)))
        A('v_rcp_f32 %s, %s' % (v(GA), v(GA)))
        A('s_lshl_b32 %s, %s, 6' % (s(T), s(s_tile)))
        A('s_add_u32 %s, %s, 0x%x' % (s(T), s(T), GV))
        A('s_mov_b64 exec, 0xffff')
        A('buffer_store_dword %s, %s, %s, %s offen sc1' % (v(GA), v(t0), s(S_WS, 4), s(T)))
        A('s_mov_b64 exec, -1')
        A.label(Lg)
    A('s_waitcnt vmcnt(0)')
```

```python
from asm import *
from layout import *
from chain2 import Chain, srd, MF, POLL_MAX, x_image

MF16 = 'v_mfma_f32_16x16x16_bf16 %s, %s, %s, %s'
SM = 'v_smfmac_f32_16x16x64_bf16 %s, %s, %s, %s'


class Chain3(Chain):
    V_VMF = 148
    V_PM = 152
    V_IDX, V_QW, V_OW, V_QR, V_OR, V_QW2 = 154, 155, 156, 157, 158, 159
    A_QK, A_V, A_WO = 56, 72, 80
    V_WP = 112
    L_QK = 0
    L_V = 12544
    L_WO = 16640
    L_STAGE = 16384
    L_P = 23552
    L_KV = 56320
    L_VM = 60416
    L_FL = 60928

    def __init__(self, A, diag=False, nsteps=64, im='', prm=None, tag=''):
        Chain.__init__(self, A, diag, nsteps, im, None, tag)
        p = dict(nA=12, nC=12, touch=2, xl=1, pp=1, sa=3, sb=7, si=3, wi=3, wa=14, wb=17, gd=0, od=0, sel=0, kv=2, wj=1, gl=6, go=3, ack=0, fs=0,
                 xd=6, xs=2, pd=10, pf=1, xm=0)
        p.update(prm or {})
        self.p = p

    def st(self, w, who, k):
        if self.diag and w == who:
            self.A('s_memtime %s' % s(self.S_ST + 2 * k, 2))

    def sync_clock(self, dst):
        A, c = self.A, self
        T = c.S_T
        L = A.new_label('ck')
        A('s_memrealtime %s' % s(T, 2))
        A('s_waitcnt lgkmcnt(0)')
        A('s_mov_b32 %s, 0' % s(T + 6))
        A.label(L)
        A('s_memrealtime %s' % s(T + 2, 2))
        A('s_memtime %s' % s(T + 4, 2))
        A('s_waitcnt lgkmcnt(0)')
        A('s_add_u32 %s, %s, 1' % (s(T + 6), s(T + 6)))
        A('s_cmp_lt_u32 %s, 1000' % s(T + 6))
        A('s_cselect_b32 %s, %s, -1' % (s(T + 7), s(T + 2)))
        A('s_cmp_eq_u32 %s, %s' % (s(T + 7), s(T)))
        A('s_cbranch_scc1 %s' % L)
        A('s_mov_b32 %s, %s' % (s(dst), s(T + 4)))
        A('s_mov_b32 %s, %s' % (s(dst + 1), s(T + 2)))

    def pmf(self, idx):
        c = self
        tt, t, m = idx >> 5, (idx >> 2) & 7, idx & 3
        acc = v(c.V_PA + tt * 16 + m * 4, 4)
        xf = v(c.V_XF + tt * 32 + t * 4, 4)
        wf = a(((2 + m) * 8 + t) * 4, 4)
        cc = acc if t else '0'
        return MF % ((acc, wf, xf, cc) if m < 2 else (acc, xf, wf, cc))

    def sm(self, acc, k, areg):
        c = self
        return SM % (v(acc, 4), v(c.V_M + 4 * k, 4), a(areg, 8), v(c.V_IDX))

    def fill(self, reg, n, val):
        return ['v_mov_b32 %s, %s' % (v(reg + k), val) for k in range(n)]

    def zero(self, reg, n):
        return ['v_pk_mov_b32 %s, 0, 0' % v(reg + k, 2) for k in range(0, n, 2)] if 0 else self.fill(reg, n, '0')

    def chk(self, reg, dst, t):
        return ['v_max3_u32 %s, %s, %s, %s' % (v(t), v(reg), v(reg + 1), v(reg + 2)),
                'v_max_u32 %s, %s, %s' % (v(t), v(t), v(reg + 3)),
                'v_cmp_eq_u32 %s, -1, %s' % (dst, v(t))]

    def rounds(self, L_top, L_ok, L_exit, loads, regs, body, infl, rc, tails, tg):
        A, c = self.A, self
        n = len(loads)
        L_more, L_ex = A.new_label('pm' + tg), A.new_label('px' + tg)
        A('s_mov_b32 %s, 0' % s(c.S_CNT))
        A.label(L_top)
        A('s_waitcnt vmcnt(%d)' % ((infl - 1) * n))
        body()
        A('s_cbranch_vccnz %s' % L_more)
        A.label(L_ok)

        def tail():
            A.label(L_more)
            for t in loads:
                A(t)
            A('s_add_u32 %s, %s, 1' % (s(c.S_CNT), s(c.S_CNT)))
            if c.diag:
                A('s_add_u32 %s, %s, 1' % (s(c.S_RC + rc), s(c.S_RC + rc)))
            A('s_and_b32 %s, %s, 63' % (s(c.S_T), s(c.S_CNT)))
            A('s_cbranch_scc1 %s' % L_top)
            A('s_cmp_ge_u32 %s, 0x%x' % (s(c.S_CNT), POLL_MAX))
            A('s_cbranch_scc1 %s' % L_exit)
            A('s_waitcnt vmcnt(0)')
            for k in range(n):
                for t in c.chk(regs[k], s(c.S_M + 2 * k, 2), c.V_T + (k & 1)):
                    A(t)
            c.or_masks(n)
            A('s_cbranch_scc1 %s' % L_top)
            body()
            A('s_branch %s' % L_ok)
        tails.append(tail)

    def gather(self, loads, mf, L_exit, rc, tails, tg, after=0, fs=None, last=None):
        A, c = self.A, self
        Ls = [A.new_label('gs%d%s' % (k, tg)) for k in range(4)]
        L_join = A.new_label('gj' + tg)
        A('s_waitcnt vmcnt(%d)' % (3 + after))
        for t in c.chk(c.V_M, 'vcc', c.V_T):
            A(t)
        A('s_cbranch_vccnz %s' % Ls[0])
        if fs:
            c.st(fs[0], 3, fs[1])
        for k in range(4):
            m = mf(k)
            if k < 3:
                for t in m[:-1]:
                    A(t)
                A('s_waitcnt vmcnt(%d)' % (2 - k + after))
                for t in c.chk(c.V_M + 4 * (k + 1), 'vcc', c.V_T + ((k + 1) & 1)):
                    A(t)
                A(m[-1])
                A('s_cbranch_vccnz %s' % Ls[k + 1])
            else:
                for t in m:
                    A(t)
        A.label(L_join)
        if fs:
            c.st(fs[0], 3, fs[1] + 1)

        def tail():
            S = [A.new_label('gS%d%s' % (k, tg)) for k in range(4)]
            C = [A.new_label('gC%d%s' % (k, tg)) for k in range(4)]
            for k in range(4):
                A.label(Ls[k])
                A('s_mov_b64 exec, vcc')
                A(loads[k])
                A('s_mov_b64 exec, -1')
                if c.diag:
                    A('s_add_u32 %s, %s, 0x10000' % (s(c.S_RC + rc), s(c.S_RC + rc)))
                if k < 3:
                    A('s_waitcnt vmcnt(%d)' % (1 + after))
                A('s_branch %s_e' % S[k])
            for k in range(4):
                A.label(S[k] + '_e')
                A('s_mov_b32 %s, 0' % s(c.S_CNT))
                if k < 3:
                    A.label(S[k] + '_o')
                    for m in range(k + 1, 4):
                        for t in c.chk(c.V_M + 4 * m, s(c.S_M + 2 * m, 2), c.V_T + (m & 1)):
                            A(t + ' ;poll')
                    for m in range(k + 1, 4):
                        A('s_mov_b64 exec, %s' % s(c.S_M + 2 * m, 2))
                        A(loads[m])
                    A('s_mov_b64 exec, -1')
                A.label(S[k])
                A('s_waitcnt vmcnt(%d)' % c.p['gl'])
                for t in c.chk(c.V_M + 4 * k, 'vcc', c.V_T):
                    A(t + ' ;poll')
                A('s_add_u32 %s, %s, 1' % (s(c.S_CNT), s(c.S_CNT)))
                A('s_cbranch_vccz %s' % C[k])
                A('s_mov_b64 exec, vcc')
                A(loads[k])
                A('s_mov_b64 exec, -1')
                if c.diag:
                    A('s_add_u32 %s, %s, 1' % (s(c.S_RC + rc), s(c.S_RC + rc)))
                A('s_and_b32 %s, %s, %d' % (s(c.S_T), s(c.S_CNT), c.p['go']))
                A('s_cbranch_scc1 %s' % S[k])
                A('s_cmp_lt_u32 %s, 0x%x' % (s(c.S_CNT), POLL_MAX))
                A('s_cbranch_scc1 %s' % (S[k] + '_o' if k < 3 else S[k]))
                A('s_branch %s' % L_exit)
                A.label(C[k])
                m = mf(k)
                if k < 3:
                    for t in m[:-1]:
                        A(t + ' ;poll')
                    for t in c.chk(c.V_M + 4 * (k + 1), 'vcc', c.V_T + 1):
                        A(t + ' ;poll')
                    A(m[-1] + ' ;poll')
                    A('s_cbranch_vccz %s' % C[k + 1])
                    A('s_mov_b64 exec, vcc')
                    A(loads[k + 1])
                    A('s_mov_b64 exec, -1')
                else:
                    for t in m:
                        A(t + ' ;poll')
            A('s_branch %s' % L_join)
        tails.append(tail)

    def wslot(self, dst, add):
        c = self
        T = c.S_T + 2
        return ['s_add_u32 %s, %s, %d' % (s(T), s(c.S_STEP), add),
                's_add_u32 %s, %s, %s' % (s(T), s(T), s(c.S_J) if c.p['wj'] else '0'),
                's_lshl_b32 %s, %s, 13' % (s(T + 1), s(T)),
                's_lshl_b32 %s, %s, 12' % (s(T), s(T)),
                's_and_b32 %s, %s, 0x4000' % (s(T + 1), s(T + 1)),
                's_and_b32 %s, %s, 0x1000' % (s(T), s(T)),
                's_add_u32 %s, %s, %s' % (s(T), s(T), s(T + 1)),
                's_add_u32 %s, %s, %s' % (s(dst), s(T), s(c.S_WBB))]

    S_XO = {(0, 2): 39, (1, 2): 40, (0, 3): 4, (1, 3): 5}

    def xoff(self, add):
        c = self
        d, e = c.S_XO[(0, add)], c.S_XO[(1, add)]
        return ['s_add_u32 %s, %s, %d' % (s(d), s(c.S_STEP), add),
                's_min_u32 %s, %s, %d' % (s(d), s(d), 2 if c.p['xm'] else 63),
                's_lshl_b32 %s, %s, 16' % (s(d), s(d)),
                's_add_u32 %s, %s, 0x%x' % (s(d), s(d), XI),
                's_add_u32 %s, %s, 0x2000' % (s(e), s(d))]

    def xld(self, tt, t, add):
        c = self
        if c.p['xl'] != 1:
            return []
        return ['buffer_load_dwordx4 %s, %s, %s, %s offen offset:%d' % (v(c.V_XF + tt * 32 + t * 4, 4), v(c.V_XB if t >= 4 else c.V_XA), s(c.S_WS, 4),
                                                                      s(c.S_XO[(tt, add)]), (t & 3) * 1024)]

    def counts(self, w):
        p = self.p
        nA, nC = p['nA'], p['nC']
        nB = 0 if w == 0 else 32 - nC
        return nB, nC, 64 - nA - nB - nC, nA

    def xplan(self, w):
        nB, nC, nD, nA = self.counts(w)
        tA = (32 - nA) // 4
        if w == 0:
            return {'D': [(1, t, 2, -1) for t in range(tA, 8)] + [(0, t, 3, 4 * t + 3) for t in range(8)] + [(1, t, 3, 32 + 4 * t + 3) for t in range(tA)]}
        if w == 2:
            tB = nB // 4
            return {'Be': [(0, t, 2, -1) for t in range(tB, 8)] + [(1, t, 2, -1) for t in range(8)] + [(0, t, 3, -1) for t in range(tB)]}
        return {'Bs': [(1, t, 2, -1) for t in range(8)], 'D': [(0, t, 3, -1) for t in range(8)]}

    def initial_poison(self):
        A, c = self.A, self
        A('s_mov_b32 %s, %s' % (s(c.S_STEP), s(c.S_WAVE)))
        for t in c.slot(c.S_PMEM, c.S_MB, 14, 0) + c.slot(c.S_PO, c.S_OBB, 14, 0) + c.wslot(c.S_PW, 0) + c.slot(c.S_PSC, c.S_SCBB, 13, 0):
            A(t)
        for t in c.poison_list():
            A(t)

    def setup(self):
        A, c = self.A, self
        Chain.setup(self)
        T = c.S_T
        A('s_lshl_b32 %s, %s, 15' % (s(T), s(c.S_J)))
        A('s_add_u32 %s, %s, 0x%x' % (s(c.S_WBB), s(T), WB2 + c.p['sel'] * 8192))
        g, n, t0, t1 = c.V_T, c.V_T + 3, c.V_T + 4, c.V_T + 5
        A('s_lshl_b32 %s, %s, 12' % (s(T), s(c.S_WAVE)))
        A('v_add_u32 %s, %s, %s' % (v(c.V_GATH), s(T), v(c.V_L16)))
        A('s_lshl_b32 %s, %s, 9' % (s(T), s(c.S_J)))
        A('v_lshlrev_b32 %s, 3, %s' % (v(t0), v(c.V_L)))
        A('v_add_u32 %s, %s, %s' % (v(c.V_MST), s(T), v(t0)))
        A('v_mov_b32 %s, 0x44444444' % v(c.V_IDX))
        A('s_mov_b32 exec_lo, 0xcccccccc')
        A('s_mov_b32 exec_hi, 0xcccccccc')
        A('v_mov_b32 %s, 0xeeeeeeee' % v(c.V_IDX))
        A('s_mov_b64 exec, -1')
        A('v_mul_u32_u24 %s, 192, %s' % (v(t0), v(g)))
        A('v_lshl_add_u32 %s, %s, 2, %s' % (v(t1), v(n), v(t0)))
        A('s_mul_i32 %s, %s, 3136' % (s(T), s(c.S_WAVE)))
        A('s_add_u32 %s, %s, %d' % (s(T), s(T), c.L_QK))
        A('v_add_u32 %s, %s, %s' % (v(c.V_QW), s(T), v(t1)))
        A('v_add_u32 %s, 1568, %s' % (v(c.V_QW2), v(c.V_QW)))
        A('v_and_b32 %s, 9, %s' % (v(c.V_OW), v(n)))
        A('v_bfe_u32 %s, %s, 1, 1' % (v(t1), v(n)))
        A('v_lshl_add_u32 %s, %s, 2, %s' % (v(c.V_OW), v(t1), v(c.V_OW)))
        A('v_bfe_u32 %s, %s, 2, 1' % (v(t1), v(n)))
        A('v_lshl_add_u32 %s, %s, 1, %s' % (v(c.V_OW), v(t1), v(c.V_OW)))
        A('v_lshl_add_u32 %s, %s, 2, %s' % (v(c.V_OW), v(c.V_OW), v(t0)))
        A('s_mul_i32 %s, %s, 1600' % (s(T), s(c.S_WAVE)))
        A('s_add_u32 %s, %s, %d' % (s(T), s(T), c.L_WO))
        A('v_add_u32 %s, %s, %s' % (v(c.V_OW), s(T), v(c.V_OW)))
        A('v_lshrrev_b32 %s, 3, %s' % (v(t0), v(n)))
        A('v_mul_u32_u24 %s, 1568, %s' % (v(c.V_QR), v(t0)))
        A('v_and_b32 %s, 1, %s' % (v(t0), v(n)))
        A('v_mul_u32_u24 %s, 784, %s' % (v(t0), v(t0)))
        A('v_add_u32 %s, %s, %s' % (v(c.V_QR), v(c.V_QR), v(t0)))
        A('v_bfe_u32 %s, %s, 1, 2' % (v(t0), v(n)))
        A('v_mul_u32_u24 %s, 192, %s' % (v(t0), v(t0)))
        A('v_add_u32 %s, %s, %s' % (v(c.V_QR), v(c.V_QR), v(t0)))
        A('v_lshl_add_u32 %s, %s, 4, %s' % (v(c.V_QR), v(g), v(c.V_QR)))
        A('v_add_u32 %s, %d, %s' % (v(c.V_QR), c.L_QK, v(c.V_QR)))
        A('v_bfe_u32 %s, %s, 1, 1' % (v(t0), v(c.V_L)))
        A('v_mul_u32_u24 %s, 896, %s' % (v(c.V_OR), v(t0)))
        A('v_bfe_u32 %s, %s, 3, 2' % (v(t0), v(c.V_L)))
        A('v_mul_u32_u24 %s, 192, %s' % (v(t0), v(t0)))
        A('v_add_u32 %s, %s, %s' % (v(c.V_OR), v(c.V_OR), v(t0)))
        A('v_lshrrev_b32 %s, 5, %s' % (v(t1), v(c.V_L)))
        A('v_lshl_add_u32 %s, %s, 6, %s' % (v(c.V_OR), v(t1), v(c.V_OR)))
        A('v_and_b32 %s, 1, %s' % (v(t1), v(c.V_L)))
        A('v_lshl_add_u32 %s, %s, 5, %s' % (v(c.V_OR), v(t1), v(c.V_OR)))
        A('v_bfe_u32 %s, %s, 2, 1' % (v(t1), v(c.V_L)))
        A('v_lshl_add_u32 %s, %s, 4, %s' % (v(c.V_OR), v(t1), v(c.V_OR)))
        A('v_add_u32 %s, %d, %s' % (v(c.V_OR), c.L_WO, v(c.V_OR)))
        A('v_lshrrev_b32 %s, 1, %s' % (v(t0), v(g)))
        A('v_lshlrev_b32 %s, 8, %s' % (v(c.V_OST), v(t0)))
        A('v_and_b32 %s, 1, %s' % (v(t0), v(g)))
        A('v_lshl_add_u32 %s, %s, 5, %s' % (v(c.V_OST), v(t0), v(c.V_OST)))
        A('v_bfe_u32 %s, %s, 1, 2' % (v(t0), v(n)))
        A('v_lshl_add_u32 %s, %s, 6, %s' % (v(c.V_OST), v(t0), v(c.V_OST)))
        A('v_and_b32 %s, 1, %s' % (v(t0), v(n)))
        A('v_lshl_add_u32 %s, %s, 4, %s' % (v(c.V_OST), v(t0), v(c.V_OST)))
        A('s_lshl_b32 %s, %s, 9' % (s(T), s(c.S_J)))
        A('v_add_u32 %s, %s, %s' % (v(c.V_OST), s(T), v(c.V_OST)))
        A('v_add_u32 %s, 0x%x, %s' % (v(c.V_VM), VM - KM, v(c.V_VM)))
        for r in (c.V_VMF + 1, c.V_VMF + 3, c.V_PM + 1):
            A('v_mov_b32 %s, 0' % v(r))

    def load_weights(self, xi_cnt, L_exit):
        A, c = self.A, self
        vsrc_qkv, vsrc_o, vtr, vtro = c.V_RD, c.V_RD + 1, c.V_RD + 2, c.V_RD + 3
        T = c.S_T
        t0, t1, t2, t3 = c.V_T, c.V_T + 1, c.V_T + 2, c.V_T + 3
        A('v_lshrrev_b32 %s, 2, %s' % (v(t0), v(c.V_L)))
        A('v_and_b32 %s, 3, %s' % (v(t1), v(c.V_L)))
        A('v_lshlrev_b32 %s, 13, %s' % (v(vsrc_qkv), v(t0)))
        A('v_lshl_add_u32 %s, %s, 4, %s' % (v(vsrc_qkv), v(t1), v(vsrc_qkv)))
        A('s_lshl_b32 %s, %s, 21' % (s(T), s(c.S_WAVE)))
        A('s_lshl_b32 %s, %s, 8' % (s(T + 1), s(c.S_H)))
        A('s_add_u32 %s, %s, %s' % (s(T), s(T), s(T + 1)))
        A('s_lshl_b32 %s, %s, 6' % (s(T + 1), s(c.S_C)))
        A('s_add_u32 %s, %s, %s' % (s(T), s(T), s(T + 1)))
        A('v_add_u32 %s, %s, %s' % (v(vsrc_qkv), s(T), v(vsrc_qkv)))
        A('v_lshlrev_b32 %s, 11, %s' % (v(vsrc_o), v(t0)))
        A('v_lshl_add_u32 %s, %s, 4, %s' % (v(vsrc_o), v(t1), v(vsrc_o)))
        A('s_lshl_b32 %s, %s, 21' % (s(T), s(c.S_X)))
        A('s_lshl_b32 %s, %s, 19' % (s(T + 1), s(c.S_WAVE)))
        A('s_add_u32 %s, %s, %s' % (s(T), s(T), s(T + 1)))
        A('s_lshl_b32 %s, %s, 6' % (s(T + 1), s(c.S_J)))
        A('s_add_u32 %s, %s, %s' % (s(T), s(T), s(T + 1)))
        A('v_add_u32 %s, %s, %s' % (v(vsrc_o), s(T), v(vsrc_o)))
        sbase = T + 2
        A('s_lshl_b32 %s, %s, 15' % (s(sbase), s(c.S_WAVE)))
        A('s_add_u32 %s, %s, 0x%x' % (s(sbase), s(sbase), c.L_STAGE))
        A('v_lshrrev_b32 %s, 4, %s' % (v(t0), v(c.V_L)))
        A('v_bfe_u32 %s, %s, 2, 2' % (v(t2), v(c.V_L)))
        A('v_lshl_add_u32 %s, %s, 3, %s' % (v(vtr), v(t0), v(t2)))
        A('v_lshlrev_b32 %s, 6, %s' % (v(vtr), v(vtr)))
        A('v_lshl_add_u32 %s, %s, 3, %s' % (v(vtr), v(t1), v(vtr)))
        A('v_add_u32 %s, %s, %s' % (v(vtr), s(sbase), v(vtr)))
        A('v_and_b32 %s, 1, %s' % (v(vtro), v(t2)))
        A('v_lshrrev_b32 %s, 1, %s' % (v(t3), v(t2)))
        A('v_lshl_add_u32 %s, %s, 2, %s' % (v(vtro), v(t3), v(vtro)))
        A('v_lshrrev_b32 %s, 1, %s' % (v(t3), v(t0)))
        A('v_lshl_add_u32 %s, %s, 3, %s' % (v(vtro), v(t3), v(vtro)))
        A('v_and_b32 %s, 1, %s' % (v(t3), v(t0)))
        A('v_lshl_add_u32 %s, %s, 4, %s' % (v(vtro), v(t3), v(vtro)))
        A('v_lshlrev_b32 %s, 6, %s' % (v(vtro), v(vtro)))
        A('v_lshl_add_u32 %s, %s, 3, %s' % (v(vtro), v(t1), v(vtro)))
        A('v_add_u32 %s, %s, %s' % (v(vtro), s(sbase), v(vtro)))
        mats = [(K_WK, vsrc_qkv, 8192, 1), (K_WV, vsrc_qkv, 8192, 2), (K_WQ, vsrc_qkv, 8192, 0), (K_WO, vsrc_o, 2048, 3)]
        ptr = c.S_M
        for k, m in enumerate(mats):
            A('s_load_dwordx2 %s, s[0:1], %d' % (s(ptr + 2 * k, 2), m[0]))
        A('s_waitcnt lgkmcnt(0)')

        def issue(m):
            ko, vs, stride, idx = mats[m]
            srd(A, c.S_W, ptr + 2 * m, 8 * MB)
            for q in range(16):
                A('s_add_u32 m0, %s, 0x%x' % (s(sbase), (m & 1) * 16384 + q * 1024))
                A('s_mov_b32 %s, 0x%x' % (s(T), q * 16 * stride))
                A('buffer_load_dwordx4 %s, %s, %s offen lds' % (v(vs), s(c.S_W, 4), s(T)))

        def readout(m):
            idx = mats[m][3]
            for t in range(8):
                for tau in range(2):
                    for hh in range(2):
                        A('ds_read_b64_tr_b16 %s, %s offset:%d' % (a(((idx * 2 + tau) * 8 + t) * 4 + 2 * hh, 2), v(vtr if idx < 3 else vtro),
                                                                   (m & 1) * 16384 + t * 2048 + hh * (256 if idx < 3 else 128) + tau * 32))
                if t & 1:
                    A('s_waitcnt lgkmcnt(0)')

        issue(0)
        issue(1)
        A('s_mov_b32 %s, 0' % s(c.S_STEP))
        A('s_waitcnt vmcnt(16)')
        readout(0)
        pv = c.V_T + 4
        A('v_mov_b32 %s, %d' % (v(pv + 1), xi_cnt))
        A('buffer_load_dword %s, %s, %s, 0 offen sc1' % (v(pv), v(pv + 1), s(c.S_DB, 4)))
        issue(2)
        A('s_waitcnt vmcnt(16)')
        Lp, Lq = A.new_label('xi' + c.tag), A.new_label('xi' + c.tag)
        A('s_mov_b32 %s, 0' % s(c.S_CNT))
        A.label(Lp)
        A('v_readfirstlane_b32 %s, %s' % (s(T + 4), v(pv)))
        A('s_cmp_ge_u32 %s, 128' % s(T + 4))
        A('s_cbranch_scc1 %s' % Lq)
        A('buffer_load_dword %s, %s, %s, 0 offen sc1' % (v(pv), v(pv + 1), s(c.S_DB, 4)))
        A('s_add_u32 %s, %s, 1' % (s(c.S_CNT), s(c.S_CNT)))
        A('s_cmp_ge_u32 %s, 0x%x' % (s(c.S_CNT), POLL_MAX))
        A('s_cbranch_scc1 %s' % L_exit)
        A('s_waitcnt vmcnt(0)')
        A('s_branch %s' % Lp)
        A.label(Lq)
        for t in c.xoffs(0) + c.xloads(0) + c.xloads(1):
            A(t)
        readout(1)
        issue(3)
        A('s_waitcnt vmcnt(16)')
        c.P(0, 64)
        for t in c.xoffs(1) + c.xloads(0) + c.xloads(1):
            A(t)
        A('s_mov_b64 exec, 0xffff')
        for k in (2, 3):
            A('s_mov_b32 %s, 0x%x' % (s(T + 4), XI + k * 65536))
            A('buffer_load_dword %s, %s, %s, %s offen' % (v(c.V_T + 4 + k), v(c.V_TCH), s(c.S_WS, 4), s(T + 4)))
        A('s_mov_b64 exec, -1')
        readout(2)
        A('s_waitcnt vmcnt(18)')
        readout(3)

    def publish_mem0(self):
        A, c = self.A, self
        T = c.S_T
        t0, t1 = c.V_T, c.V_T + 1
        A('s_load_dwordx2 %s, s[0:1], %d' % (s(c.S_M, 2), K_MEM0))
        A('s_waitcnt lgkmcnt(0)')
        srd(A, c.S_W, c.S_M, 16384)
        A('v_bfe_u32 %s, %s, 3, 2' % (v(t0), v(c.V_L)))
        A('v_lshlrev_b32 %s, 12, %s' % (v(t0), v(t0)))
        A('v_bfe_u32 %s, %s, 1, 1' % (v(t1), v(c.V_L)))
        A('v_lshl_add_u32 %s, %s, 11, %s' % (v(t0), v(t1), v(t0)))
        A('v_lshrrev_b32 %s, 5, %s' % (v(t1), v(c.V_L)))
        A('v_lshl_add_u32 %s, %s, 5, %s' % (v(t0), v(t1), v(t0)))
        A('v_and_b32 %s, 1, %s' % (v(t1), v(c.V_L)))
        A('v_lshl_add_u32 %s, %s, 4, %s' % (v(t0), v(t1), v(t0)))
        A('v_bfe_u32 %s, %s, 2, 1' % (v(t1), v(c.V_L)))
        A('v_lshl_add_u32 %s, %s, 2, %s' % (v(t0), v(t1), v(t0)))
        A('s_lshl_b32 %s, %s, 6' % (s(T), s(c.S_J)))
        A('buffer_load_dword %s, %s, %s, %s offen' % (v(c.V_T + 2), v(t0), s(c.S_W, 4), s(T)))
        A('buffer_load_dword %s, %s, %s, %s offen offset:8' % (v(c.V_T + 3), v(t0), s(c.S_W, 4), s(T)))
        A('s_waitcnt vmcnt(0)')
        A('v_min_u32 %s, -2, %s' % (v(c.V_T + 2), v(c.V_T + 2)))
        A('v_min_u32 %s, -2, %s' % (v(c.V_T + 3), v(c.V_T + 3)))

    def outmod(self, lst):
        k = self.p['kv']
        out = []
        for t in lst:
            if t.startswith('buffer_store'):
                if k == 0:
                    continue
                t = t.replace(' sc1', {1: ' sc1', 2: '', 3: ' nt'}[k])
            out.append(t)
        return out

    def vm_store(self):
        c = self
        return self.outmod(['buffer_store_dword %s, %s, %s, %s offen sc1' % (v(c.V_VMF), v(c.V_VM), s(c.S_WS, 4), s(c.S_KMVM + 0)),
                            'buffer_store_dword %s, %s, %s, %s offen offset:256 sc1' % (v(c.V_VMF + 2), v(c.V_VM), s(c.S_WS, 4), s(c.S_KMVM + 0))])

    def km_store(self):
        return self.outmod(Chain.km_store(self))

    def kv_reduce(self, w):
        A = self.A
        n0 = len(A.lines)
        Chain.kv_reduce(self, w)
        A.lines[n0:] = self.outmod(A.lines[n0:])

    def prologue2(self, start_wait, L_exit, L_done):
        A, c = self.A, self
        A('s_barrier')
        for t in c.pwrites(0) + c.pwrites(1):
            A(t)
        A('v_mov_b32 %s, 0' % v(c.V_T))
        A('v_mov_b32 %s, 0' % v(c.V_T + 1))
        A('ds_write_b64 %s, %s' % (v(c.V_Z), v(c.V_T, 2)))
        A('s_waitcnt vmcnt(0) lgkmcnt(0)')
        A('s_barrier')
        L = [A.new_label('cw%d%s' % (w, c.tag)) for w in range(4)]
        for w in range(1, 4):
            A('s_cmp_eq_u32 %s, %d' % (s(c.S_WAVE), w))
            A('s_cbranch_scc1 %s' % L[w])
        for w in range(4):
            A.label(L[w])
            A('s_mov_b32 %s, 0' % s(c.S_STEP))
            if w >= 2:
                for t in c.kv_offsets(w, 0):
                    A(t)
                c.kv_reduce(w)
            if w == 1:
                c.publish_mem0()
            if w == 0:
                for k in range(4):
                    A('v_mov_b32 %s, 0x3f803f80' % v(c.V_ONE + k))
            nA = c.p['nA']
            c.P(0, 64 - nA)
            A('s_mov_b32 %s, -1' % s(c.S_STEP))
            for t in c.xoff(3):
                A(t)
            A('s_mov_b32 %s, 0' % s(c.S_STEP))
            for lst in c.xplan(w).values():
                for tt, t, add, _ in lst:
                    if add == 3:
                        for x in c.xld(tt, t, 3):
                            A(x)
            A('s_waitcnt lgkmcnt(0)')
            A('s_barrier')
            for t in c.pwrites(0):
                A(t)
            for t in c.zero(c.A_QK, 24):
                A(t)
            if w == 1:
                start_wait(L_exit)
                c.publish_mem0_store()
            if w == 3 and c.diag:
                c.sync_clock(2)
            A('s_mov_b32 %s, %s' % (s(c.S_MEMOFF), s(c.S_MB)))
            A('s_mov_b32 %s, 3' % s(c.S_VT))
            A('s_waitcnt vmcnt(0) lgkmcnt(0)')
            A('s_barrier')
            c.step_loop(w, L_exit, L_done)

    def step_loop(self, w, L_exit, L_done):
        A, c = self.A, self
        p = c.p
        ws = s(c.S_WS, 4)
        tg = '%d%s' % (w, c.tag)
        nB, nC, nD, nA = c.counts(w)
        assert nC % 4 == 0
        plan = c.xplan(w)
        L_loop, L_last = [A.new_label(n + tg) for n in ('step', 'last')]
        tails = []
        R = c.V_R

        def emit(lst):
            for t in lst:
                A(t)

        def place(fill, lo, hi, items, start, per, group=1):
            n = hi - lo
            for k, t in enumerate(items):
                fill.setdefault(max(0, min(start + (k // group) * per, n - 1)), []).extend(t if isinstance(t, list) else [t])

        def run(lo, hi, fill):
            if hi > lo:
                c.P(lo, hi, fill)
            else:
                for k in sorted(fill):
                    emit(fill[k])

        def xplace(fill, lo, hi, lst):
            pos = p['xd']
            for tt, t, add, first in lst:
                pos = max(pos, first - lo)
                fill.setdefault(max(0, min(pos, hi - lo - 1)), []).extend(c.xld(tt, t, add))
                pos += p['xs']

        A.label(L_loop)
        c.st(w, 3, 0)
        if p['gd']:
            A('s_nop %d' % (p['gd'] - 1))
        gl = c.gather_loads(c.S_MEMOFF)
        emit(gl)
        misc = c.slot(c.S_OOFF, c.S_OBB, 14, 0) + c.xoff(2) + c.xoff(3)
        if w == 0:
            misc = ['ds_read_b128 %s, %s offset:%d' % (v(c.V_KXF + 4 * f, 4), v(c.V_L16), c.L_KV + f * 1024) for f in range(4)] + misc
            misc += c.slot(c.S_SCOFF, c.S_SCBB, 13, 0)
            misc += ['s_lshl_b32 %s, %s, 16' % (s(c.S_KMVM), s(c.S_STEP)),
                     's_add_u32 %s, %s, 0x%x' % (s(c.S_KMVM), s(c.S_KMVM), KM)]
        if w >= 2:
            misc += c.kv_offsets(w, 1)
        fill = {}
        place(fill, 64 - nA, 64, misc, 0, 1, 3)
        run(64 - nA, 64, fill)
        emit(c.pwrites(1))

        def qk(k):
            return [c.sm(c.A_QK + tau * 8 + m * 4, k, ((m * 2 + tau) * 8 + 2 * k) * 4) for tau in range(2) for m in range(2)]
        c.gather(gl, qk, L_exit, 0, tails, 'm' + tg, fs=(w, 2) if p['fs'] else None)
        for tau in range(2):
            for m in range(2):
                b = c.A_QK + tau * 8 + m * 4
                r = R + tau * 4 + m * 2
                A('v_pk_add_f32 %s, %s, %s' % (v(r, 2), v(b, 2), v(b + 2, 2)))
                A('ds_write2_b32 %s, %s, %s offset0:%d offset1:%d' % (v(c.V_QW2 if m else c.V_QW), v(r), v(r + 1), tau * 16, 196 + tau * 16))
        if p['fs']:
            c.st(w, 3, 4)
        A('s_waitcnt lgkmcnt(0)')
        if p['fs']:
            c.st(w, 3, 5)
        A('s_barrier')
        c.st(w, 3, 1)

        def v_part(fill):
            q = 0
            for k in range(4):
                for tau in range(2):
                    A(c.sm(c.A_V + tau * 4, k, ((4 + tau) * 8 + 2 * k) * 4) + ' ;poll')
                    emit(fill.get(q, []))
                    q += 1
            for tau in range(2):
                b = c.A_V + tau * 4
                A('v_pk_add_f32 %s, %s, %s' % (v(R + 2 * tau, 2), v(b, 2), v(b + 2, 2)))
            if w:
                A('ds_write_b128 %s, %s offset:%d' % (v(c.V_LW), v(R, 4), c.L_V))
                A('s_mov_b64 exec, 1')
                A('ds_add_u32 %s, %s' % (v(c.V_Z), v(c.V_C1)))
                A('s_mov_b64 exec, -1')

        def v_reduce(mid=()):
            D, fl = c.V_RD, c.V_T + 2
            L_vm, L_vr = A.new_label('vm' + tg), A.new_label('vr' + tg)

            def reads():
                A('ds_read_b32 %s, %s' % (v(fl), v(c.V_Z)))
                for ww in range(1, 4):
                    A('ds_read_b128 %s, %s offset:%d' % (v(D + 4 * ww - 4, 4), v(c.V_L16), c.L_V + ww * 1024))
            reads()
            emit(mid)
            A('s_waitcnt lgkmcnt(0)')
            A('v_cmp_ne_u32 vcc, %s, %s' % (s(c.S_VT), v(fl)))
            A('s_cbranch_vccnz %s' % L_vr)
            A.label(L_vm)
            for r in range(0, 4, 2):
                A('v_pk_add_f32 %s, %s, %s' % (v(R + r, 2), v(R + r, 2), v(D + r, 2)))
                A('v_pk_add_f32 %s, %s, %s' % (v(D + 4 + r, 2), v(D + 4 + r, 2), v(D + 8 + r, 2)))
            for r in range(0, 4, 2):
                A('v_pk_add_f32 %s, %s, %s' % (v(R + r, 2), v(R + r, 2), v(D + 4 + r, 2)))
            A('v_cvt_pk_bf16_f32 %s, %s, %s' % (v(c.V_VMF), v(R), v(R + 1)))
            A('v_cvt_pk_bf16_f32 %s, %s, %s' % (v(c.V_VMF + 2), v(R + 2), v(R + 3)))

            def tail_vr():
                A.label(L_vr)
                A('s_mov_b32 %s, 0' % s(c.S_CNT))
                Lr = A.new_label('vrl' + tg)
                A.label(Lr)
                reads()
                A('s_add_u32 %s, %s, 1' % (s(c.S_CNT), s(c.S_CNT)))
                A('s_cmp_ge_u32 %s, 0x%x' % (s(c.S_CNT), POLL_MAX * 4))
                A('s_cbranch_scc1 %s' % L_exit)
                A('s_waitcnt lgkmcnt(0)')
                A('v_cmp_ne_u32 vcc, %s, %s' % (s(c.S_VT), v(fl)))
                A('s_cbranch_vccnz %s' % Lr)
                A('s_branch %s' % L_vm)
            tails.append(tail_vr)

        if w == 0:
            D = c.V_RD
            S = c.V_RD + 16
            SP = c.A_QK
            for ww in range(4):
                for tau in range(2):
                    A('ds_read_b128 %s, %s offset:%d' % (v(D + ww * 8 + tau * 4, 4), v(c.V_QR), ww * 3136 + tau * 64))
            A('s_cmp_eq_u32 %s, %d' % (s(c.S_STEP), c.nsteps - 1))
            A('s_waitcnt lgkmcnt(4)')
            for r in range(0, 8, 2):
                A('v_pk_add_f32 %s, %s, %s' % (v(D + r, 2), v(D + r, 2), v(D + 8 + r, 2)))
            A('s_waitcnt lgkmcnt(2)')
            for r in range(0, 8, 2):
                A('v_pk_add_f32 %s, %s, %s' % (v(D + r, 2), v(D + r, 2), v(D + 16 + r, 2)))
            A('s_waitcnt lgkmcnt(0)')
            for r in range(0, 8, 2):
                A('v_pk_add_f32 %s, %s, %s' % (v(D + r, 2), v(D + r, 2), v(D + 24 + r, 2)))
            for q in range(4):
                A('v_cvt_pk_bf16_f32 %s, %s, %s' % (v(c.V_F + q), v(D + 2 * q), v(D + 2 * q + 1)))
            A('s_cbranch_scc1 %s' % L_last)
            A(MF % (v(S + 8, 4), v(c.V_F, 4), v(c.V_F, 4), '0'))
            A(MF % (v(S, 4), v(c.V_KXF, 4), v(c.V_F, 4), '0'))
            A(MF % (v(S + 4, 4), v(c.V_KXF + 4, 4), v(c.V_F, 4), '0'))
            A('s_mov_b64 exec, %s' % s(c.S_MSM, 2))
            for r in range(4):
                A('buffer_store_dword %s, %s, %s, %s offen offset:%d %s' % (v(S + 8 + r), v(c.V_SCM), ws, s(c.S_SCOFF), r * 128, c.im))
            A('s_mov_b64 exec, %s' % s(c.S_MP0, 2))
            A('buffer_store_dwordx4 %s, %s, %s, %s offen %s' % (v(S, 4), v(c.V_SC), ws, s(c.S_SCOFF), c.im))
            A('buffer_store_dwordx4 %s, %s, %s, %s offen offset:128 %s' % (v(S + 4, 4), v(c.V_SC), ws, s(c.S_SCOFF), c.im))
            A('s_mov_b64 exec, -1')
            c.st(w, 0, 3)
            if p['ack'] & 2:
                A('s_waitcnt vmcnt(0)')
                c.st(w, 0, 2)
            scl = ['buffer_load_dwordx4 %s, %s, %s, %s offen sc1' % (v(SP + 4 * k, 4), v(c.V_SC + 1 + k if k < 3 else c.V_SCL), ws, s(c.S_SCOFF))
                   for k in range(4)]
            fill = {0: ['v_mov_b32_dpp %s, %s row_ror:8 row_mask:0xf bank_mask:0xc' % (v(S + r), v(S + 4 + r)) for r in range(4)]}
            for q in range(4):
                fill.setdefault(1 + q, []).extend(c.zero(c.A_WO + 2 * q, 2))
            nr = 1
            for k in ('sa', 'sb'):
                if p[k] < 8 and nr < p['si']:
                    fill.setdefault(p[k], []).extend(scl)
                    nr += 1
            v_part(fill)
            v_reduce(scl * (p['si'] - nr + 1))
            X = c.V_RD
            m, t = c.V_T, c.V_T + 1
            PP = R + 4

            def sums():
                for r in range(0, 4, 2):
                    A('v_pk_add_f32 %s, %s, %s ;poll' % (v(X + r, 2), v(S + r, 2), v(SP + r, 2)))
                    A('v_pk_add_f32 %s, %s, %s ;poll' % (v(X + 6 + r, 2), v(SP + 4 + r, 2), v(SP + 8 + r, 2)))
                A('v_pk_add_f32 %s, %s, %s ;poll' % (v(X + 4, 2), v(SP + 12, 2), v(SP + 14, 2)))
                for r in range(0, 4, 2):
                    A('v_pk_add_f32 %s, %s, %s' % (v(X + r, 2), v(X + r, 2), v(X + 6 + r, 2)))
                A('v_add_f32 %s, %s, %s' % (v(X + 4), v(X + 4), v(X + 5)))
                A('v_pk_add_f32 %s, %s, %s' % (v(X + 6, 2), v(X, 2), v(X + 2, 2)))
                A('v_max3_f32 %s, %s, %s, %s' % (v(m), v(X), v(X + 1), v(X + 2)))
                A('v_add_f32 %s, %s, %s' % (v(X + 6), v(X + 6), v(X + 4)))
                A('v_max3_f32 %s, %s, %s, %s' % (v(m), v(m), v(X + 3), v(X + 4)))
                A('v_cmp_u_f32 vcc, %s, %s' % (v(X + 6), v(X + 7)))
                A('v_max_f32_dpp %s, %s, %s row_ror:8 row_mask:0xf bank_mask:0xf' % (v(m), v(m), v(m)))
            c.rounds(A.new_label('sct' + tg), A.new_label('sco' + tg), L_exit, scl, [SP + 4 * k for k in range(4)], sums, p['si'], 1, tails, tg)
            c.st(w, 0, 4)
            A('v_mov_b32 %s, %s' % (v(t), v(m)))
            A('v_permlane16_swap_b32 %s, %s' % (v(m), v(t)))
            A('v_max_f32 %s, %s, %s' % (v(m), v(m), v(t)))
            A('v_mov_b32 %s, %s' % (v(t), v(m)))
            A('v_permlane32_swap_b32 %s, %s' % (v(m), v(t)))
            A('v_max_f32 %s, %s, %s' % (v(m), v(m), v(t)))
            A('v_mul_f32 %s, %s, %s' % (v(m), s(c.S_CSC), v(m)))
            for r in (4, 0, 1, 2, 3):
                A('v_fma_f32 %s, %s, %s, -%s' % (v(X + r), v(X + r), s(c.S_CSC), v(m)))
            for r in (4, 0, 1, 2, 3):
                A('v_exp_f32 %s, %s' % (v(X + r), v(X + r)))
                if r == 1:
                    A('v_mov_b32_dpp %s, %s row_ror:8 row_mask:0xf bank_mask:0xf' % (v(t), v(X + 4)))
                if r == 2:
                    A('v_cvt_pk_bf16_f32 %s, %s, %s' % (v(c.V_PM), v(X + 4), v(t)))
                    A('v_cvt_pk_bf16_f32 %s, %s, %s' % (v(PP), v(X), v(X + 1)))
            O = c.V_RD + 8
            A(MF16 % (v(O + 8, 4), v(c.V_ONE, 2), v(c.V_PM, 2), '0'))
            A('v_cvt_pk_bf16_f32 %s, %s, %s' % (v(PP + 1), v(X + 2), v(X + 3)))
            A('v_mov_b32_dpp %s, %s row_ror:8 row_mask:0xf bank_mask:0xf' % (v(PP + 2), v(PP)))
            A(MF16 % (v(O, 4), v(c.V_VMF, 2), v(c.V_PM, 2), '0'))
            A(MF16 % (v(O + 4, 4), v(c.V_VMF + 2, 2), v(c.V_PM, 2), '0'))
            A('v_mov_b32_dpp %s, %s row_ror:8 row_mask:0xf bank_mask:0xf' % (v(PP + 3), v(PP + 1)))
            A(MF % (v(O + 8, 4), v(c.V_ONE, 4), v(PP, 4), v(O + 8, 4)))
            A(MF % (v(O, 4), v(c.V_VTF, 4), v(PP, 4), v(O, 4)))
            A(MF % (v(O + 4, 4), v(c.V_VTF + 4, 4), v(PP, 4), v(O + 4, 4)))
            A('v_rcp_f32 %s, %s' % (v(m), v(O + 8)))
            A('s_mov_b64 exec, %s' % s(c.S_MP0, 2))
            for r in range(0, 8, 2):
                A('v_pk_mul_f32 %s, %s, %s op_sel_hi:[1,0]' % (v(O + r, 2), v(O + r, 2), v(m, 2)))
                A('v_cvt_pk_bf16_f32 %s, %s, %s' % (v(R + r // 2), v(O + r), v(O + r + 1)))
            A('buffer_store_dwordx4 %s, %s, %s, %s offen %s' % (v(R, 4), v(c.V_OST), ws, s(c.S_OOFF), c.im))
            A('s_mov_b64 exec, -1')
            c.st(w, 0, 5)
            if p['ack'] & 1:
                A('s_waitcnt vmcnt(0)')
                c.st(w, 0, 2)
        else:
            fill = {}
            for q, (tt, t, add, _) in enumerate(plan.get('Bs', [])):
                fill.setdefault(min(q, 7), []).extend(c.xld(tt, t, add))
            v_part(fill)
            A('s_cmp_eq_u32 %s, %d' % (s(c.S_STEP), c.nsteps - 1))
            A('s_cbranch_scc1 %s' % L_done)
            if w >= 2:
                A('s_waitcnt lgkmcnt(0)')
                c.kv_reduce(w)
            fill = {}
            place(fill, 0, nB, c.zero(c.A_WO, 8), 0, 1, 2)
            run(0, nB, fill)
            for tt, t, add, _ in plan.get('Be', []):
                emit(c.xld(tt, t, add))
            if c.diag and w >= 2:
                c.dump()
            A('s_waitcnt lgkmcnt(0)')
        A('s_barrier')
        c.st(w, 3, 6)

        if p['od']:
            A('s_nop %d' % (p['od'] - 1))
        ol = c.gather_loads(c.S_OOFF)
        emit(ol)
        misc = c.slot(c.S_NMEM, c.S_MB, 14, 1)
        if w == 2:
            misc += c.wslot(c.S_WOFF, 0) + c.wslot(c.S_PW, 1)
        if w == 3:
            misc += c.slot(c.S_PMEM, c.S_MB, 14, 3) + c.slot(c.S_PO, c.S_OBB, 14, 2) + c.wslot(c.S_PW, 2) + c.slot(c.S_PSC, c.S_SCBB, 13, 2)
        if w & 1:
            misc += ['s_add_u32 %s, %s, 4' % (s(c.S_TCH), s(c.S_STEP)), 's_min_u32 %s, %s, 63' % (s(c.S_TCH), s(c.S_TCH)),
                     's_lshl_b32 %s, %s, 16' % (s(c.S_TCH), s(c.S_TCH)),
                     's_add_u32 %s, %s, 0x%x' % (s(c.S_TCH), s(c.S_TCH), XI)]
            if p['touch'] == 2:
                misc += ['s_lshl_b32 %s, %s, 11' % (s(c.S_T + 2), s(c.S_J)),
                         's_add_u32 %s, %s, %s' % (s(c.S_TCH), s(c.S_TCH), s(c.S_T + 2)),
                         's_add_u32 %s, %s, %d' % (s(c.S_TCH), s(c.S_TCH), (w >> 1) * 1024)]
        misc += ['s_add_u32 %s, %s, 3' % (s(c.S_VT), s(c.S_VT))]
        if 'Be' in plan and p['xl'] == 1:
            A('s_waitcnt vmcnt(%d)' % (4 + len(plan['Be']) - (8 - nB // 4)))
        fill = {}
        place(fill, nB, nB + nC, misc, 0, 1, 3)
        run(nB, nB + nC, fill)
        if w:
            emit(c.pwrites(0))

        def wo(k):
            return [c.sm(c.A_WO + tau * 4, k, 192 + (tau * 8 + 2 * k) * 4) for tau in range(2)]
        c.gather(ol, wo, L_exit, 2, tails, 'o' + tg, fs=(w, 8) if p['fs'] else None)
        for tau in range(2):
            b = c.A_WO + tau * 4
            A('v_pk_add_f32 %s, %s, %s' % (v(R + 2 * tau, 2), v(b, 2), v(b + 2, 2)))
            A('ds_write2_b32 %s, %s, %s offset0:%d offset1:%d' % (v(c.V_OW), v(R + 2 * tau), v(R + 2 * tau + 1), tau * 16, 224 + tau * 16))
        if p['fs']:
            c.st(w, 3, 10)
        A('s_waitcnt lgkmcnt(0)')
        if p['fs']:
            c.st(w, 3, 11)
        A('s_barrier')
        c.st(w, 3, 7)

        if w == 2:
            D = c.V_RD
            for ww in range(4):
                A('ds_read_b128 %s, %s offset:%d' % (v(D + 4 * ww, 4), v(c.V_OR), ww * 1600))
            A('s_waitcnt lgkmcnt(2)')
            for r in range(0, 4, 2):
                A('v_pk_add_f32 %s, %s, %s' % (v(D + r, 2), v(D + r, 2), v(D + 4 + r, 2)))
            A('s_waitcnt lgkmcnt(0)')
            for r in range(0, 4, 2):
                A('v_pk_add_f32 %s, %s, %s' % (v(D + 8 + r, 2), v(D + 8 + r, 2), v(D + 12 + r, 2)))
            for r in range(0, 4, 2):
                A('v_pk_add_f32 %s, %s, %s' % (v(R + r, 2), v(D + r, 2), v(D + 8 + r, 2)))
            A('buffer_store_dwordx4 %s, %s, %s, %s offen sc1' % (v(R, 4), v(c.V_WA), ws, s(c.S_WOFF)))
            c.st(w, 2, 9)
            if p['ack'] & 2:
                A('s_waitcnt vmcnt(0)')
                c.st(w, 2, 8)
            W = c.V_WP
            wl = ['buffer_load_dwordx4 %s, %s, %s, %s offen sc1' % (v(W + 4 * k, 4), v(c.V_WA + 1 + k), ws, s(c.S_WOFF)) for k in range(3)]
            if p['pf']:
                emit([t.replace(s(c.S_WOFF) + ' ', s(c.S_PW) + ' ') for t in wl])
            fill = {}
            nr = 1
            for k in ('wa', 'wb'):
                if p[k] < nD and nr < p['wi']:
                    fill.setdefault(p[k], []).extend(wl)
                    nr += 1
            place(fill, 32, 32 + nD, c.zero(c.A_QK, 24), 0, 1, 2)
            run(32, 32 + nD, fill)
            emit(wl * (p['wi'] - nr + 1))

            def wsum():
                for r in range(0, 4, 2):
                    A('v_pk_add_f32 %s, %s, %s ;poll' % (v(D + r, 2), v(R + r, 2), v(W + r, 2)))
                    A('v_pk_add_f32 %s, %s, %s ;poll' % (v(D + 4 + r, 2), v(W + 4 + r, 2), v(W + 8 + r, 2)))
                for r in range(0, 4, 2):
                    A('v_pk_add_f32 %s, %s, %s' % (v(D + r, 2), v(D + r, 2), v(D + 4 + r, 2)))
                A('v_pk_add_f32 %s, %s, %s' % (v(D + 4, 2), v(D, 2), v(D + 2, 2)))
                A('v_cvt_pk_bf16_f32 %s, %s, %s' % (v(D + 8), v(D), v(D + 1)))
                A('v_cmp_u_f32 vcc, %s, %s' % (v(D + 4), v(D + 5)))
                A('v_cvt_pk_bf16_f32 %s, %s, %s' % (v(D + 9), v(D + 2), v(D + 3)))
            c.rounds(A.new_label('wt' + tg), A.new_label('wo' + tg), L_exit, wl, [W + 4 * k for k in range(3)], wsum, p['wi'], 3, tails, tg)
            A('buffer_store_dwordx2 %s, %s, %s, %s offen %s' % (v(D + 8, 2), v(c.V_MST), ws, s(c.S_NMEM), c.im))
            c.st(w, 2, 10)
            if p['ack'] & 1:
                A('s_waitcnt vmcnt(0)')
                c.st(w, 2, 8)
        else:
            lo, hi = (nC, 64 - nA) if w == 0 else (32, 32 + nD)
            fill = {}
            place(fill, lo, hi, c.zero(c.A_QK, 24), 0, 1, 2)
            xplace(fill, lo, hi, plan['D'])
            if w == 0:
                place(fill, lo, hi, [c.km_store() + c.vm_store()], p['pd'], 1)
                place(fill, lo, hi, c.pwrites(0), 32 - lo + 2, 1)
            if w == 3:
                place(fill, lo, hi, [c.poison_list()], p['pd'], 1)
                if p['touch'] == 1:
                    place(fill, lo, hi, [['s_mov_b64 exec, 0xffff',
                                          'buffer_load_dword %s, %s, %s, %s offen' % (v(c.V_T + 7), v(c.V_TCH), s(c.S_WS, 4), s(c.S_TCH)),
                                          's_mov_b64 exec, -1']], 2, 1)
            if w & 1 and p['touch'] == 2:
                place(fill, lo, hi, [['s_add_u32 %s, %s, 64' % (s(c.S_TCH), s(c.S_TCH))] * (1 if k else 0) +
                                     ['s_buffer_load_dword s6, %s, %s ;poll' % (s(c.S_WS, 4), s(c.S_TCH))] for k in range(16)], 0, 1)
            run(lo, hi, fill)
            if w == 0:
                A('s_waitcnt vmcnt(%d)' % ((32 - nA) // 4))
            if c.diag and w == 0:
                c.dump()
        A('s_mov_b32 %s, %s' % (s(c.S_MEMOFF), s(c.S_NMEM)))
        A('s_add_u32 %s, %s, 1' % (s(c.S_STEP), s(c.S_STEP)))
        A('s_barrier')
        A('s_branch %s' % L_loop)
        if w == 0:
            A.label(L_last)
            emit(c.km_store())
            v_part({})
            v_reduce()
            emit(c.vm_store())
            A('s_branch %s' % L_done)
        for t in tails:
            t()
```

```python
import sys
sys.path.insert(0, 'gen')
from common import *
from chain2 import *
from chain3 import Chain3
from gside import *
from attn import Attn
from build_chain2 import ticket
from build_g import other_side
import gemm

OI = 0x9000000
OP = 0xA000000


def k_main(prm):
    A = Asm()
    c = Chain3(A, prm=prm)
    g = GSide(A, tag='g')
    A('s_cmp_ge_u32 s2, 256')
    A('s_cbranch_scc1 L_end')
    A('s_load_dwordx2 s[4:5], s[0:1], %d' % K_DBG)
    A('s_load_dwordx2 s[6:7], s[0:1], %d' % K_WS)
    A('s_getreg_b32 %s, hwreg(HW_REG_XCC_ID, 0, 4)' % s(c.S_X))
    A('s_waitcnt lgkmcnt(0)')
    srd(A, c.S_WS, 6, WS_BYTES)
    srd(A, c.S_DB, 4, 256)
    ticket(A, c.S_X, c.S_J, c.S_DB)
    A('s_cmp_ge_u32 %s, 32' % s(c.S_J))
    A('s_cbranch_scc1 L_end')
    A('s_cmp_ge_u32 %s, 4' % s(c.S_X))
    A('s_cbranch_scc1 L_other')
    c.setup()
    c.initial_poison()
    A('s_waitcnt vmcnt(0)')
    A('s_barrier')
    A('s_cmp_lg_u32 %s, 0' % s(c.S_WAVE))
    A('s_cbranch_scc1 L_arr')
    A('v_mov_b32 %s, %d' % (v(c.V_T + 1), C_START))
    A('s_mov_b64 exec, 1')
    A('buffer_atomic_add %s, %s, %s, 0 offen sc1' % (v(c.V_C1), v(c.V_T + 1), s(c.S_DB, 4)))
    A('s_mov_b64 exec, -1')
    A.label('L_arr')
    c.load_weights(C_XI, 'L_end')

    def start_wait(L_exit):
        t = c.V_T + 4
        A('v_mov_b32 %s, %d' % (v(t + 1), C_START))
        poll_dword(A, c.S_DB, t + 1, t, c.S_T, c.S_CNT, lambda st: A('s_cmp_ge_u32 %s, 128' % s(st)), L_exit, 'sb')
    c.prologue2(start_wait, 'L_end', 'L_end')
    A.label('L_other')
    other_side(A, c.S_X, c.S_J, c.S_WS, c.S_DB, g, 'L_end', 'L_end', 'L_end')
    A.label('L_end')
    A('s_endpgm')
    return finish(A)


def k_attn():
    A = Asm()
    c = Attn(A)
    A('s_cmp_ge_u32 s2, 512')
    A('s_cbranch_scc1 L_aend')
    A('s_load_dwordx2 s[6:7], s[0:1], %d' % K_WS)
    A('v_and_b32 v1, 63, v0')
    A('v_lshrrev_b32 v2, 6, v0')
    A('s_nop 0')
    A('v_readfirstlane_b32 s3, v2')
    A('s_lshl_b32 s20, s2, 2')
    A('s_add_u32 s20, s20, s3')
    c.setup()
    A('s_waitcnt lgkmcnt(0)')
    srd(A, 8, 6, WS_BYTES)
    ws = 's[8:11]'
    A('s_lshl_b32 s21, s20, 13')
    A('s_lshl_b32 s22, s20, 11')
    for k, base in enumerate((QX, QX + 4096, KX, KX + 4096, VT, VT + 4096)):
        A('s_add_u32 s%d, s21, 0x%x' % (24 + k, base))
    A('s_add_u32 s30, s22, 0x%x' % KM)
    A('s_add_u32 s31, s22, 0x%x' % VM)
    A('s_lshr_b32 s23, s20, 5')
    A('s_lshl_b32 s32, s23, 7')
    A('s_add_u32 s32, s32, 0x%x' % GV)

    def ld4(dst, sreg):
        for q in range(4):
            A('buffer_load_dwordx4 %s, %s, %s, s%d offen offset:%d' % (v(dst + 4 * q, 4), v(c.V_L16), ws, sreg, q * 1024))
    ld4(c.V_Q, 24)
    for q in range(4):
        A('buffer_load_dwordx4 %s, %s, %s, s30 offen offset:%d' % (v(c.V_KM + 4 * q, 4), v(c.V_KMA), ws, q * 512))
    ld4(c.V_K, 26)
    ld4(c.V_VT, 28)
    ld4(c.V_VT + 16, 29)
    for et in range(8):
        A('buffer_load_dwordx2 %s, %s, %s, s31 offen offset:%d' % (v(c.V_VM + 2 * et, 2), v(c.V_VMA), ws, et * 256))
    for tq in range(2):
        A('buffer_load_dword %s, %s, %s, s32 offen offset:%d' % (v(c.V_G + tq), v(c.V_N4), ws, tq * 64))
    ld4(c.V_Q + 16, 25)
    ld4(c.V_K + 16, 27)
    A('s_lshr_b32 s33, s23, 3')
    A('s_lshl_b32 s33, s33, 5')
    A('s_and_b32 s34, s20, 31')
    A('s_add_u32 s33, s33, s34')
    A('s_lshl_b32 s33, s33, 4')
    A('s_and_b32 s34, s23, 7')
    A('s_add_u32 s33, s33, s34')
    A('s_lshl_b32 s33, s33, 12')
    A('s_add_u32 s33, s33, 0x%x' % OI)
    A('s_add_u32 s34, s33, 0x8000')
    for tq in range(2):
        A('s_waitcnt vmcnt(%d)' % (26 if tq == 0 else 4))
        c.scores(tq)
        c.softmax(tq)
        if tq == 0:
            A('s_waitcnt vmcnt(8)')
        c.pv(range(8), c.V_G + tq)
        for eg in range(4):
            A('buffer_store_dwordx4 %s, %s, %s, s%d offen offset:%d' % (v(c.V_PK + eg * 4, 4), v(c.V_L16), ws, 33 + (eg >> 1), tq * 2048 + (eg & 1) * 1024))
    A.label('L_aend')
    A('s_endpgm')
    return finish(A)


def k_out():
    A = Asm()
    g = GSide(A, tag='o')
    c = g.c
    U = g.S_U
    A('s_cmp_ge_u32 s2, 128')
    A('s_cbranch_scc1 L_oend')
    A('s_load_dwordx2 s[4:5], s[0:1], %d' % K_DBG)
    A('s_load_dwordx2 s[6:7], s[0:1], %d' % K_WS)
    A('s_load_dwordx2 %s, s[0:1], %d' % (s(g.P_WD, 2), K_WO))
    A('s_load_dwordx2 %s, s[0:1], %d' % (s(g.P_OUT, 2), K_OUT))
    c.setup()
    A('s_and_b32 %s, s2, 7' % s(g.S_RB))
    A('s_bfe_u32 %s, s2, 0x20003' % s(g.S_CB))
    A('s_lshr_b32 %s, s2, 5' % s(g.S_TY))
    A('s_and_b32 %s, s2, 31' % s(g.S_J))
    A('s_waitcnt lgkmcnt(0)')
    srd(A, c.S_WS, 6, WS_BYTES)
    srd(A, g.S_DB, 4, 256)
    srd(A, g.S_OUT, g.P_OUT, 4 * MB)
    srd(A, c.S_A, 6, WS_BYTES)
    srd(A, c.S_B, g.P_WD, 8 * MB)
    A('s_mov_b32 %s, 8' % s(c.S_CNT))
    A('s_lshl_b32 %s, %s, 21' % (s(c.S_SB), s(g.S_TY)))
    A('s_lshl_b32 %s, %s, 2' % (s(U), s(g.S_RB)))
    A('s_add_u32 %s, %s, %s' % (s(U), s(U), s(g.S_TY)))
    A('s_lshl_b32 %s, %s, 19' % (s(U), s(U)))
    A('s_add_u32 %s, %s, 0x%x' % (s(c.S_SA), s(U), OI))
    c.lds_addr_frag()
    c.lds_addr_w(perm=True)
    c.dma_addr_frag()
    A('s_lshl_b32 %s, %s, 9' % (s(U), s(g.S_CB)))
    A('s_lshl_b32 %s, %s, 8' % (s(U + 1), s(c.S_WM)))
    A('s_add_u32 %s, %s, %s' % (s(U), s(U), s(U + 1)))
    c.dma_addr_w(U, 2048, perm=True)
    c.prologue()
    c.tile_start(True)
    c.main(True, c.null_switch)
    A('s_lshl_b32 %s, %s, 1' % (s(U), s(g.S_RB)))
    A('s_add_u32 %s, %s, %s' % (s(U), s(U), s(c.S_WM)))
    A('s_lshl_b32 %s, %s, 18' % (s(U + 6), s(U)))
    A('s_lshl_b32 %s, %s, 5' % (s(U), s(U)))
    A('s_add_u32 %s, %s, %s' % (s(U), s(U), s(g.S_CB)))
    A('s_lshl_b32 %s, %s, 1' % (s(U), s(U)))
    A('s_add_u32 %s, %s, %s' % (s(U), s(U), s(c.S_WN)))
    A('s_lshl_b32 %s, %s, 12' % (s(g.S_EB), s(U)))
    A('s_and_b32 %s, %s, 7' % (s(U), s(U)))
    A('s_lshl_b32 %s, %s, 8' % (s(U), s(U)))
    A('s_add_u32 %s, %s, %s' % (s(U + 6), s(U + 6), s(U)))
    A('s_lshl_b32 %s, %s, 2' % (s(U + 5), s(g.S_J)))
    A('s_add_u32 %s, %s, %d' % (s(U + 5), s(U + 5), C_FT))
    A('s_cmp_eq_u32 %s, 3' % s(g.S_TY))
    A('s_cbranch_scc1 L_oown')
    A('s_lshl_b32 %s, %s, 22' % (s(U), s(g.S_TY)))
    A('s_add_u32 %s, %s, %s' % (s(U), s(U), s(g.S_EB)))
    A('s_add_u32 %s, %s, 0x%x' % (s(U), s(U), OP))
    c.epi_frag(U, lambda fg, tm: tm * 32768 + fg * 1024)
    A('s_mov_b32 %s, 1' % s(U + 1))
    signal(A, c, g.S_DB, U + 5, U + 1, 'o')
    A('s_endpgm')
    A.label('L_oown')
    A('v_mov_b32 %s, %s' % (v(c.V_T + 2), s(U + 5)))
    poll_dword(A, g.S_DB, c.V_T + 2, c.V_T + 3, U + 2, U + 3, lambda st: A('s_cmp_ge_u32 %s, 3' % s(st)), 'L_oend', 'o')
    for k in range(3):
        A('s_add_u32 %s, %s, 0x%x' % (s(U + k), s(g.S_EB), OP + k * 4 * MB))
    A('s_add_u32 %s, %s, 0x%x' % (s(U + 3), s(g.S_EB), BB))
    epi_combine(A, c, [U, U + 1, U + 2, U + 3], 'out', U + 6, g.S_OUT)
    A.label('L_oend')
    A('s_endpgm')
    return finish(A)


if __name__ == '__main__':
    from mkco import mkco
    p = sys.argv[1] if len(sys.argv) > 1 else 'cdna_kernels/%s.s' % NAME
    prm = dict(touch=1, pf=0)
    for o in sys.argv[2:]:
        k, x = o.split('=')
        prm[k] = int(x)
    write_file(p, [(NAME + '_kernel', 256, 256, 147456), ('attn_kernel', 512, 256, 0), ('outp_kernel', 128, 256, 147456)],
               [(NAME + '_kernel', k_main(prm), 512, 256), ('attn_kernel', k_attn(), 224, 224), ('outp_kernel', k_out(), 512, 256)])
    mkco(p)
```

```python
import re

TRANS = ('v_exp_f32', 'v_log_f32', 'v_rcp_f32', 'v_rsq_f32', 'v_sqrt_f32', 'v_sin_f32', 'v_cos_f32',
         'v_rcp_iflag_f32')

REG_RE = re.compile(r'^(v|a|s)(\d+)$')
RNG_RE = re.compile(r'^(v|a|s)\[(\d+):(\d+)\]$')


def regs_of(op):
    op = op.strip()
    if op.startswith('-'):
        op = op[1:]
    if op.startswith('|') and op.endswith('|'):
        op = op[1:-1]
    if op.startswith('abs(') or op.startswith('neg('):
        op = op[4:-1]
    m = REG_RE.match(op)
    if m:
        return [(m.group(1), int(m.group(2)))]
    m = RNG_RE.match(op)
    if m:
        return [(m.group(1), i) for i in range(int(m.group(2)), int(m.group(3)) + 1)]
    if op in ('vcc',):
        return [('s', 'vcc_lo'), ('s', 'vcc_hi')]
    if op in ('vcc_lo', 'vcc_hi', 'm0', 'exec_lo', 'exec_hi', 'scc'):
        return [('s', op)]
    if op == 'exec':
        return [('s', 'exec_lo'), ('s', 'exec_hi')]
    return []


class Ins:
    __slots__ = ('text', 'mn', 'ops', 'mods', 'dst', 'src', 'kind', 'passes', 'srcc', 'srcab', 'label',
                 'target', 'states', 'is_dpp', 'is_trans', 'lds_dma', 'wide_store', 'store_data', 'comment',
                 'opsel')

    def __init__(self, text):
        self.text = text
        self.label = None
        self.target = None
        self.dst = []
        self.src = []
        self.srcc = []
        self.srcab = []
        self.store_data = []
        self.kind = 'other'
        self.passes = 0
        self.states = 1
        self.is_dpp = False
        self.is_trans = False
        self.lds_dma = False
        self.wide_store = False
        self.opsel = False
        t = text.split(';')[0].strip()
        if t.endswith(':'):
            self.label = t[:-1]
            self.kind = 'label'
            self.states = 0
            self.mn = ''
            return
        if t == '' or t.startswith('.'):
            self.kind = 'directive'
            self.states = 0
            self.mn = ''
            return
        parts = t.split(None, 1)
        mn = parts[0]
        self.mn = mn
        rest = parts[1] if len(parts) > 1 else ''
        ops = []
        depth = 0
        cur = ''
        for ch in rest:
            if ch in '[(':
                depth += 1
            if ch in '])':
                depth -= 1
            if ch == ',' and depth == 0:
                ops.append(cur.strip())
                cur = ''
            else:
                cur += ch
        if cur.strip():
            ops.append(cur.strip())
        mods = ''
        if ops:
            last = ops[-1].split(None, 1)
            if len(last) > 1 and not ops[-1].startswith('hwreg'):
                ops[-1] = last[0]
                mods = last[1]
        self.ops = ops
        self.mods = mods
        R = [regs_of(o) for o in ops]
        allr = lambda L: [r for x in L for r in x]
        if mn.startswith('v_mfma') or mn.startswith('v_smfmac'):
            self.kind = 'mfma'
            if '32x32' in mn:
                self.passes = 8
            elif '16x16' in mn:
                self.passes = 4
            else:
                self.passes = 2
            if mn.startswith('v_smfmac'):
                self.passes = 4 if '16x16' in mn else 8
                self.dst = R[0]
                self.srcab = R[1] + R[2] + R[3]
                self.srcc = R[0]
            else:
                self.dst = R[0]
                self.srcab = R[1] + R[2]
                self.srcc = R[3]
            self.src = self.srcab + self.srcc
        elif mn.startswith('v_'):
            self.kind = 'valu'
            base = mn.replace('_e32', '').replace('_e64', '').replace('_dpp', '').replace('_sdwa', '')
            self.is_trans = base in TRANS
            self.is_dpp = any(k in mods for k in ('row_', 'quad_perm', 'wave_')) or mn.endswith('_dpp')
            self.opsel = ('op_sel' in mods and not mn.startswith('v_pk_')) or 'sdwa' in mn or 'dst_sel' in mods
            if mn.startswith('v_cmp'):
                self.dst = R[0]
                self.src = allr(R[1:])
                if mn.startswith('v_cmpx'):
                    raise ValueError('v_cmpx not supported')
            elif mn.startswith('v_permlane') and 'swap' in mn:
                self.dst = R[0] + R[1]
                self.src = R[0] + R[1]
            elif mn.startswith('v_swap'):
                self.dst = R[0] + R[1]
                self.src = R[0] + R[1]
            elif '_co_' in mn or mn.startswith('v_div_scale'):
                self.dst = R[0] + R[1]
                self.src = allr(R[2:])
            elif mn == 'v_nop':
                pass
            else:
                self.dst = R[0]
                self.src = allr(R[1:])
                if base.startswith('v_fmac') or base.startswith('v_mac') or base.startswith('v_writelane') \
                        or self.is_dpp or base.startswith('v_dot') and base.endswith('c_f32_bf16'):
                    self.src = self.src + R[0]
                if base.startswith('v_cndmask') and len(ops) == 3:
                    self.src = self.src + regs_of('vcc')
        elif mn.startswith('buffer_') or mn.startswith('global_') or mn.startswith('flat_'):
            self.kind = 'vmem'
            modl = mods.split()
            if 'lds' in modl or '_lds_' in mn:
                self.lds_dma = True
                self.src = allr(R) + regs_of('m0')
            elif 'store' in mn:
                self.src = allr(R)
                self.store_data = R[0] if mn.startswith('buffer_') else R[1]
                self.wide_store = 'x3' in mn or 'x4' in mn
            elif 'atomic' in mn:
                if mn.startswith('buffer_'):
                    self.src = allr(R)
                    if 'sc0' in modl:
                        self.dst = R[0]
                else:
                    if 'sc0' in modl:
                        self.dst = R[0]
                        self.src = allr(R[1:])
                    else:
                        self.src = allr(R)
            else:
                self.dst = R[0]
                self.src = allr(R[1:])
        elif mn.startswith('ds_'):
            self.kind = 'ds'
            if 'write' in mn or ('_add_' in mn and 'rtn' not in mn):
                self.src = allr(R)
            else:
                self.dst = R[0]
                self.src = allr(R[1:])
        elif mn.startswith('s_'):
            self.kind = 'salu'
            if mn == 's_nop':
                self.states = int(ops[0], 0) + 1
            elif mn.startswith('s_cbranch') or mn == 's_branch':
                self.kind = 'branch'
                self.target = ops[0]
            elif mn in ('s_waitcnt', 's_barrier', 's_endpgm', 's_setprio', 's_sleep'):
                pass
            elif mn.startswith('s_load') or mn.startswith('s_buffer_load') or mn.startswith('s_memtime') \
                    or mn.startswith('s_memrealtime'):
                self.kind = 'smem'
                self.dst = R[0]
                self.src = allr(R[1:])
            elif mn.startswith('s_cmp') or mn.startswith('s_bitcmp'):
                self.src = allr(R)
            else:
                self.dst = R[0] if R else []
                self.src = allr(R[1:])
                if 'saveexec' in mn:
                    self.dst = self.dst + regs_of('exec')
        else:
            raise ValueError('unknown instruction: ' + text)


def need_states(p, c):
    n = 0
    vp = [r for r in p.dst if r[0] in 'va']
    sp = [r for r in p.dst if r[0] == 's']
    csrc = set(c.src)
    cdst = set(c.dst)
    if p.kind == 'valu':
        hit_v = any(r in csrc for r in vp)
        hit_s = any(r in csrc for r in sp)
        if hit_v:
            if c.kind == 'mfma':
                n = max(n, 2)
            if c.kind == 'valu':
                if c.is_dpp:
                    n = max(n, 2)
                if c.mn.startswith('v_permlane'):
                    n = max(n, 2)
                if c.mn.startswith('v_readlane') or c.mn.startswith('v_readfirstlane'):
                    n = max(n, 1)
                if p.is_trans and not c.is_trans:
                    n = max(n, 1)
                if p.opsel:
                    n = max(n, 1)
            if p.is_trans and c.kind in ('vmem', 'ds'):
                n = max(n, 1)
        if p.opsel and c.kind == 'valu' and any(r in cdst for r in vp):
            n = max(n, 1)
        if p.mn.startswith('v_dot') and (hit_v or any(r in cdst for r in vp)):
            acc = regs_of(c.ops[0] if c.mn.startswith('v_dot2c') else c.ops[-1]) if c.mn == p.mn else []
            oth = [r for o in c.ops[1:3] for r in regs_of(o)] if c.mn == p.mn else []
            if not (c.mn == p.mn and any(r in acc for r in vp) and not any(r in oth for r in vp)):
                n = max(n, 3)
        if hit_s:
            if c.kind == 'vmem':
                n = max(n, 5)
            if c.kind == 'valu':
                n = max(n, 4 if (c.mn.startswith('v_readlane') or c.mn.startswith('v_writelane')) else 2)
            if c.kind == 'smem':
                n = max(n, 1)
    if p.kind == 'mfma':
        d = set(p.dst)
        if c.kind == 'mfma':
            if any(r in d for r in c.srcab):
                n = max(n, p.passes + 4)
            if any(r in d for r in c.srcc):
                if c.srcc == p.dst and c.passes == p.passes and c.mn == p.mn:
                    n = max(n, 2 if p.passes == 2 else 0)
                else:
                    n = max(n, p.passes + 2)
            elif any(r in d for r in c.dst):
                n = max(n, p.passes + 2)
        elif c.kind in ('valu', 'vmem', 'ds'):
            if any(r in d for r in c.src) or any(r in d for r in c.dst):
                n = max(n, p.passes + 4)
        if c.kind in ('valu', 'ds', 'vmem') and any(r in cdst for r in p.srcc):
            n = max(n, p.passes - 1)
    if p.kind == 'salu' and ('s', 'm0') in p.dst and c.kind == 'vmem' and c.lds_dma:
        n = max(n, 1)
    if p.kind == 'vmem' and p.wide_store and any(r in cdst for r in p.store_data):
        n = max(n, 2 if c.kind in ('valu', 'mfma') else 1)
    return n


class Asm:
    def __init__(self):
        self.lines = []
        self.uid = 0

    def __call__(self, text):
        for t in text.split('\n'):
            t = t.strip()
            if t:
                self.lines.append(t)

    def label(self, name):
        self.lines.append(name + ':')

    def new_label(self, stem='L'):
        self.uid += 1
        return '%s_%d' % (stem, self.uid)

    def comment(self, text):
        self.lines.append('; ' + text)


def hazard_pass(lines, verbose=False):
    ins = [Ins(t) for t in lines]
    MAXD = 21
    changed = True
    total = 0
    rounds = 0
    while changed:
        changed = False
        rounds += 1
        branches = {}
        for k, x in enumerate(ins):
            if x.kind == 'branch':
                branches.setdefault(x.target, []).append(k)
        k = 0
        while k < len(ins):
            c = ins[k]
            if c.kind in ('label', 'directive') or (not c.src and not c.dst):
                k += 1
                continue
            worst = 0
            stack = [(k - 1, 0)]
            seen = set()
            while stack:
                j, dist = stack.pop()
                while j >= 0 and dist < MAXD:
                    if (j, dist) in seen:
                        break
                    seen.add((j, dist))
                    p = ins[j]
                    if p.kind == 'label':
                        for b in branches.get(p.label, []):
                            stack.append((b, dist))
                        j -= 1
                        jj = j
                        while jj >= 0 and ins[jj].kind in ('label', 'directive'):
                            jj -= 1
                        if jj >= 0 and ins[jj].mn in ('s_branch', 's_endpgm') and all(
                                ins[q].kind != 'label' for q in range(jj + 1, j + 1)):
                            break
                        continue
                    if p.kind == 'directive':
                        j -= 1
                        continue
                    need = need_states(p, c)
                    if need > dist:
                        worst = max(worst, need - dist)
                    dist += p.states
                    j -= 1
            if worst > 0:
                ins.insert(k, Ins('s_nop %d' % (worst - 1)))
                total += 1
                if verbose:
                    print('hazard: s_nop %d before %s' % (worst - 1, c.text))
                for t in branches:
                    branches[t] = [b + 1 if b >= k else b for b in branches[t]]
                k += 1
                changed = True
            k += 1
        if rounds > 5:
            break
    return [x.text for x in ins]


WAIT_RE = re.compile(r'(vmcnt|lgkmcnt)\((\d+)\)')


def waitcnt_check(lines, max_states=6):
    ins = [Ins(t) for t in lines]
    labels = {x.label: k for k, x in enumerate(ins) if x.kind == 'label'}
    errs = []
    dsts = [frozenset(x.dst) for x in ins]
    touched = [frozenset(x.src) | frozenset(x.dst) for x in ins]
    srcs = [frozenset(x.src) for x in ins]
    seen = {}
    work = [(0, (), ())]
    while work:
        k, vm, lg = work.pop()
        while k < len(ins):
            x = ins[k]
            if x.kind == 'label':
                st = seen.setdefault(k, [])
                key = (vm, lg)
                if key in st or len(st) >= max_states:
                    break
                st.append(key)
                k += 1
                continue
            if x.kind == 'directive':
                k += 1
                continue
            if x.mn == 's_waitcnt':
                for name, n in WAIT_RE.findall(x.text):
                    n = int(n)
                    if name == 'vmcnt':
                        if len(vm) > n:
                            vm = vm[len(vm) - n:]
                    else:
                        nsm = sum(1 for e in lg if ins[e].kind == 'smem')
                        if n > 0 and nsm:
                            ds = [e for e in lg if ins[e].kind != 'smem']
                            done = set(ds[:max(0, len(ds) - n)])
                            lg = tuple(e for e in lg if e not in done)
                        elif len(lg) > n:
                            lg = lg[len(lg) - n:]
                k += 1
                continue
            if x.mn == 's_endpgm':
                break
            if touched[k] and ';poll' not in x.text:
                for q in (vm, lg):
                    for e in q:
                        if dsts[e] & touched[k]:
                            if not (srcs[k] & dsts[e]) and x.kind in ('vmem', 'ds') and ins[e].kind == x.kind:
                                continue
                            errs.append('uncovered: "%s" (line %d) touches result of "%s"' % (x.text, k, ins[e].text))
            if x.kind == 'vmem':
                vm = (vm + (k,))[-64:]
            elif x.kind in ('ds', 'smem'):
                lg = (lg + (k,))[-16:]
            while vm and not dsts[vm[0]]:
                vm = vm[1:]
            while lg and not dsts[lg[0]] and ins[lg[0]].kind != 'smem':
                lg = lg[1:]
            if x.kind == 'branch':
                if x.target in labels:
                    work.append((labels[x.target], vm, lg))
                if x.mn == 's_branch':
                    break
            k += 1
    out = []
    for e in errs:
        if e not in out:
            out.append(e)
    return out


def v(i, n=1):
    return 'v%d' % i if n == 1 else 'v[%d:%d]' % (i, i + n - 1)


def a(i, n=1):
    return 'a%d' % i if n == 1 else 'a[%d:%d]' % (i, i + n - 1)


def s(i, n=1):
    return 's%d' % i if n == 1 else 's[%d:%d]' % (i, i + n - 1)
```

```python
from asm import *
from layout import *

MF = 'v_mfma_f32_16x16x32_bf16 %s, %s, %s, %s'
MF16 = 'v_mfma_f32_16x16x16_bf16 %s, %s, %s, %s'


def weave(*lists):
    out = []
    n = max(len(l) for l in lists)
    for k in range(n):
        for l in lists:
            if k < len(l):
                out.append(l[k])
    return out


class Attn2:
    S_MK, S_CSC = 88, 96
    V_ONE, V_KMA, V_L8, V_NINF = 120, 124, 125, 126
    V_T = 28
    V_S = 32
    V_P = 52
    V_PM1 = 248
    V_SUM = 252
    V_O = 64
    V_PK = 96
    V_Q, V_K, V_KM, V_VT, V_VM = 128, 160, 192, 208, 240

    def __init__(self, A, V_L, V_L16, S_WS):
        self.A, self.V_L, self.V_L16, self.S_WS = A, V_L, V_L16, S_WS

    def setup(self):
        A, c = self.A, self
        g, n, t = c.V_T, c.V_T + 1, c.V_T + 2
        A('v_lshrrev_b32 %s, 4, %s' % (v(g), v(c.V_L)))
        A('v_and_b32 %s, 15, %s' % (v(n), v(c.V_L)))
        A('v_lshrrev_b32 %s, 2, %s' % (v(t), v(n)))
        A('v_and_b32 %s, 1, %s' % (v(t + 1), v(n)))
        A('v_lshl_add_u32 %s, %s, 1, %s' % (v(t), v(t), v(t + 1)))
        A('v_lshlrev_b32 %s, 4, %s' % (v(t), v(t)))
        A('v_lshl_add_u32 %s, %s, 7, %s' % (v(c.V_KMA), v(g), v(t)))
        A('v_lshlrev_b32 %s, 3, %s' % (v(c.V_L8), v(c.V_L)))
        A('v_add_u32 %s, 512, %s' % (v(c.V_L8), v(c.V_L8)))
        A('v_lshlrev_b32 %s, 2, %s' % (v(t), v(g)))
        for r in range(4):
            A('v_add_u32 %s, %d, %s' % (v(t + 1), r, v(t)))
            A('v_cmp_le_u32 %s, %s, %s' % (s(c.S_MK + 2 * r, 2), v(t + 1), v(n)))
            A('v_mov_b32 %s, 0x3f803f80' % v(c.V_ONE + r))
        A('v_mov_b32 %s, 0xff800000' % v(c.V_NINF))
        A('s_mov_b32 %s, 0x3e0293ee' % s(c.S_CSC))

    def ld8(self, dst, s0, s1):
        return ['buffer_load_dwordx4 %s, %s, %s, %s offen offset:%d' % (v(dst + 4 * q, 4), v(self.V_L16), s(self.S_WS, 4), s(s1 if q >> 2 else s0), (q & 3) * 1024)
                for q in range(8)]

    def ld_km(self, E, off):
        return ['buffer_load_dwordx4 %s, %s, %s, %s offen offset:%d' % (v(self.V_KM + 4 * q, 4), v(self.V_KMA), s(self.S_WS, 4), s(E + q), off) for q in range(4)]

    def ld_vm(self, E, off):
        return ['buffer_load_dwordx2 %s, %s, %s, %s offen offset:%d' % (v(self.V_VM + 2 * q, 2), v(self.V_L8), s(self.S_WS, 4), s(E + q), off) for q in range(4)]

    def scores(self):
        c, S, out = self, self.V_S, []
        for eg in range(4):
            for d, k, tq in ((S, c.V_KM, 0), (S + 4, c.V_K, 0), (S + 8, c.V_KM, 1), (S + 12, c.V_K, 1), (S + 16, c.V_K + 16, 1)):
                out.append(MF % (v(d, 4), v(k + eg * 4, 4), v(c.V_Q + (tq * 4 + eg) * 4, 4), v(d, 4) if eg else '0'))
        return out

    def softmax(self, tq):
        c, out = self, []
        A = out.append
        S = c.V_S + 8 * tq
        m, t = c.V_T + 2 * tq, c.V_T + 2 * tq + 1
        vals = [S, S + 1] + list(range(S + 4, S + 8 + 4 * tq))
        for r in range(4):
            d = S + 4 + 4 * tq + r
            A('v_cndmask_b32 %s, %s, %s, %s' % (v(d), v(c.V_NINF), v(d), s(c.S_MK + 2 * r, 2)))
        A('v_max3_f32 %s, %s, %s, %s' % (v(m), v(vals[0]), v(vals[1]), v(vals[2])))
        for k in range(3, len(vals) - 1, 2):
            A('v_max3_f32 %s, %s, %s, %s' % (v(m), v(m), v(vals[k]), v(vals[k + 1])))
        A('v_max_f32 %s, %s, %s' % (v(m), v(m), v(vals[-1])))
        for sw in ('16', '32'):
            A('v_mov_b32 %s, %s' % (v(t), v(m)))
            A('v_permlane%s_swap_b32 %s, %s' % (sw, v(m), v(t)))
            A('v_max_f32 %s, %s, %s' % (v(m), v(m), v(t)))
        A('v_mul_f32 %s, %s, %s' % (v(m), s(c.S_CSC), v(m)))
        for r in vals:
            A('v_fma_f32 %s, %s, %s, -%s' % (v(r), v(r), s(c.S_CSC), v(m)))
        for r in vals:
            A('v_exp_f32 %s, %s' % (v(r), v(r)))
        P, PM = c.V_P + 4 * tq, (c.V_PM1 if tq else c.V_P + 8)
        A('v_mov_b32 %s, 0' % v(PM + 1))
        A('v_mov_b32 %s, 0' % v(PM + 2))
        A('v_cvt_pk_bf16_f32 %s, %s, %s' % (v(PM), v(S), v(S + 1)))
        A('v_cvt_pk_bf16_f32 %s, %s, %s' % (v(PM + 3), v(S), v(S + 1)))
        for q in range(4 if tq else 2):
            A('v_cvt_pk_bf16_f32 %s, %s, %s' % (v(P + q), v(S + 4 + 2 * q), v(S + 5 + 2 * q)))
        return out

    def pv(self, tq):
        c, out = self, []
        A = out.append
        P, PM = c.V_P + 4 * tq, (c.V_PM1 if tq else c.V_P + 8)
        w = 4 if tq else 2
        M = MF if tq else MF16
        A(M % (v(c.V_SUM, 4), v(c.V_ONE, w), v(P, w), '0'))
        for et in range(8):
            A(M % (v(c.V_O + et * 4, 4), v(c.V_VT + et * 4, w), v(P, w), '0'))
        A(MF16 % (v(c.V_SUM, 4), v(c.V_ONE, 2), v(PM, 2), v(c.V_SUM, 4)))
        for et in range(8):
            A(MF16 % (v(c.V_O + et * 4, 4), v(c.V_VM + (et >> 1) * 2, 2), v(PM + 2 * (et & 1), 2), v(c.V_O + et * 4, 4)))
        return out

    def scale(self, vg):
        c, out = self, []
        A = out.append
        t = c.V_T
        A('v_rcp_f32 %s, %s' % (v(t), v(c.V_SUM)))
        A('v_mul_f32 %s, %s, %s' % (v(t), v(t), v(vg)))
        for et in range(8):
            o = c.V_O + et * 4
            for r in (0, 2):
                A('v_pk_mul_f32 %s, %s, %s op_sel_hi:[1,0]' % (v(o + r, 2), v(o + r, 2), v(t, 2)))
            for r in (0, 2):
                A('v_cvt_pk_bf16_f32 %s, %s, %s' % (v(c.V_PK + et * 2 + r // 2), v(o + r), v(o + r + 1)))
        return out

    def stores(self, s0, s1, off, mod):
        return ['buffer_store_dwordx4 %s, %s, %s, %s offen offset:%d %s' % (v(self.V_PK + eg * 4, 4), v(self.V_L16), s(self.S_WS, 4), s(s1 if eg >> 1 else s0),
                                                                           off + (eg & 1) * 1024, mod) for eg in range(4)]
```

```python
import sys
sys.path.insert(0, 'gen')
from common import *
from chain2 import *
from chain4 import Chain4
from chain5 import Chain5
import re


def ticket(A, sx, sj, srd_dbg):
    A('v_lshrrev_b32 v1, 6, v0')
    A('s_nop 0')
    A('v_readfirstlane_b32 s3, v1')
    A('s_cmp_lg_u32 s3, 0')
    A('s_cbranch_scc1 L_tk')
    A('v_mov_b32 v1, 1')
    A('s_lshl_b32 s3, %s, 2' % s(sx))
    A('v_mov_b32 v2, s3')
    A('s_mov_b64 exec, 1')
    A('buffer_atomic_add v1, v2, %s, 0 offen sc0 sc1' % s(srd_dbg, 4))
    A('s_waitcnt vmcnt(0)')
    A('v_mov_b32 v2, 0')
    A('ds_write_b32 v2, v1')
    A('s_waitcnt lgkmcnt(0)')
    A('s_mov_b64 exec, -1')
    A.label('L_tk')
    A('s_barrier')
    A('v_mov_b32 v2, 0')
    A('ds_read_b32 v1, v2')
    A('s_waitcnt lgkmcnt(0)')
    A('v_readfirstlane_b32 %s, v1' % s(sj))
    A('s_barrier')


def build(path, opts):
    prm = {}
    for o in opts:
        m = re.match(r'^([a-zA-Z]+[a-zA-Z0-9]*?)=(\d+)$', o)
        if m:
            prm[m.group(1)] = int(m.group(2))
    diag = 'diag' in opts
    A = Asm()
    c = (Chain4 if 'c4' in opts else Chain5)(A, diag=diag, prm=prm)
    L_exit, L_done = 'L_exit', 'L_done'
    A('s_cmp_ge_u32 s2, 256')
    A('s_cbranch_scc1 L_end')
    A('s_load_dwordx2 s[4:5], s[0:1], %d' % K_DBG)
    A('s_load_dwordx2 s[6:7], s[0:1], %d' % K_WS)
    A('s_getreg_b32 %s, hwreg(HW_REG_XCC_ID, 0, 4)' % s(c.S_X))
    A('s_waitcnt lgkmcnt(0)')
    srd(A, c.S_WS, 6, WS_BYTES)
    srd(A, c.S_DB, 4, 256)
    ticket(A, c.S_X, c.S_J, c.S_DB)
    A('s_cmp_ge_u32 %s, 32' % s(c.S_J))
    A('s_cbranch_scc1 L_end')
    A('s_cmp_ge_u32 %s, 4' % s(c.S_X))
    A('s_cbranch_scc1 L_end')
    A('s_memtime s[100:101]')
    c.prologue(L_exit, L_done)
    A.label(L_exit)
    A('v_mov_b32 %s, 0xdead' % v(c.V_T))
    A('v_mov_b32 %s, 104' % v(c.V_T + 1))
    A('buffer_store_dword %s, %s, %s, 0 offen sc1' % (v(c.V_T), v(c.V_T + 1), s(c.S_DB, 4)))
    A('s_endpgm')
    A.label(L_done)
    A('s_memtime s[98:99]')
    A('s_memrealtime s[4:5]')
    A('s_lshl_b32 %s, %s, 5' % (s(c.S_T), s(c.S_X)))
    A('s_add_u32 %s, %s, %s' % (s(c.S_T), s(c.S_T), s(c.S_J)))
    A('s_lshl_b32 %s, %s, 2' % (s(c.S_T), s(c.S_T)))
    A('s_add_u32 %s, %s, %s' % (s(c.S_T), s(c.S_T), s(c.S_WAVE)))
    A('s_lshl_b32 %s, %s, 4' % (s(c.S_T + 1), s(c.S_T)))
    A('s_add_u32 %s, %s, 0x%x' % (s(c.S_T + 1), s(c.S_T + 1), DIAG))
    A('s_waitcnt vmcnt(0) lgkmcnt(0)')
    A('s_sub_u32 s4, s4, s2')
    A('v_mov_b32 v40, s100')
    A('v_mov_b32 v41, s98')
    A('v_mov_b32 v42, s4')
    A('v_mov_b32 v43, 0')
    A('s_mov_b64 exec, 1')
    A('buffer_store_dwordx4 v[40:43], v43, %s, %s offen' % (s(c.S_WS, 4), s(c.S_T + 1)))
    A('s_mov_b64 exec, -1')
    if diag:
        A('s_mov_b32 s6, %s' % s(c.S_T))
        A('s_mov_b32 s7, %s' % s(c.S_T + 1))
        c.sync_clock(4)
        A('v_mov_b32 v40, s2')
        A('v_mov_b32 v41, s3')
        A('v_mov_b32 v42, s4')
        A('v_mov_b32 v43, s5')
        A('v_mov_b32 v44, 0')
        A('s_add_u32 s7, s7, 0x4000')
        A('s_mov_b64 exec, 1')
        A('buffer_store_dwordx4 v[40:43], v44, %s, s7 offen' % s(c.S_WS, 4))
        A('s_mov_b64 exec, -1')
        A('s_mov_b32 %s, s6' % s(c.S_T))
        A('s_lshl_b32 %s, %s, 12' % (s(c.S_T), s(c.S_T)))
        A('s_add_u32 %s, %s, 0x%x' % (s(c.S_T), s(c.S_T), DIAG2))
        A('s_lshl_b32 %s, %s, 12' % (s(c.S_T + 1), s(c.S_WAVE)))
        A('s_add_u32 %s, %s, 0x%x' % (s(c.S_T + 1), s(c.S_T + 1), c.L_DG))
        A('v_add_u32 v44, %s, %s' % (s(c.S_T + 1), v(c.V_L16)))
        for q in range(4):
            A('ds_read_b128 v[48:51], v44 offset:%d' % (q * 1024))
            A('s_waitcnt lgkmcnt(0)')
            A('buffer_store_dwordx4 v[48:51], %s, %s, %s offen offset:%d' % (v(c.V_L16), s(c.S_WS, 4), s(c.S_T), q * 1024))
            A('s_waitcnt vmcnt(0)')
    A.label('L_end')
    A('s_endpgm')
    lines = finish(A, verbose=False)
    write_file(path, [(NAME + '_kernel', 256, 256, 147456)], [(NAME + '_kernel', lines, 512, 256)])


if __name__ == '__main__':
    from mkco import mkco
    for spec in sys.argv[1:]:
        opts = spec.split('+')
        p = 'f_%s.s' % spec.replace('+', '_').replace('=', '')
        build(p, opts)
        mkco(p)
```

```python
from asm import *
from layout import *
from chain2 import Chain, srd, MF, POLL_MAX, x_image

MF16 = 'v_mfma_f32_16x16x16_bf16 %s, %s, %s, %s'
SM = 'v_smfmac_f32_16x16x64_bf16 %s, %s, %s, %s'


class Chain3(Chain):
    V_VMF = 148
    V_PM = 152
    V_IDX, V_QW, V_OW, V_QR, V_OR, V_QW2 = 154, 155, 156, 157, 158, 159
    A_QK, A_V, A_WO = 56, 72, 80
    V_WP = 112
    L_QK = 0
    L_V = 12544
    L_WO = 16640
    L_STAGE = 16384
    L_P = 23552
    L_KV = 56320
    L_VM = 60416
    L_FL = 60928
    L_KM = 61440
    V_PRG = 16

    def __init__(self, A, diag=False, nsteps=64, im='', prm=None, tag=''):
        Chain.__init__(self, A, diag, nsteps, im, None, tag)
        p = dict(nA=12, nC=12, touch=2, xl=1, pp=1, sa=3, sb=7, si=3, wi=3, wa=14, wb=17, gd=0, od=0, sel=0, kv=2, wj=1, gl=6, go=3, ack=0, fs=0,
                 xd=6, xs=2, pd=10, pf=1, xm=0, k4=2, k4m=1, pw=0)
        p.update(prm or {})
        self.p = p
        self.inloop = False

    def st(self, w, who, k):
        if self.diag and w == who:
            self.A('s_memtime %s' % s(self.S_ST + 2 * k, 2))

    def sync_clock(self, dst):
        A, c = self.A, self
        T = c.S_T
        L = A.new_label('ck')
        A('s_memrealtime %s' % s(T, 2))
        A('s_waitcnt lgkmcnt(0)')
        A('s_mov_b32 %s, 0' % s(T + 6))
        A.label(L)
        A('s_memrealtime %s' % s(T + 2, 2))
        A('s_memtime %s' % s(T + 4, 2))
        A('s_waitcnt lgkmcnt(0)')
        A('s_add_u32 %s, %s, 1' % (s(T + 6), s(T + 6)))
        A('s_cmp_lt_u32 %s, 1000' % s(T + 6))
        A('s_cselect_b32 %s, %s, -1' % (s(T + 7), s(T + 2)))
        A('s_cmp_eq_u32 %s, %s' % (s(T + 7), s(T)))
        A('s_cbranch_scc1 %s' % L)
        A('s_mov_b32 %s, %s' % (s(dst), s(T + 4)))
        A('s_mov_b32 %s, %s' % (s(dst + 1), s(T + 2)))

    def pmf(self, idx):
        c = self
        tt, t, m = idx >> 5, (idx >> 2) & 7, idx & 3
        acc = v(c.V_PA + tt * 16 + m * 4, 4)
        xf = v(c.V_XF + tt * 32 + t * 4, 4)
        wf = a(((2 + m) * 8 + t) * 4, 4)
        cc = acc if t else '0'
        return MF % ((acc, wf, xf, cc) if m < 2 else (acc, xf, wf, cc))

    def P(self, lo, hi, fill=None):
        if self.p['pp'] == 2 and self.inloop:
            for k in sorted(fill or {}):
                for f in fill[k]:
                    self.A(f)
            return
        Chain.P(self, lo, hi, fill)

    def pwrites(self, tt):
        if self.p['pp'] == 2 and self.inloop:
            return []
        return Chain.pwrites(self, tt)

    def sm(self, acc, k, areg):
        c = self
        return SM % (v(acc, 4), v(c.V_M + 4 * k, 4), a(areg, 8), v(c.V_IDX))

    def fill(self, reg, n, val):
        return ['v_mov_b32 %s, %s' % (v(reg + k), val) for k in range(n)]

    def zero(self, reg, n):
        return ['v_pk_mov_b32 %s, 0, 0' % v(reg + k, 2) for k in range(0, n, 2)] if 0 else self.fill(reg, n, '0')

    def chk(self, reg, dst, t):
        return ['v_max3_u32 %s, %s, %s, %s' % (v(t), v(reg), v(reg + 1), v(reg + 2)),
                'v_max_u32 %s, %s, %s' % (v(t), v(t), v(reg + 3)),
                'v_cmp_eq_u32 %s, -1, %s' % (dst, v(t))]

    def rounds(self, L_top, L_ok, L_exit, loads, regs, body, infl, rc, tails, tg):
        A, c = self.A, self
        n = len(loads)
        L_more, L_ex = A.new_label('pm' + tg), A.new_label('px' + tg)
        A('s_mov_b32 %s, 0' % s(c.S_CNT))
        A.label(L_top)
        A('s_waitcnt vmcnt(%d)' % ((infl - 1) * n))
        body()
        A('s_cbranch_vccnz %s' % L_more)
        A.label(L_ok)

        def tail():
            A.label(L_more)
            for t in loads:
                A(t)
            A('s_add_u32 %s, %s, 1' % (s(c.S_CNT), s(c.S_CNT)))
            if c.diag:
                A('s_add_u32 %s, %s, 1' % (s(c.S_RC + rc), s(c.S_RC + rc)))
            A('s_and_b32 %s, %s, 63' % (s(c.S_T), s(c.S_CNT)))
            A('s_cbranch_scc1 %s' % L_top)
            A('s_cmp_ge_u32 %s, 0x%x' % (s(c.S_CNT), POLL_MAX))
            A('s_cbranch_scc1 %s' % L_exit)
            A('s_waitcnt vmcnt(0)')
            for k in range(n):
                for t in c.chk(regs[k], s(c.S_M + 2 * k, 2), c.V_T + (k & 1)):
                    A(t)
            c.or_masks(n)
            A('s_cbranch_scc1 %s' % L_top)
            body()
            A('s_branch %s' % L_ok)
        tails.append(tail)

    def gather(self, loads, mf, L_exit, rc, tails, tg, after=0, fs=None, last=None):
        A, c = self.A, self
        Ls = [A.new_label('gs%d%s' % (k, tg)) for k in range(4)]
        L_join = A.new_label('gj' + tg)
        A('s_waitcnt vmcnt(%d)' % (3 + after))
        for t in c.chk(c.V_M, 'vcc', c.V_T):
            A(t)
        A('s_cbranch_vccnz %s' % Ls[0])
        if fs:
            c.st(fs[0], 3, fs[1])
        for k in range(4):
            m = mf(k)
            if k < 3:
                for t in m[:-1]:
                    A(t)
                A('s_waitcnt vmcnt(%d)' % (2 - k + after))
                for t in c.chk(c.V_M + 4 * (k + 1), 'vcc', c.V_T + ((k + 1) & 1)):
                    A(t)
                A(m[-1])
                A('s_cbranch_vccnz %s' % Ls[k + 1])
            else:
                for t in m:
                    A(t)
        A.label(L_join)
        if fs:
            c.st(fs[0], 3, fs[1] + 1)

        def tail():
            S = [A.new_label('gS%d%s' % (k, tg)) for k in range(4)]
            C = [A.new_label('gC%d%s' % (k, tg)) for k in range(4)]
            for k in range(4):
                A.label(Ls[k])
                A('s_mov_b64 exec, vcc')
                A(loads[k])
                A('s_mov_b64 exec, -1')
                if c.diag:
                    A('s_add_u32 %s, %s, 0x10000' % (s(c.S_RC + rc), s(c.S_RC + rc)))
                if k < 3:
                    A('s_waitcnt vmcnt(%d)' % (1 + after))
                A('s_branch %s_e' % S[k])
            for k in range(4):
                A.label(S[k] + '_e')
                A('s_mov_b32 %s, 0' % s(c.S_CNT))
                if k < 3:
                    A.label(S[k] + '_o')
                    for m in range(k + 1, 4):
                        for t in c.chk(c.V_M + 4 * m, s(c.S_M + 2 * m, 2), c.V_T + (m & 1)):
                            A(t + ' ;poll')
                    for m in range(k + 1, 4):
                        A('s_mov_b64 exec, %s' % s(c.S_M + 2 * m, 2))
                        A(loads[m])
                    A('s_mov_b64 exec, -1')
                A.label(S[k])
                A('s_waitcnt vmcnt(%d)' % c.p['gl'])
                for t in c.chk(c.V_M + 4 * k, 'vcc', c.V_T):
                    A(t + ' ;poll')
                A('s_add_u32 %s, %s, 1' % (s(c.S_CNT), s(c.S_CNT)))
                A('s_cbranch_vccz %s' % C[k])
                A('s_mov_b64 exec, vcc')
                A(loads[k])
                A('s_mov_b64 exec, -1')
                if c.diag:
                    A('s_add_u32 %s, %s, 1' % (s(c.S_RC + rc), s(c.S_RC + rc)))
                A('s_and_b32 %s, %s, %d' % (s(c.S_T), s(c.S_CNT), c.p['go']))
                A('s_cbranch_scc1 %s' % S[k])
                A('s_cmp_lt_u32 %s, 0x%x' % (s(c.S_CNT), POLL_MAX))
                A('s_cbranch_scc1 %s' % (S[k] + '_o' if k < 3 else S[k]))
                A('s_branch %s' % L_exit)
                A.label(C[k])
                m = mf(k)
                if k < 3:
                    for t in m[:-1]:
                        A(t + ' ;poll')
                    for t in c.chk(c.V_M + 4 * (k + 1), 'vcc', c.V_T + 1):
                        A(t + ' ;poll')
                    A(m[-1] + ' ;poll')
                    A('s_cbranch_vccz %s' % C[k + 1])
                    A('s_mov_b64 exec, vcc')
                    A(loads[k + 1])
                    A('s_mov_b64 exec, -1')
                else:
                    for t in m:
                        A(t + ' ;poll')
            A('s_branch %s' % L_join)
        tails.append(tail)

    def wslot(self, dst, add):
        c = self
        T = c.S_T + 2
        return ['s_add_u32 %s, %s, %d' % (s(T), s(c.S_STEP), add),
                's_add_u32 %s, %s, %s' % (s(T), s(T), s(c.S_J) if c.p['wj'] else '0'),
                's_lshl_b32 %s, %s, 13' % (s(T + 1), s(T)),
                's_lshl_b32 %s, %s, 12' % (s(T), s(T)),
                's_and_b32 %s, %s, 0x4000' % (s(T + 1), s(T + 1)),
                's_and_b32 %s, %s, 0x1000' % (s(T), s(T)),
                's_add_u32 %s, %s, %s' % (s(T), s(T), s(T + 1)),
                's_add_u32 %s, %s, %s' % (s(dst), s(T), s(c.S_WBB))]

    S_XO = {(0, 2): 39, (1, 2): 40, (0, 3): 4, (1, 3): 5}

    def xoff(self, add):
        c = self
        d, e = c.S_XO[(0, add)], c.S_XO[(1, add)]
        return ['s_add_u32 %s, %s, %d' % (s(d), s(c.S_STEP), add),
                's_min_u32 %s, %s, %d' % (s(d), s(d), 2 if c.p['xm'] else 63),
                's_lshl_b32 %s, %s, 16' % (s(d), s(d)),
                's_add_u32 %s, %s, 0x%x' % (s(d), s(d), XI),
                's_add_u32 %s, %s, 0x2000' % (s(e), s(d))]

    def xld(self, tt, t, add):
        c = self
        if c.p['xl'] != 1:
            return []
        return ['buffer_load_dwordx4 %s, %s, %s, %s offen offset:%d' % (v(c.V_XF + tt * 32 + t * 4, 4), v(c.V_XB if t >= 4 else c.V_XA), s(c.S_WS, 4),
                                                                      s(c.S_XO[(tt, add)]), (t & 3) * 1024)]

    def counts(self, w):
        p = self.p
        nA, nC = p['nA'], p['nC']
        nB = 0 if w == 0 else 32 - nC
        return nB, nC, 64 - nA - nB - nC, nA

    def xplan(self, w):
        nB, nC, nD, nA = self.counts(w)
        tA = (32 - nA) // 4
        if w == 0:
            return {'D': [(1, t, 2, -1) for t in range(tA, 8)] + [(0, t, 3, 4 * t + 3) for t in range(8)] + [(1, t, 3, 32 + 4 * t + 3) for t in range(tA)]}
        if w == 2:
            tB = nB // 4
            return {'Be': [(0, t, 2, -1) for t in range(tB, 8)] + [(1, t, 2, -1) for t in range(8)] + [(0, t, 3, -1) for t in range(tB)]}
        return {'Bs': [(1, t, 2, -1) for t in range(8)], 'D': [(0, t, 3, -1) for t in range(8)]}

    def initial_poison(self):
        A, c = self.A, self
        A('s_mov_b32 %s, %s' % (s(c.S_STEP), s(c.S_WAVE)))
        for t in c.slot(c.S_PMEM, c.S_MB, 14, 0) + c.slot(c.S_PO, c.S_OBB, 14, 0) + c.wslot(c.S_PW, 0) + c.slot(c.S_PSC, c.S_SCBB, 13, 0):
            A(t)
        for t in c.poison_list():
            A(t)
        if c.p['kv'] == 4:
            A('v_mov_b32 %s, 0' % v(c.V_T))
            for t in c.prog_store(c.V_T):
                A(t)

    def prog_store(self, reg):
        c = self
        return ['s_mov_b64 exec, 1',
                'buffer_store_dword %s, %s, %s, 0 offen sc1' % (v(reg), v(c.V_PRG), s(c.S_WS, 4)),
                's_mov_b64 exec, -1']

    def setup(self):
        A, c = self.A, self
        Chain.setup(self)
        T = c.S_T
        A('s_lshl_b32 %s, %s, 15' % (s(T), s(c.S_J)))
        A('s_add_u32 %s, %s, 0x%x' % (s(c.S_WBB), s(T), WB2 + c.p['sel'] * 8192))
        g, n, t0, t1 = c.V_T, c.V_T + 3, c.V_T + 4, c.V_T + 5
        A('s_lshl_b32 %s, %s, 12' % (s(T), s(c.S_WAVE)))
        A('v_add_u32 %s, %s, %s' % (v(c.V_GATH), s(T), v(c.V_L16)))
        A('s_lshl_b32 %s, %s, 9' % (s(T), s(c.S_J)))
        A('v_lshlrev_b32 %s, 3, %s' % (v(t0), v(c.V_L)))
        A('v_add_u32 %s, %s, %s' % (v(c.V_MST), s(T), v(t0)))
        A('v_mov_b32 %s, 0x44444444' % v(c.V_IDX))
        A('s_mov_b32 exec_lo, 0xcccccccc')
        A('s_mov_b32 exec_hi, 0xcccccccc')
        A('v_mov_b32 %s, 0xeeeeeeee' % v(c.V_IDX))
        A('s_mov_b64 exec, -1')
        A('v_mul_u32_u24 %s, 192, %s' % (v(t0), v(g)))
        A('v_lshl_add_u32 %s, %s, 2, %s' % (v(t1), v(n), v(t0)))
        A('s_mul_i32 %s, %s, 3136' % (s(T), s(c.S_WAVE)))
        A('s_add_u32 %s, %s, %d' % (s(T), s(T), c.L_QK))
        A('v_add_u32 %s, %s, %s' % (v(c.V_QW), s(T), v(t1)))
        A('v_add_u32 %s, 1568, %s' % (v(c.V_QW2), v(c.V_QW)))
        A('v_and_b32 %s, 9, %s' % (v(c.V_OW), v(n)))
        A('v_bfe_u32 %s, %s, 1, 1' % (v(t1), v(n)))
        A('v_lshl_add_u32 %s, %s, 2, %s' % (v(c.V_OW), v(t1), v(c.V_OW)))
        A('v_bfe_u32 %s, %s, 2, 1' % (v(t1), v(n)))
        A('v_lshl_add_u32 %s, %s, 1, %s' % (v(c.V_OW), v(t1), v(c.V_OW)))
        A('v_lshl_add_u32 %s, %s, 2, %s' % (v(c.V_OW), v(c.V_OW), v(t0)))
        A('s_mul_i32 %s, %s, 1600' % (s(T), s(c.S_WAVE)))
        A('s_add_u32 %s, %s, %d' % (s(T), s(T), c.L_WO))
        A('v_add_u32 %s, %s, %s' % (v(c.V_OW), s(T), v(c.V_OW)))
        A('v_lshrrev_b32 %s, 3, %s' % (v(t0), v(n)))
        A('v_mul_u32_u24 %s, 1568, %s' % (v(c.V_QR), v(t0)))
        A('v_and_b32 %s, 1, %s' % (v(t0), v(n)))
        A('v_mul_u32_u24 %s, 784, %s' % (v(t0), v(t0)))
        A('v_add_u32 %s, %s, %s' % (v(c.V_QR), v(c.V_QR), v(t0)))
        A('v_bfe_u32 %s, %s, 1, 2' % (v(t0), v(n)))
        A('v_mul_u32_u24 %s, 192, %s' % (v(t0), v(t0)))
        A('v_add_u32 %s, %s, %s' % (v(c.V_QR), v(c.V_QR), v(t0)))
        A('v_lshl_add_u32 %s, %s, 4, %s' % (v(c.V_QR), v(g), v(c.V_QR)))
        A('v_add_u32 %s, %d, %s' % (v(c.V_QR), c.L_QK, v(c.V_QR)))
        A('v_bfe_u32 %s, %s, 1, 1' % (v(t0), v(c.V_L)))
        A('v_mul_u32_u24 %s, 896, %s' % (v(c.V_OR), v(t0)))
        A('v_bfe_u32 %s, %s, 3, 2' % (v(t0), v(c.V_L)))
        A('v_mul_u32_u24 %s, 192, %s' % (v(t0), v(t0)))
        A('v_add_u32 %s, %s, %s' % (v(c.V_OR), v(c.V_OR), v(t0)))
        A('v_lshrrev_b32 %s, 5, %s' % (v(t1), v(c.V_L)))
        A('v_lshl_add_u32 %s, %s, 6, %s' % (v(c.V_OR), v(t1), v(c.V_OR)))
        A('v_and_b32 %s, 1, %s' % (v(t1), v(c.V_L)))
        A('v_lshl_add_u32 %s, %s, 5, %s' % (v(c.V_OR), v(t1), v(c.V_OR)))
        A('v_bfe_u32 %s, %s, 2, 1' % (v(t1), v(c.V_L)))
        A('v_lshl_add_u32 %s, %s, 4, %s' % (v(c.V_OR), v(t1), v(c.V_OR)))
        A('v_add_u32 %s, %d, %s' % (v(c.V_OR), c.L_WO, v(c.V_OR)))
        A('v_lshrrev_b32 %s, 1, %s' % (v(t0), v(g)))
        A('v_lshlrev_b32 %s, 8, %s' % (v(c.V_OST), v(t0)))
        A('v_and_b32 %s, 1, %s' % (v(t0), v(g)))
        A('v_lshl_add_u32 %s, %s, 5, %s' % (v(c.V_OST), v(t0), v(c.V_OST)))
        A('v_bfe_u32 %s, %s, 1, 2' % (v(t0), v(n)))
        A('v_lshl_add_u32 %s, %s, 6, %s' % (v(c.V_OST), v(t0), v(c.V_OST)))
        A('v_and_b32 %s, 1, %s' % (v(t0), v(n)))
        A('v_lshl_add_u32 %s, %s, 4, %s' % (v(c.V_OST), v(t0), v(c.V_OST)))
        A('s_lshl_b32 %s, %s, 9' % (s(T), s(c.S_J)))
        A('v_add_u32 %s, %s, %s' % (v(c.V_OST), s(T), v(c.V_OST)))
        A('v_add_u32 %s, 0x%x, %s' % (v(c.V_VM), VM - KM, v(c.V_VM)))
        for r in (c.V_VMF + 1, c.V_VMF + 3, c.V_PM + 1):
            A('v_mov_b32 %s, 0' % v(r))
        A('s_lshl_b32 %s, %s, 5' % (s(T), s(c.S_X)))
        A('s_add_u32 %s, %s, %s' % (s(T), s(T), s(c.S_J)))
        A('s_lshl_b32 %s, %s, 2' % (s(T), s(T)))
        A('s_add_u32 %s, %s, 0x%x' % (s(T), s(T), PROG))
        A('v_mov_b32 %s, %s' % (v(c.V_PRG), s(T)))

    def load_weights(self, xi_cnt, L_exit):
        A, c = self.A, self
        vsrc_qkv, vsrc_o, vtr, vtro = c.V_RD, c.V_RD + 1, c.V_RD + 2, c.V_RD + 3
        T = c.S_T
        t0, t1, t2, t3 = c.V_T, c.V_T + 1, c.V_T + 2, c.V_T + 3
        A('v_lshrrev_b32 %s, 2, %s' % (v(t0), v(c.V_L)))
        A('v_and_b32 %s, 3, %s' % (v(t1), v(c.V_L)))
        A('v_lshlrev_b32 %s, 13, %s' % (v(vsrc_qkv), v(t0)))
        A('v_lshl_add_u32 %s, %s, 4, %s' % (v(vsrc_qkv), v(t1), v(vsrc_qkv)))
        A('s_lshl_b32 %s, %s, 21' % (s(T), s(c.S_WAVE)))
        A('s_lshl_b32 %s, %s, 8' % (s(T + 1), s(c.S_H)))
        A('s_add_u32 %s, %s, %s' % (s(T), s(T), s(T + 1)))
        A('s_lshl_b32 %s, %s, 6' % (s(T + 1), s(c.S_C)))
        A('s_add_u32 %s, %s, %s' % (s(T), s(T), s(T + 1)))
        A('v_add_u32 %s, %s, %s' % (v(vsrc_qkv), s(T), v(vsrc_qkv)))
        A('v_lshlrev_b32 %s, 11, %s' % (v(vsrc_o), v(t0)))
        A('v_lshl_add_u32 %s, %s, 4, %s' % (v(vsrc_o), v(t1), v(vsrc_o)))
        A('s_lshl_b32 %s, %s, 21' % (s(T), s(c.S_X)))
        A('s_lshl_b32 %s, %s, 19' % (s(T + 1), s(c.S_WAVE)))
        A('s_add_u32 %s, %s, %s' % (s(T), s(T), s(T + 1)))
        A('s_lshl_b32 %s, %s, 6' % (s(T + 1), s(c.S_J)))
        A('s_add_u32 %s, %s, %s' % (s(T), s(T), s(T + 1)))
        A('v_add_u32 %s, %s, %s' % (v(vsrc_o), s(T), v(vsrc_o)))
        sbase = T + 2
        A('s_lshl_b32 %s, %s, 15' % (s(sbase), s(c.S_WAVE)))
        A('s_add_u32 %s, %s, 0x%x' % (s(sbase), s(sbase), c.L_STAGE))
        A('v_lshrrev_b32 %s, 4, %s' % (v(t0), v(c.V_L)))
        A('v_bfe_u32 %s, %s, 2, 2' % (v(t2), v(c.V_L)))
        A('v_lshl_add_u32 %s, %s, 3, %s' % (v(vtr), v(t0), v(t2)))
        A('v_lshlrev_b32 %s, 6, %s' % (v(vtr), v(vtr)))
        A('v_lshl_add_u32 %s, %s, 3, %s' % (v(vtr), v(t1), v(vtr)))
        A('v_add_u32 %s, %s, %s' % (v(vtr), s(sbase), v(vtr)))
        A('v_and_b32 %s, 1, %s' % (v(vtro), v(t2)))
        A('v_lshrrev_b32 %s, 1, %s' % (v(t3), v(t2)))
        A('v_lshl_add_u32 %s, %s, 2, %s' % (v(vtro), v(t3), v(vtro)))
        A('v_lshrrev_b32 %s, 1, %s' % (v(t3), v(t0)))
        A('v_lshl_add_u32 %s, %s, 3, %s' % (v(vtro), v(t3), v(vtro)))
        A('v_and_b32 %s, 1, %s' % (v(t3), v(t0)))
        A('v_lshl_add_u32 %s, %s, 4, %s' % (v(vtro), v(t3), v(vtro)))
        A('v_lshlrev_b32 %s, 6, %s' % (v(vtro), v(vtro)))
        A('v_lshl_add_u32 %s, %s, 3, %s' % (v(vtro), v(t1), v(vtro)))
        A('v_add_u32 %s, %s, %s' % (v(vtro), s(sbase), v(vtro)))
        mats = [(K_WK, vsrc_qkv, 8192, 1), (K_WV, vsrc_qkv, 8192, 2), (K_WQ, vsrc_qkv, 8192, 0), (K_WO, vsrc_o, 2048, 3)]
        ptr = c.S_M
        for k, m in enumerate(mats):
            A('s_load_dwordx2 %s, s[0:1], %d' % (s(ptr + 2 * k, 2), m[0]))
        A('s_waitcnt lgkmcnt(0)')

        def issue(m):
            ko, vs, stride, idx = mats[m]
            srd(A, c.S_W, ptr + 2 * m, 8 * MB)
            for q in range(16):
                A('s_add_u32 m0, %s, 0x%x' % (s(sbase), (m & 1) * 16384 + q * 1024))
                A('s_mov_b32 %s, 0x%x' % (s(T), q * 16 * stride))
                A('buffer_load_dwordx4 %s, %s, %s offen lds' % (v(vs), s(c.S_W, 4), s(T)))

        def readout(m):
            idx = mats[m][3]
            for t in range(8):
                for tau in range(2):
                    for hh in range(2):
                        A('ds_read_b64_tr_b16 %s, %s offset:%d' % (a(((idx * 2 + tau) * 8 + t) * 4 + 2 * hh, 2), v(vtr if idx < 3 else vtro),
                                                                   (m & 1) * 16384 + t * 2048 + hh * (256 if idx < 3 else 128) + tau * 32))
                if t & 1:
                    A('s_waitcnt lgkmcnt(0)')

        issue(0)
        issue(1)
        A('s_mov_b32 %s, 0' % s(c.S_STEP))
        A('s_waitcnt vmcnt(16)')
        readout(0)
        pv = c.V_T + 4
        A('v_mov_b32 %s, %d' % (v(pv + 1), xi_cnt))
        A('buffer_load_dword %s, %s, %s, 0 offen sc1' % (v(pv), v(pv + 1), s(c.S_DB, 4)))
        issue(2)
        A('s_waitcnt vmcnt(16)')
        Lp, Lq = A.new_label('xi' + c.tag), A.new_label('xi' + c.tag)
        A('s_mov_b32 %s, 0' % s(c.S_CNT))
        A.label(Lp)
        A('v_readfirstlane_b32 %s, %s' % (s(T + 4), v(pv)))
        A('s_cmp_ge_u32 %s, 128' % s(T + 4))
        A('s_cbranch_scc1 %s' % Lq)
        A('buffer_load_dword %s, %s, %s, 0 offen sc1' % (v(pv), v(pv + 1), s(c.S_DB, 4)))
        A('s_add_u32 %s, %s, 1' % (s(c.S_CNT), s(c.S_CNT)))
        A('s_cmp_ge_u32 %s, 0x%x' % (s(c.S_CNT), POLL_MAX))
        A('s_cbranch_scc1 %s' % L_exit)
        A('s_waitcnt vmcnt(0)')
        A('s_branch %s' % Lp)
        A.label(Lq)
        for t in c.xoffs(0) + c.xloads(0) + c.xloads(1):
            A(t)
        readout(1)
        issue(3)
        A('s_waitcnt vmcnt(16)')
        c.P(0, 64)
        for t in c.xoffs(1) + c.xloads(0) + c.xloads(1):
            A(t)
        A('s_mov_b64 exec, 0xffff')
        for k in (2, 3):
            A('s_mov_b32 %s, 0x%x' % (s(T + 4), XI + k * 65536))
            A('buffer_load_dword %s, %s, %s, %s offen' % (v(c.V_T + 4 + k), v(c.V_TCH), s(c.S_WS, 4), s(T + 4)))
        A('s_mov_b64 exec, -1')
        readout(2)
        A('s_waitcnt vmcnt(18)')
        readout(3)

    def publish_mem0(self):
        A, c = self.A, self
        T = c.S_T
        t0, t1 = c.V_T, c.V_T + 1
        A('s_load_dwordx2 %s, s[0:1], %d' % (s(c.S_M, 2), K_MEM0))
        A('s_waitcnt lgkmcnt(0)')
        srd(A, c.S_W, c.S_M, 16384)
        A('v_bfe_u32 %s, %s, 3, 2' % (v(t0), v(c.V_L)))
        A('v_lshlrev_b32 %s, 12, %s' % (v(t0), v(t0)))
        A('v_bfe_u32 %s, %s, 1, 1' % (v(t1), v(c.V_L)))
        A('v_lshl_add_u32 %s, %s, 11, %s' % (v(t0), v(t1), v(t0)))
        A('v_lshrrev_b32 %s, 5, %s' % (v(t1), v(c.V_L)))
        A('v_lshl_add_u32 %s, %s, 5, %s' % (v(t0), v(t1), v(t0)))
        A('v_and_b32 %s, 1, %s' % (v(t1), v(c.V_L)))
        A('v_lshl_add_u32 %s, %s, 4, %s' % (v(t0), v(t1), v(t0)))
        A('v_bfe_u32 %s, %s, 2, 1' % (v(t1), v(c.V_L)))
        A('v_lshl_add_u32 %s, %s, 2, %s' % (v(t0), v(t1), v(t0)))
        A('s_lshl_b32 %s, %s, 6' % (s(T), s(c.S_J)))
        A('buffer_load_dword %s, %s, %s, %s offen' % (v(c.V_T + 2), v(t0), s(c.S_W, 4), s(T)))
        A('buffer_load_dword %s, %s, %s, %s offen offset:8' % (v(c.V_T + 3), v(t0), s(c.S_W, 4), s(T)))
        A('s_waitcnt vmcnt(0)')
        A('v_min_u32 %s, -2, %s' % (v(c.V_T + 2), v(c.V_T + 2)))
        A('v_min_u32 %s, -2, %s' % (v(c.V_T + 3), v(c.V_T + 3)))

    def outmod(self, lst):
        k = self.p['kv']
        if k == 4:
            k = 0 if self.inloop else 1
        out = []
        for t in lst:
            if t.startswith('buffer_store'):
                if k == 0:
                    continue
                t = t.replace(' sc1', {1: ' sc1', 2: '', 3: ' nt'}[k])
            out.append(t)
        return out

    def vm_store(self):
        c = self
        return self.outmod(['buffer_store_dword %s, %s, %s, %s offen sc1' % (v(c.V_VMF), v(c.V_VM), s(c.S_WS, 4), s(c.S_KMVM + 0)),
                            'buffer_store_dword %s, %s, %s, %s offen offset:256 sc1' % (v(c.V_VMF + 2), v(c.V_VM), s(c.S_WS, 4), s(c.S_KMVM + 0))])

    def km_store(self):
        return self.outmod(Chain.km_store(self))

    def kv_reduce(self, w):
        A = self.A
        if self.p['pp'] == 2 and self.inloop:
            return
        n0 = len(A.lines)
        Chain.kv_reduce(self, w)
        A.lines[n0:] = self.outmod(A.lines[n0:])

    def prologue2(self, start_wait, L_exit, L_done):
        A, c = self.A, self
        A('s_barrier')
        for t in c.pwrites(0) + c.pwrites(1):
            A(t)
        A('v_mov_b32 %s, 0' % v(c.V_T))
        A('v_mov_b32 %s, 0' % v(c.V_T + 1))
        A('ds_write_b64 %s, %s' % (v(c.V_Z), v(c.V_T, 2)))
        A('s_waitcnt vmcnt(0) lgkmcnt(0)')
        A('s_barrier')
        L = [A.new_label('cw%d%s' % (w, c.tag)) for w in range(4)]
        for w in range(1, 4):
            A('s_cmp_eq_u32 %s, %d' % (s(c.S_WAVE), w))
            A('s_cbranch_scc1 %s' % L[w])
        for w in range(4):
            A.label(L[w])
            A('s_mov_b32 %s, 0' % s(c.S_STEP))
            if w >= 2:
                for t in c.kv_offsets(w, 0):
                    A(t)
                c.kv_reduce(w)
            if w == 1:
                c.publish_mem0()
            if w == 0:
                for k in range(4):
                    A('v_mov_b32 %s, 0x3f803f80' % v(c.V_ONE + k))
            nA = c.p['nA']
            c.P(0, 64 - nA)
            A('s_mov_b32 %s, -1' % s(c.S_STEP))
            for t in c.xoff(3):
                A(t)
            A('s_mov_b32 %s, 0' % s(c.S_STEP))
            for lst in c.xplan(w).values():
                for tt, t, add, _ in lst:
                    if add == 3:
                        for x in c.xld(tt, t, 3):
                            A(x)
            A('s_waitcnt lgkmcnt(0)')
            A('s_barrier')
            for t in c.pwrites(0):
                A(t)
            for t in c.zero(c.A_QK, 24):
                A(t)
            if w == 1:
                start_wait(L_exit)
                c.publish_mem0_store()
            if w == 3 and c.diag:
                c.sync_clock(2)
            A('s_mov_b32 %s, %s' % (s(c.S_MEMOFF), s(c.S_MB)))
            A('s_mov_b32 %s, 3' % s(c.S_VT))
            A('s_waitcnt vmcnt(0) lgkmcnt(0)')
            A('s_barrier')
            c.step_loop(w, L_exit, L_done)

    def step_loop(self, w, L_exit, L_done):
        A, c = self.A, self
        p = c.p
        ws = s(c.S_WS, 4)
        tg = '%d%s' % (w, c.tag)
        nB, nC, nD, nA = c.counts(w)
        assert nC % 4 == 0
        plan = c.xplan(w)
        L_loop, L_last = [A.new_label(n + tg) for n in ('step', 'last')]
        tails = []
        R = c.V_R
        c.inloop = True
        st4 = p['kv'] == 4
        L_fin = A.new_label('fin' + tg) if st4 else L_done

        def emit(lst):
            for t in lst:
                A(t)

        def place(fill, lo, hi, items, start, per, group=1):
            n = hi - lo
            for k, t in enumerate(items):
                fill.setdefault(max(0, min(start + (k // group) * per, n - 1)), []).extend(t if isinstance(t, list) else [t])

        def run(lo, hi, fill):
            if hi > lo:
                c.P(lo, hi, fill)
            else:
                for k in sorted(fill):
                    emit(fill[k])

        def xplace(fill, lo, hi, lst):
            pos = p['xd']
            for tt, t, add, first in lst:
                pos = max(pos, first - lo)
                fill.setdefault(max(0, min(pos, hi - lo - 1)), []).extend(c.xld(tt, t, add))
                pos += p['xs']

        A.label(L_loop)
        c.st(w, 3, 0)
        if p['gd']:
            A('s_nop %d' % (p['gd'] - 1))
        gl = c.gather_loads(c.S_MEMOFF)
        emit(gl)
        aft = 0
        if w == 3 and p['pw'] == 1:
            emit(c.poison_list()[:1])
            aft = 1
        misc = c.slot(c.S_OOFF, c.S_OBB, 14, 0) + c.xoff(2) + c.xoff(3)
        if w == 0:
            misc = ['ds_read_b128 %s, %s offset:%d' % (v(c.V_KXF + 4 * f, 4), v(c.V_L16), c.L_KV + f * 1024) for f in range(4)] + misc
            misc += c.slot(c.S_SCOFF, c.S_SCBB, 13, 0)
            misc += ['s_lshl_b32 %s, %s, 16' % (s(c.S_KMVM), s(c.S_STEP)),
                     's_add_u32 %s, %s, 0x%x' % (s(c.S_KMVM), s(c.S_KMVM), KM)]
        if w >= 2 and not st4:
            misc += c.kv_offsets(w, 1)
        if w == 1 and st4:
            ad = 0 if p['k4m'] else 1
            misc += c.kv_offsets(3, ad) + ['s_mov_b32 %s, %s' % (s(c.S_PMEM), s(c.S_KV))] + c.kv_offsets(2, ad)
            misc += ['s_lshl_b32 %s, %s, 16' % (s(c.S_KMVM), s(c.S_STEP)),
                     's_add_u32 %s, %s, 0x%x' % (s(c.S_KMVM), s(c.S_KMVM), KM - (65536 if p['k4m'] else 0))]
            D = c.V_RD
            so = ['s_mov_b64 exec, %s' % s(c.S_MP1, 2),
                  'buffer_store_dwordx4 %s, %s, %s, %s offen sc1' % (v(D + 16, 4), v(c.V_KM), ws, s(c.S_KMVM)),
                  's_mov_b64 exec, -1',
                  'buffer_store_dword %s, %s, %s, %s offen sc1' % (v(D + 20), v(c.V_VM), ws, s(c.S_KMVM)),
                  'buffer_store_dword %s, %s, %s, %s offen offset:256 sc1' % (v(D + 21), v(c.V_VM), ws, s(c.S_KMVM)),
                  'buffer_store_dwordx4 %s, %s, %s, %s offen sc1' % (v(D, 4), v(c.V_L16), ws, s(c.S_KV)),
                  'buffer_store_dwordx4 %s, %s, %s, %s offen sc1' % (v(D + 4, 4), v(c.V_SCL), ws, s(c.S_KV)),
                  'buffer_store_dwordx4 %s, %s, %s, %s offen sc1' % (v(D + 8, 4), v(c.V_L16), ws, s(c.S_PMEM)),
                  'buffer_store_dwordx4 %s, %s, %s, %s offen offset:1024 sc1' % (v(D + 12, 4), v(c.V_L16), ws, s(c.S_PMEM))]

            def late_stores():
                Lk = A.new_label('k4' + tg)
                A('s_cmp_eq_u32 %s, 0' % s(c.S_STEP))
                A('s_cbranch_scc1 %s' % Lk)
                emit(so)
                A.label(Lk)
        fill = {}
        place(fill, 64 - nA, 64, misc, 0, 1, 3)
        run(64 - nA, 64, fill)
        emit(c.pwrites(1))

        def qk(k):
            return [c.sm(c.A_QK + tau * 8 + m * 4, k, ((m * 2 + tau) * 8 + 2 * k) * 4) for tau in range(2) for m in range(2)]
        c.gather(gl, qk, L_exit, 0, tails, 'm' + tg, after=aft, fs=(w, 2) if p['fs'] else None)
        for tau in range(2):
            for m in range(2):
                b = c.A_QK + tau * 8 + m * 4
                r = R + tau * 4 + m * 2
                A('v_pk_add_f32 %s, %s, %s' % (v(r, 2), v(b, 2), v(b + 2, 2)))
                A('ds_write2_b32 %s, %s, %s offset0:%d offset1:%d' % (v(c.V_QW2 if m else c.V_QW), v(r), v(r + 1), tau * 16, 196 + tau * 16))
        if p['fs']:
            c.st(w, 3, 4)
        A('s_waitcnt lgkmcnt(0)')
        if p['fs']:
            c.st(w, 3, 5)
        A('s_barrier')
        c.st(w, 3, 1)

        def v_part(fill):
            q = 0
            for k in range(4):
                for tau in range(2):
                    A(c.sm(c.A_V + tau * 4, k, ((4 + tau) * 8 + 2 * k) * 4) + ' ;poll')
                    emit(fill.get(q, []))
                    q += 1
            for tau in range(2):
                b = c.A_V + tau * 4
                A('v_pk_add_f32 %s, %s, %s' % (v(R + 2 * tau, 2), v(b, 2), v(b + 2, 2)))
            if w:
                A('ds_write_b128 %s, %s offset:%d' % (v(c.V_LW), v(R, 4), c.L_V))
                A('s_mov_b64 exec, 1')
                A('ds_add_u32 %s, %s' % (v(c.V_Z), v(c.V_C1)))
                A('s_mov_b64 exec, -1')

        def v_reduce(mid=()):
            D, fl = c.V_RD, c.V_T + 2
            L_vm, L_vr = A.new_label('vm' + tg), A.new_label('vr' + tg)

            def reads():
                A('ds_read_b32 %s, %s' % (v(fl), v(c.V_Z)))
                for ww in range(1, 4):
                    A('ds_read_b128 %s, %s offset:%d' % (v(D + 4 * ww - 4, 4), v(c.V_L16), c.L_V + ww * 1024))
            reads()
            emit(mid)
            A('s_waitcnt lgkmcnt(0)')
            A('v_cmp_ne_u32 vcc, %s, %s' % (s(c.S_VT), v(fl)))
            A('s_cbranch_vccnz %s' % L_vr)
            A.label(L_vm)
            for r in range(0, 4, 2):
                A('v_pk_add_f32 %s, %s, %s' % (v(R + r, 2), v(R + r, 2), v(D + r, 2)))
                A('v_pk_add_f32 %s, %s, %s' % (v(D + 4 + r, 2), v(D + 4 + r, 2), v(D + 8 + r, 2)))
            for r in range(0, 4, 2):
                A('v_pk_add_f32 %s, %s, %s' % (v(R + r, 2), v(R + r, 2), v(D + 4 + r, 2)))
            A('v_cvt_pk_bf16_f32 %s, %s, %s' % (v(c.V_VMF), v(R), v(R + 1)))
            A('v_cvt_pk_bf16_f32 %s, %s, %s' % (v(c.V_VMF + 2), v(R + 2), v(R + 3)))

            def tail_vr():
                A.label(L_vr)
                A('s_mov_b32 %s, 0' % s(c.S_CNT))
                Lr = A.new_label('vrl' + tg)
                A.label(Lr)
                reads()
                A('s_add_u32 %s, %s, 1' % (s(c.S_CNT), s(c.S_CNT)))
                A('s_cmp_ge_u32 %s, 0x%x' % (s(c.S_CNT), POLL_MAX * 4))
                A('s_cbranch_scc1 %s' % L_exit)
                A('s_waitcnt lgkmcnt(0)')
                A('v_cmp_ne_u32 vcc, %s, %s' % (s(c.S_VT), v(fl)))
                A('s_cbranch_vccnz %s' % Lr)
                A('s_branch %s' % L_vm)
            tails.append(tail_vr)

        if w == 0:
            D = c.V_RD
            S = c.V_RD + 16
            SP = c.A_QK
            for ww in range(4):
                for tau in range(2):
                    A('ds_read_b128 %s, %s offset:%d' % (v(D + ww * 8 + tau * 4, 4), v(c.V_QR), ww * 3136 + tau * 64))
            A('s_cmp_eq_u32 %s, %d' % (s(c.S_STEP), c.nsteps - 1))
            A('s_waitcnt lgkmcnt(4)')
            for r in range(0, 8, 2):
                A('v_pk_add_f32 %s, %s, %s' % (v(D + r, 2), v(D + r, 2), v(D + 8 + r, 2)))
            A('s_waitcnt lgkmcnt(2)')
            for r in range(0, 8, 2):
                A('v_pk_add_f32 %s, %s, %s' % (v(D + r, 2), v(D + r, 2), v(D + 16 + r, 2)))
            A('s_waitcnt lgkmcnt(0)')
            for r in range(0, 8, 2):
                A('v_pk_add_f32 %s, %s, %s' % (v(D + r, 2), v(D + r, 2), v(D + 24 + r, 2)))
            for q in range(4):
                A('v_cvt_pk_bf16_f32 %s, %s, %s' % (v(c.V_F + q), v(D + 2 * q), v(D + 2 * q + 1)))
            A('s_cbranch_scc1 %s' % L_last)
            A(MF % (v(S + 8, 4), v(c.V_F, 4), v(c.V_F, 4), '0'))
            A(MF % (v(S, 4), v(c.V_KXF, 4), v(c.V_F, 4), '0'))
            A(MF % (v(S + 4, 4), v(c.V_KXF + 4, 4), v(c.V_F, 4), '0'))
            A('s_mov_b64 exec, %s' % s(c.S_MSM, 2))
            for r in range(4):
                A('buffer_store_dword %s, %s, %s, %s offen offset:%d %s' % (v(S + 8 + r), v(c.V_SCM), ws, s(c.S_SCOFF), r * 128, c.im))
            A('s_mov_b64 exec, %s' % s(c.S_MP0, 2))
            A('buffer_store_dwordx4 %s, %s, %s, %s offen %s' % (v(S, 4), v(c.V_SC), ws, s(c.S_SCOFF), c.im))
            A('buffer_store_dwordx4 %s, %s, %s, %s offen offset:128 %s' % (v(S + 4, 4), v(c.V_SC), ws, s(c.S_SCOFF), c.im))
            A('s_mov_b64 exec, -1')
            c.st(w, 0, 3)
            if p['ack'] & 2:
                A('s_waitcnt vmcnt(0)')
                c.st(w, 0, 2)
            scl = ['buffer_load_dwordx4 %s, %s, %s, %s offen sc1' % (v(SP + 4 * k, 4), v(c.V_SC + 1 + k if k < 3 else c.V_SCL), ws, s(c.S_SCOFF))
                   for k in range(4)]
            fill = {0: ['v_mov_b32_dpp %s, %s row_ror:8 row_mask:0xf bank_mask:0xc' % (v(S + r), v(S + 4 + r)) for r in range(4)]}
            for q in range(4):
                fill.setdefault(1 + q, []).extend(c.zero(c.A_WO + 2 * q, 2))
            nr = 1
            for k in ('sa', 'sb'):
                if p[k] < 8 and nr < p['si']:
                    fill.setdefault(p[k], []).extend(scl)
                    nr += 1
            v_part(fill)
            v_reduce(scl * (p['si'] - nr + 1))
            X = c.V_RD
            m, t = c.V_T, c.V_T + 1
            PP = R + 4

            def sums():
                for r in range(0, 4, 2):
                    A('v_pk_add_f32 %s, %s, %s ;poll' % (v(X + r, 2), v(S + r, 2), v(SP + r, 2)))
                    A('v_pk_add_f32 %s, %s, %s ;poll' % (v(X + 6 + r, 2), v(SP + 4 + r, 2), v(SP + 8 + r, 2)))
                A('v_pk_add_f32 %s, %s, %s ;poll' % (v(X + 4, 2), v(SP + 12, 2), v(SP + 14, 2)))
                for r in range(0, 4, 2):
                    A('v_pk_add_f32 %s, %s, %s' % (v(X + r, 2), v(X + r, 2), v(X + 6 + r, 2)))
                A('v_add_f32 %s, %s, %s' % (v(X + 4), v(X + 4), v(X + 5)))
                A('v_pk_add_f32 %s, %s, %s' % (v(X + 6, 2), v(X, 2), v(X + 2, 2)))
                A('v_max3_f32 %s, %s, %s, %s' % (v(m), v(X), v(X + 1), v(X + 2)))
                A('v_add_f32 %s, %s, %s' % (v(X + 6), v(X + 6), v(X + 4)))
                A('v_max3_f32 %s, %s, %s, %s' % (v(m), v(m), v(X + 3), v(X + 4)))
                A('v_cmp_u_f32 vcc, %s, %s' % (v(X + 6), v(X + 7)))
                A('v_max_f32_dpp %s, %s, %s row_ror:8 row_mask:0xf bank_mask:0xf' % (v(m), v(m), v(m)))
            c.rounds(A.new_label('sct' + tg), A.new_label('sco' + tg), L_exit, scl, [SP + 4 * k for k in range(4)], sums, p['si'], 1, tails, tg)
            c.st(w, 0, 4)
            A('v_mov_b32 %s, %s' % (v(t), v(m)))
            A('v_permlane16_swap_b32 %s, %s' % (v(m), v(t)))
            A('v_max_f32 %s, %s, %s' % (v(m), v(m), v(t)))
            A('v_mov_b32 %s, %s' % (v(t), v(m)))
            A('v_permlane32_swap_b32 %s, %s' % (v(m), v(t)))
            A('v_max_f32 %s, %s, %s' % (v(m), v(m), v(t)))
            A('v_mul_f32 %s, %s, %s' % (v(m), s(c.S_CSC), v(m)))
            for r in (4, 0, 1, 2, 3):
                A('v_fma_f32 %s, %s, %s, -%s' % (v(X + r), v(X + r), s(c.S_CSC), v(m)))
            for r in (4, 0, 1, 2, 3):
                A('v_exp_f32 %s, %s' % (v(X + r), v(X + r)))
                if r == 1:
                    A('v_mov_b32_dpp %s, %s row_ror:8 row_mask:0xf bank_mask:0xf' % (v(t), v(X + 4)))
                if r == 2:
                    A('v_cvt_pk_bf16_f32 %s, %s, %s' % (v(c.V_PM), v(X + 4), v(t)))
                    A('v_cvt_pk_bf16_f32 %s, %s, %s' % (v(PP), v(X), v(X + 1)))
            O = c.V_RD + 8
            A(MF16 % (v(O + 8, 4), v(c.V_ONE, 2), v(c.V_PM, 2), '0'))
            A('v_cvt_pk_bf16_f32 %s, %s, %s' % (v(PP + 1), v(X + 2), v(X + 3)))
            A('v_mov_b32_dpp %s, %s row_ror:8 row_mask:0xf bank_mask:0xf' % (v(PP + 2), v(PP)))
            A(MF16 % (v(O, 4), v(c.V_VMF, 2), v(c.V_PM, 2), '0'))
            A(MF16 % (v(O + 4, 4), v(c.V_VMF + 2, 2), v(c.V_PM, 2), '0'))
            A('v_mov_b32_dpp %s, %s row_ror:8 row_mask:0xf bank_mask:0xf' % (v(PP + 3), v(PP + 1)))
            A(MF % (v(O + 8, 4), v(c.V_ONE, 4), v(PP, 4), v(O + 8, 4)))
            A(MF % (v(O, 4), v(c.V_VTF, 4), v(PP, 4), v(O, 4)))
            A(MF % (v(O + 4, 4), v(c.V_VTF + 4, 4), v(PP, 4), v(O + 4, 4)))
            A('v_rcp_f32 %s, %s' % (v(m), v(O + 8)))
            A('s_mov_b64 exec, %s' % s(c.S_MP0, 2))
            for r in range(0, 8, 2):
                A('v_pk_mul_f32 %s, %s, %s op_sel_hi:[1,0]' % (v(O + r, 2), v(O + r, 2), v(m, 2)))
                A('v_cvt_pk_bf16_f32 %s, %s, %s' % (v(R + r // 2), v(O + r), v(O + r + 1)))
            A('buffer_store_dwordx4 %s, %s, %s, %s offen %s' % (v(R, 4), v(c.V_OST), ws, s(c.S_OOFF), c.im))
            A('s_mov_b64 exec, -1')
            c.st(w, 0, 5)
            if p['ack'] & 1:
                A('s_waitcnt vmcnt(0)')
                c.st(w, 0, 2)
        else:
            fill = {}
            for q, (tt, t, add, _) in enumerate(plan.get('Bs', [])):
                fill.setdefault(min(q, 7), []).extend(c.xld(tt, t, add))
            if w == 3 and p['pw'] == 2:
                emit(c.poison_list()[:1])
            if w == 1 and st4 and p['k4m'] == 1:
                late_stores()
            v_part(fill)
            if w == 1 and st4 and p['k4m'] == 2:
                late_stores()
            A('s_cmp_eq_u32 %s, %d' % (s(c.S_STEP), c.nsteps - 1))
            A('s_cbranch_scc1 %s' % L_fin)
            if w >= 2:
                A('s_waitcnt lgkmcnt(0)')
                c.kv_reduce(w)
            fill = {}
            place(fill, 0, nB, c.zero(c.A_WO, 8), 0, 1, 2)
            run(0, nB, fill)
            for tt, t, add, _ in plan.get('Be', []):
                emit(c.xld(tt, t, add))
            if c.diag and w >= 2:
                c.dump()
            A('s_waitcnt lgkmcnt(0)')
        A('s_barrier')
        c.st(w, 3, 6)

        if p['od']:
            A('s_nop %d' % (p['od'] - 1))
        ol = c.gather_loads(c.S_OOFF)
        emit(ol)
        misc = c.slot(c.S_NMEM, c.S_MB, 14, 1)
        if w == 2:
            misc += c.wslot(c.S_WOFF, 0) + c.wslot(c.S_PW, 1)
        if w == 3:
            misc += c.slot(c.S_PMEM, c.S_MB, 14, 3) + c.slot(c.S_PO, c.S_OBB, 14, 2) + c.wslot(c.S_PW, 2) + c.slot(c.S_PSC, c.S_SCBB, 13, 2)
        if w & 1:
            misc += ['s_add_u32 %s, %s, 4' % (s(c.S_TCH), s(c.S_STEP)), 's_min_u32 %s, %s, 63' % (s(c.S_TCH), s(c.S_TCH)),
                     's_lshl_b32 %s, %s, 16' % (s(c.S_TCH), s(c.S_TCH)),
                     's_add_u32 %s, %s, 0x%x' % (s(c.S_TCH), s(c.S_TCH), XI)]
            if p['touch'] == 2:
                misc += ['s_lshl_b32 %s, %s, 11' % (s(c.S_T + 2), s(c.S_J)),
                         's_add_u32 %s, %s, %s' % (s(c.S_TCH), s(c.S_TCH), s(c.S_T + 2)),
                         's_add_u32 %s, %s, %d' % (s(c.S_TCH), s(c.S_TCH), (w >> 1) * 1024)]
        misc += ['s_add_u32 %s, %s, 3' % (s(c.S_VT), s(c.S_VT))]
        if w == 0 and st4:
            misc += ['ds_write_b128 %s, %s offset:%d' % (v(c.V_L16), v(c.V_F, 4), c.L_KM),
                     'ds_write2_b32 %s, %s, %s offset0:0 offset1:1' % (v(c.V_L8), v(c.V_VMF), v(c.V_VMF + 2))]
        if 'Be' in plan and p['xl'] == 1:
            A('s_waitcnt vmcnt(%d)' % (4 + len(plan['Be']) - (8 - nB // 4)))
        fill = {}
        place(fill, nB, nB + nC, misc, 0, 1, 3)
        run(nB, nB + nC, fill)
        if w:
            emit(c.pwrites(0))

        def wo(k):
            return [c.sm(c.A_WO + tau * 4, k, 192 + (tau * 8 + 2 * k) * 4) for tau in range(2)]
        c.gather(ol, wo, L_exit, 2, tails, 'o' + tg, fs=(w, 8) if p['fs'] else None)
        for tau in range(2):
            b = c.A_WO + tau * 4
            A('v_pk_add_f32 %s, %s, %s' % (v(R + 2 * tau, 2), v(b, 2), v(b + 2, 2)))
            A('ds_write2_b32 %s, %s, %s offset0:%d offset1:%d' % (v(c.V_OW), v(R + 2 * tau), v(R + 2 * tau + 1), tau * 16, 224 + tau * 16))
        if p['fs']:
            c.st(w, 3, 10)
        A('s_waitcnt lgkmcnt(0)')
        if p['fs']:
            c.st(w, 3, 11)
        A('s_barrier')
        c.st(w, 3, 7)

        if w == 2:
            D = c.V_RD
            for ww in range(4):
                A('ds_read_b128 %s, %s offset:%d' % (v(D + 4 * ww, 4), v(c.V_OR), ww * 1600))
            A('s_waitcnt lgkmcnt(2)')
            for r in range(0, 4, 2):
                A('v_pk_add_f32 %s, %s, %s' % (v(D + r, 2), v(D + r, 2), v(D + 4 + r, 2)))
            A('s_waitcnt lgkmcnt(0)')
            for r in range(0, 4, 2):
                A('v_pk_add_f32 %s, %s, %s' % (v(D + 8 + r, 2), v(D + 8 + r, 2), v(D + 12 + r, 2)))
            for r in range(0, 4, 2):
                A('v_pk_add_f32 %s, %s, %s' % (v(R + r, 2), v(D + r, 2), v(D + 8 + r, 2)))
            A('buffer_store_dwordx4 %s, %s, %s, %s offen sc1' % (v(R, 4), v(c.V_WA), ws, s(c.S_WOFF)))
            c.st(w, 2, 9)
            if p['ack'] & 2:
                A('s_waitcnt vmcnt(0)')
                c.st(w, 2, 8)
            W = c.V_WP
            wl = ['buffer_load_dwordx4 %s, %s, %s, %s offen sc1' % (v(W + 4 * k, 4), v(c.V_WA + 1 + k), ws, s(c.S_WOFF)) for k in range(3)]
            if p['pf']:
                emit([t.replace(s(c.S_WOFF) + ' ', s(c.S_PW) + ' ') for t in wl])
            fill = {}
            nr = 1
            for k in ('wa', 'wb'):
                if p[k] < nD and nr < p['wi']:
                    fill.setdefault(p[k], []).extend(wl)
                    nr += 1
            place(fill, 32, 32 + nD, c.zero(c.A_QK, 24), 0, 1, 2)
            run(32, 32 + nD, fill)
            emit(wl * (p['wi'] - nr + 1))

            def wsum():
                for r in range(0, 4, 2):
                    A('v_pk_add_f32 %s, %s, %s ;poll' % (v(D + r, 2), v(R + r, 2), v(W + r, 2)))
                    A('v_pk_add_f32 %s, %s, %s ;poll' % (v(D + 4 + r, 2), v(W + 4 + r, 2), v(W + 8 + r, 2)))
                for r in range(0, 4, 2):
                    A('v_pk_add_f32 %s, %s, %s' % (v(D + r, 2), v(D + r, 2), v(D + 4 + r, 2)))
                A('v_pk_add_f32 %s, %s, %s' % (v(D + 4, 2), v(D, 2), v(D + 2, 2)))
                A('v_cvt_pk_bf16_f32 %s, %s, %s' % (v(D + 8), v(D), v(D + 1)))
                A('v_cmp_u_f32 vcc, %s, %s' % (v(D + 4), v(D + 5)))
                A('v_cvt_pk_bf16_f32 %s, %s, %s' % (v(D + 9), v(D + 2), v(D + 3)))
            c.rounds(A.new_label('wt' + tg), A.new_label('wo' + tg), L_exit, wl, [W + 4 * k for k in range(3)], wsum, p['wi'], 3, tails, tg)
            A('buffer_store_dwordx2 %s, %s, %s, %s offen %s' % (v(D + 8, 2), v(c.V_MST), ws, s(c.S_NMEM), c.im))
            c.st(w, 2, 10)
            if p['ack'] & 1:
                A('s_waitcnt vmcnt(0)')
                c.st(w, 2, 8)
        else:
            lo, hi = (nC, 64 - nA) if w == 0 else (32, 32 + nD)
            fill = {}
            place(fill, lo, hi, c.zero(c.A_QK, 24), 0, 1, 2)
            xplace(fill, lo, hi, plan['D'])
            if w == 0:
                if not st4:
                    place(fill, lo, hi, [c.km_store() + c.vm_store()], p['pd'], 1)
                place(fill, lo, hi, c.pwrites(0), 32 - lo + 2, 1)
            if w == 1 and st4:
                D = c.V_RD
                for f in range(4):
                    A('ds_read_b128 %s, %s offset:%d' % (v(D + 4 * f, 4), v(c.V_L16), c.L_KV + f * 1024))
                A('ds_read_b128 %s, %s offset:%d' % (v(D + 16, 4), v(c.V_L16), c.L_KM))
                A('ds_read_b64 %s, %s' % (v(D + 20, 2), v(c.V_L8)))
                A('v_mov_b32 %s, %s' % (v(D + 22), s(c.S_STEP)))
                A('s_waitcnt vmcnt(0)')
                emit(c.prog_store(D + 22))
                if p['k4m'] == 0:
                    place(fill, lo, hi, [['s_waitcnt lgkmcnt(0)'] + so], p['k4'], 1)
                else:
                    place(fill, lo, hi, [['s_waitcnt lgkmcnt(0)']], p['k4'], 1)
            if w == 3:
                place(fill, lo, hi, [c.poison_list()[1 if p['pw'] else 0:]], p['pd'], 1)
                if p['touch'] == 1:
                    place(fill, lo, hi, [['s_mov_b64 exec, 0xffff',
                                          'buffer_load_dword %s, %s, %s, %s offen' % (v(c.V_T + 7), v(c.V_TCH), s(c.S_WS, 4), s(c.S_TCH)),
                                          's_mov_b64 exec, -1']], 2, 1)
            if w & 1 and p['touch'] == 2:
                place(fill, lo, hi, [['s_add_u32 %s, %s, 64' % (s(c.S_TCH), s(c.S_TCH))] * (1 if k else 0) +
                                     ['s_buffer_load_dword s6, %s, %s ;poll' % (s(c.S_WS, 4), s(c.S_TCH))] for k in range(16)], 0, 1)
            run(lo, hi, fill)
            if w == 0:
                A('s_waitcnt vmcnt(%d)' % ((32 - nA) // 4))
            if c.diag and w == 0:
                c.dump()
        A('s_mov_b32 %s, %s' % (s(c.S_MEMOFF), s(c.S_NMEM)))
        A('s_add_u32 %s, %s, 1' % (s(c.S_STEP), s(c.S_STEP)))
        A('s_barrier')
        A('s_branch %s' % L_loop)
        c.inloop = False
        if w == 0:
            A.label(L_last)
            emit(c.km_store())
            v_part({})
            v_reduce()
            emit(c.vm_store())
            if st4:
                A('v_mov_b32 %s, %d' % (v(c.V_T), c.nsteps))
                A('s_waitcnt vmcnt(0)')
                A('s_barrier')
                emit(c.prog_store(c.V_T))
            A('s_branch %s' % L_done)
        elif st4:
            A.label(L_fin)
            A('s_waitcnt vmcnt(0)')
            A('s_barrier')
            A('s_branch %s' % L_done)
        for t in tails:
            t()
```

```python
from asm import *
from layout import *
from chain2 import Chain, srd, MF, POLL_MAX
from chain3 import Chain3, MF16, SM


class Chain4(Chain3):
    S_PD, S_KXO, S_VTO, S_EXO = 39, 40, 41, 42
    S_JB, S_EXB = 98, 99
    S_XS, S_GS = 76, 80
    V_TAG, V_FF, V_KC = 17, 24, 5
    V_PR = 136
    L_P4 = 16384
    npoison = 10

    def __init__(self, A, diag=False, nsteps=64, prm=None, tag=''):
        Chain3.__init__(self, A, diag, nsteps, '', None, tag)
        p = dict(wj=1, sel=0, cal=0, n=1, op=2, mp=3, si=3, sa=3, sb=7, wi=3, wa=8, wb=6, cap=3, ex=1, kl=1, pz=0, o0=0, kvt=32, gd=0)
        p.update(prm or {})
        self.p.update(p)

    def before_loop(self):
        pass

    def emit(self, lst):
        for t in lst:
            self.A(t)

    def pause(self, n):
        for _ in range(n // 4):
            self.A('s_nop 15')
        if n & 3:
            self.A('s_nop %d' % (4 * (n & 3) - 1))

    def setup(self):
        A, c = self.A, self
        Chain3.setup(self)
        T = c.S_T
        g, n, t0 = c.V_T, c.V_T + 3, c.V_T + 4
        A('s_lshl_b32 %s, %s, 20' % (s(T), s(c.S_J)))
        A('s_add_u32 %s, %s, 0x%x' % (s(c.S_JB), s(T), JB))
        A('v_and_b32 %s, 7, %s' % (v(t0), v(c.V_L)))
        A('v_lshlrev_b32 %s, 7, %s' % (v(c.V_KM), v(g)))
        A('v_lshl_add_u32 %s, %s, 4, %s' % (v(c.V_KM), v(t0), v(c.V_KM)))
        A('v_lshlrev_b32 %s, 4, %s' % (v(c.V_VM), v(n)))
        A('v_lshl_add_u32 %s, %s, 2, %s' % (v(c.V_VM), v(g), v(c.V_VM)))
        A('v_add_u32 %s, 512, %s' % (v(c.V_VM), v(c.V_VM)))
        A('v_mov_b32 %s, 0xff' % v(c.V_FF))
        A('v_lshlrev_b32 %s, 11, %s' % (v(c.V_XA), v(n)))
        A('v_lshl_add_u32 %s, %s, 4, %s' % (v(c.V_XA), v(g), v(c.V_XA)))
        A('s_lshl_b32 %s, %s, 9' % (s(T), s(c.S_WAVE)))
        A('v_add_u32 %s, %s, %s' % (v(c.V_XA), s(T), v(c.V_XA)))

    def sides(self, ssel):
        A, c = self.A, self
        T = c.S_T
        A('s_add_u32 %s, %s, %s' % (s(c.S_WBB), s(c.S_JB), s(ssel)))
        A('s_lshl_b32 %s, %s, 17' % (s(T), s(c.S_X)))
        A('s_add_u32 %s, %s, %s' % (s(T), s(T), s(c.S_WBB)))
        A('s_add_u32 %s, %s, 0x10000' % (s(c.S_EXB), s(T)))
        A('s_lshl_b32 %s, %s, 2' % (s(T), s(c.S_X)))
        A('s_add_u32 %s, %s, %s' % (s(T), s(T), s(c.S_WBB)))
        A('s_add_u32 %s, %s, 0x8000' % (s(T), s(T)))
        A('v_mov_b32 %s, %s' % (v(c.V_PRG), s(T)))

    def initial_poison(self):
        A, c = self.A, self
        ws = s(c.S_WS, 4)
        A('s_mov_b32 %s, %s' % (s(c.S_STEP), s(c.S_WAVE)))
        A('s_mov_b32 %s, %s' % (s(c.S_WBB), s(c.S_JB)))
        c.emit(c.slot(c.S_PMEM, c.S_MB, 14, 0) + c.slot(c.S_PO, c.S_OBB, 14, 0) + c.wslot(c.S_PW, 0) + c.slot(c.S_PSC, c.S_SCBB, 13, 0))
        c.emit(c.poison_list())
        A('s_add_u32 %s, %s, 0x2000' % (s(c.S_PW), s(c.S_PW)))
        A('buffer_store_dwordx4 %s, %s, %s, %s offen sc1' % (v(c.V_POI, 4), v(c.V_WA), ws, s(c.S_PW)))
        A('s_and_b32 %s, %s, 1' % (s(c.S_T + 4), s(c.S_WAVE)))
        A('s_lshl_b32 %s, %s, 13' % (s(c.S_T + 4), s(c.S_T + 4)))
        c.sides(c.S_T + 4)
        A('v_mov_b32 %s, 0' % v(c.V_T))
        c.emit(c.prog_store(c.V_T))

    image = False

    def xrow(self, dst, t, soff):
        c = self
        if c.image:
            return 'buffer_load_dwordx4 %s, %s, %s, %s offen offset:%d' % (v(dst, 4), v(0 if t >> 2 else c.V_XA), s(c.S_XS, 4), s(soff), (t & 3) * 1024)
        return 'buffer_load_dwordx4 %s, %s, %s, %s offen offset:%d' % (v(dst, 4), v(c.V_XA), s(c.S_XS, 4), s(soff), t * 64)

    def pmf4(self, idx, xf):
        c = self
        tt, t, m = idx >> 5, (idx >> 2) & 7, idx & 3
        acc = v(c.V_PA + tt * 16 + m * 4, 4)
        x = v(xf + tt * 32 + t * 4, 4)
        wf = a(((2 + m) * 8 + t) * 4, 4)
        cc = acc if t else '0'
        return MF % ((acc, wf, x, cc) if m < 2 else (acc, x, wf, cc))

    def pst(self, k):
        q = self.p.get('pq', 0)
        if self.p.get('ts') and k // 4 == q:
            assert not self.p['cal']
            self.A('s_memrealtime %s' % s(84 + 2 * (k & 3), 2))

    def prologue(self, L_exit, L_done):
        A, c = self.A, self
        p = c.p
        ws = s(c.S_WS, 4)
        T = c.S_T
        XF = (192, 40)
        ptr = c.S_M
        A('s_load_dwordx2 %s, s[0:1], %d' % (s(ptr + 8, 2), K_X))
        A('s_load_dwordx2 %s, s[0:1], %d' % (s(T + 6, 2), K_GW))
        c.setup()
        A('s_waitcnt lgkmcnt(0)')
        srd(A, c.S_XS, ptr + 8, 4 * MB)
        srd(A, c.S_GS, T + 6, 2048)
        c.pst(0)
        GX, GW, GA = 192, 224, 160
        A('s_lshl_b32 %s, %s, 5' % (s(c.S_KXO), s(c.S_X)))
        A('s_add_u32 %s, %s, %s' % (s(c.S_KXO), s(c.S_KXO), s(c.S_J)))
        pa = p.get('pa')

        def xi_loads():
            A('s_lshr_b32 %s, %s, 1' % (s(T + 2), s(c.S_J)))
            A('s_lshl_b32 %s, %s, 15' % (s(T + 2), s(T + 2)))
            A('s_and_b32 %s, %s, 1' % (s(T + 1), s(c.S_J)))
            A('s_lshl_b32 %s, %s, 8' % (s(T + 1), s(T + 1)))
            A('s_add_u32 %s, %s, %s' % (s(T + 2), s(T + 2), s(T + 1)))
            for t in range(4):
                A(c.xrow(40 + 4 * t, t, T + 2))
        def gate_loads():
            A('s_lshl_b32 %s, %s, 15' % (s(T), s(c.S_KXO)))
            for t in range(8):
                A(c.xrow(GX + 4 * t, t, T))
            A('v_and_b32 %s, 0x30, %s' % (v(c.V_T + 6), v(c.V_L)))
            A('s_lshl_b32 %s, %s, 9' % (s(T), s(c.S_WAVE)))
            for t in range(8):
                A('buffer_load_dwordx4 %s, %s, %s, %s offen offset:%d' % (v(GW + 4 * t, 4), v(c.V_T + 6), s(c.S_GS, 4), s(T), t * 64))
        if pa:
            xi_loads()
        if pa != 2:
            gate_loads()
            if p.get('xi') and not pa:
                xi_loads()
            c.initial_poison()

        def xi_stores():
            A('s_lshr_b32 %s, %s, 1' % (s(T + 4), s(c.S_J)))
            A('s_lshl_b32 %s, %s, 2' % (s(T + 4), s(T + 4)))
            A('s_add_u32 %s, %s, %s' % (s(T + 4), s(T + 4), s(c.S_WAVE)))
            A('s_lshl_b32 %s, %s, 1' % (s(T + 4), s(T + 4)))
            A('s_and_b32 %s, %s, 1' % (s(T + 5), s(c.S_J)))
            A('s_add_u32 %s, %s, %s' % (s(T + 4), s(T + 4), s(T + 5)))
            A('s_lshl_b32 %s, %s, 12' % (s(T + 4), s(T + 4)))
            A('s_lshl_b32 %s, %s, 19' % (s(T + 5), s(c.S_X)))
            A('s_add_u32 %s, %s, %s' % (s(T + 4), s(T + 4), s(T + 5)))
            A('s_add_u32 %s, %s, 0x%x' % (s(T + 4), s(T + 4), XI))
            for t in range(4):
                A('buffer_store_dwordx4 %s, %s, %s, %s offen offset:%d' % (v(40 + 4 * t, 4), v(c.V_L16), ws, s(T + 4), t * 1024))
        c.xi_stores = xi_stores
        U = 84

        def samples(n):
            A('s_mov_b32 %s, -1' % s(U))
            A('s_mov_b32 %s, -1' % s(U + 1))
            A('s_add_u32 %s, %s, 0xa0000' % (s(U + 2), s(c.S_JB)))
            if pa:
                A('s_mul_i32 %s, %s, %d' % (s(U + 3), s(c.S_WAVE), 256 * n))
                A('s_add_u32 %s, %s, %s' % (s(U + 2), s(U + 2), s(U + 3)))
            A('s_mov_b32 %s, 0' % s(U + 3))
            Ll = A.new_label('cl')
            A.label(Ll)
            for pol in range(2):
                A('s_memtime %s' % s(U + 4, 2))
                A('s_waitcnt lgkmcnt(0)')
                A('s_buffer_load_dword %s, %s, %s' % (s(U + 8), ws, s(U + 2)))
                A('s_waitcnt lgkmcnt(0)')
                A('s_memtime %s' % s(U + 6, 2))
                A('s_xor_b32 %s, %s, 0x2000' % (s(U + 2), s(U + 2)))
                A('s_waitcnt lgkmcnt(0)')
                A('s_sub_u32 %s, %s, %s' % (s(U + 4), s(U + 6), s(U + 4)))
                A('s_min_u32 %s, %s, %s' % (s(U + pol), s(U + pol), s(U + 4)))
            A('s_add_u32 %s, %s, 256' % (s(U + 2), s(U + 2)))
            A('s_add_u32 %s, %s, 1' % (s(U + 3), s(U + 3)))
            A('s_cmp_lt_u32 %s, %d' % (s(U + 3), n))
            A('s_cbranch_scc1 %s' % Ll)
        def cal4():
            Lc0 = A.new_label('c0')
            A('s_cmp_lg_u32 %s, 0' % s(c.S_X))
            A('s_cbranch_scc1 %s' % Lc0)
            samples(p['cal'] // 4)
            A('s_lshl_b32 %s, %s, 3' % (s(U + 3), s(c.S_WAVE)))
            A('v_mov_b32 %s, %s' % (v(c.V_T + 2), s(U)))
            A('v_mov_b32 %s, %s' % (v(c.V_T + 3), s(U + 1)))
            A('v_mov_b32 %s, %s' % (v(c.V_T + 4), s(U + 3)))
            A('ds_write_b64 %s, %s offset:1024' % (v(c.V_T + 4), v(c.V_T + 2, 2)))
            A.label(Lc0)
        if pa == 1 and p['cal']:
            cal4()

        def early():
            gate_loads()
            c.initial_poison()
            if p['cal'] and not p.get('cp'):
                cal4()
        c.early = early
        c.cal4 = cal4

        def warm():
            Lw0 = A.new_label('w0')
            A('s_cmp_lg_u32 %s, 0' % s(c.S_X))
            A('s_cbranch_scc1 %s' % Lw0)
            A('s_add_u32 %s, %s, 0xa1f00' % (s(U + 2), s(c.S_JB)))
            A('s_add_u32 %s, %s, 0xa3f00' % (s(U + 3), s(c.S_JB)))
            A('s_buffer_load_dword %s, %s, %s' % (s(U + 8), ws, s(U + 2)))
            A('s_buffer_load_dword %s, %s, %s' % (s(U + 7), ws, s(U + 3)))
            A.label(Lw0)
        c.warm = warm

        def gate():
            A('s_waitcnt vmcnt(%d)' % (c.npoison + {None: 32, 0: 32, 1: 36, 2: 28}[pa]))
            c.pst(2)
            if p.get('xi') and not pa:
                xi_stores()
            for t in range(8):
                A(MF % (v(GA, 4), v(GW + 4 * t, 4), v(GX + 4 * t, 4), v(GA, 4) if t else '0'))
            t0 = c.V_T
            A('v_lshlrev_b32 %s, 2, %s' % (v(t0), v(c.V_L)))
            A('s_lshl_b32 %s, %s, 8' % (s(T + 4), s(c.S_WAVE)))
            A('v_add_u32 %s, %s, %s' % (v(t0 + 1), s(T + 4), v(t0)))
            A('ds_write_b32 %s, %s' % (v(t0 + 1), v(GA)))
            A('s_waitcnt lgkmcnt(0)')
            A('s_barrier')
            Lg, Lc = A.new_label('gt'), A.new_label('cb')
            A('s_cmp_lg_u32 %s, 0' % s(c.S_WAVE))
            A('s_cbranch_scc1 %s' % Lg)
            for w in range(4):
                A('ds_read_b32 %s, %s offset:%d' % (v(GA + w), v(t0), w * 256))
            A('s_waitcnt lgkmcnt(0)')
            A('v_add_f32 %s, %s, %s' % (v(GA), v(GA), v(GA + 1)))
            A('v_add_f32 %s, %s, %s' % (v(GA + 2), v(GA + 2), v(GA + 3)))
            A('v_add_f32 %s, %s, %s' % (v(GA), v(GA), v(GA + 2)))
            A('v_mul_f32 %s, 0xbfb8aa3b, %s' % (v(GA), v(GA)))
            A('v_exp_f32 %s, %s' % (v(GA), v(GA)))
            A('v_add_f32 %s, 1.0, %s' % (v(GA), v(GA)))
            A('v_rcp_f32 %s, %s' % (v(GA), v(GA)))
            A('s_lshl_b32 %s, %s, 6' % (s(T + 4), s(c.S_KXO)))
            A('s_add_u32 %s, %s, 0x%x' % (s(T + 4), s(T + 4), GV))
            A('s_mov_b64 exec, 0xffff')
            A('buffer_store_dword %s, %s, %s, %s offen sc1' % (v(GA), v(t0), ws, s(T + 4)))
            A('s_mov_b64 exec, -1')
            A.label(Lg)
            if not p['cal']:
                return
            A('s_cmp_lg_u32 %s, 3' % s(c.S_WAVE))
            A('s_cbranch_scc1 %s' % Lc)
            A('s_cmp_lg_u32 %s, 0' % s(c.S_X))
            A('s_cbranch_scc1 %s' % Lc)
            if pa:
                A('v_mov_b32 %s, 0' % v(t0))
                A('ds_read_b128 %s, %s offset:1024' % (v(GA, 4), v(t0)))
                A('ds_read_b128 %s, %s offset:1040' % (v(GA + 4, 4), v(t0)))
                A('s_waitcnt lgkmcnt(0)')
                for pol in range(2):
                    A('v_min_u32 %s, %s, %s' % (v(GA + pol), v(GA + pol), v(GA + 2 + pol)))
                    A('v_min3_u32 %s, %s, %s, %s' % (v(GA + pol), v(GA + pol), v(GA + 4 + pol), v(GA + 6 + pol)))
                for pol in range(2):
                    A('v_readfirstlane_b32 %s, %s' % (s(U + pol), v(GA + pol)))
            else:
                samples(p['cal'])
            A('s_cmp_lt_u32 %s, %s' % (s(U + 1), s(U)))
            A('s_cselect_b32 %s, 1, 0' % s(U + 3))
            A('s_lshl_b32 %s, %s, %s' % (s(U + 3), s(U + 3), s(c.S_J)))
            A('v_mov_b32 %s, %s' % (v(t0), s(U + 3)))
            A('v_mov_b32 %s, %d' % (v(t0 + 1), D_SEL))
            A('s_mov_b64 exec, 1')
            A('buffer_atomic_or %s, %s, %s, 0 offen sc1' % (v(t0), v(t0 + 1), s(c.S_DB, 4)))
            A('s_mov_b64 exec, -1')
            if c.diag:
                A('s_mov_b32 %s, %s' % (s(c.S_RC), s(U)))
                A('s_mov_b32 %s, %s' % (s(c.S_RC + 1), s(U + 1)))
            A.label(Lc)

        def arrive_x():
            Lx = A.new_label('xa')
            A('s_lshl_b32 %s, %s, 2' % (s(T + 4), s(c.S_X)))
            A('s_add_u32 %s, %s, %d' % (s(T + 4), s(T + 4), D_TA))
            A('v_mov_b32 %s, %s' % (v(c.V_T + 7), s(T + 4)))
            A('s_cmp_lg_u32 %s, 0' % s(c.S_WAVE))
            A('s_barrier')
            A('s_cbranch_scc1 %s' % Lx)
            A('s_mov_b64 exec, 1')
            A('buffer_atomic_add %s, %s, %s, 0 offen sc1' % (v(c.V_C1), v(c.V_T + 7), s(c.S_DB, 4)))
            A('s_mov_b64 exec, -1')
            if pa == 1:
                Lz = A.new_label('xz')
                A('s_waitcnt vmcnt(1)')
                A('s_branch %s' % Lz)
                A.label(Lx)
                A('s_waitcnt vmcnt(0)')
                A.label(Lz)
                return
            A.label(Lx)
        c.arrive_x = arrive_x if p.get('xi') else None

        from gside2 import VM
        vm = VM(A)

        def first_x(behind=None):
            A('s_mov_b32 %s, 0' % s(c.S_KXO))
            A('s_mov_b32 %s, 0x8000' % s(c.S_VTO))
            if p.get('xi'):
                Lx, Ly = A.new_label('xw'), A.new_label('xy')
                ld = 'buffer_load_dword %s, %s, %s, 0 offen sc1' % (v(c.V_T + 6), v(c.V_T + 7), s(c.S_DB, 4))
                if behind:
                    if pa == 2:
                        behind(ld)
                    else:
                        A(ld)
                        vm.issue(('w', 0), behind)
                        A('s_waitcnt vmcnt(4)')
                    A('v_readfirstlane_b32 %s, %s' % (s(T + 4), v(c.V_T + 6)))
                    A('s_cmp_ge_u32 %s, 32' % s(T + 4))
                    A('s_cbranch_scc1 %s' % Ly)
                A('s_mov_b32 %s, 0' % s(c.S_CNT))
                A.label(Lx)
                A(ld)
                A('s_add_u32 %s, %s, 1' % (s(c.S_CNT), s(c.S_CNT)))
                A('s_cmp_ge_u32 %s, 0x%x' % (s(c.S_CNT), POLL_MAX))
                A('s_cbranch_scc1 %s' % L_exit)
                A('s_waitcnt vmcnt(0)')
                A('v_readfirstlane_b32 %s, %s' % (s(T + 4), v(c.V_T + 6)))
                A('s_cmp_lt_u32 %s, 32' % s(T + 4))
                A('s_cbranch_scc1 %s' % Lx)
                A.label(Ly)
                c.pst(3)
                srd(A, c.S_XS, 6, WS_BYTES)
                A('s_lshl_b32 %s, %s, 19' % (s(T + 4), s(c.S_X)))
                A('s_lshl_b32 %s, %s, 13' % (s(T + 5), s(c.S_WAVE)))
                A('s_add_u32 %s, %s, %s' % (s(T + 4), s(T + 4), s(T + 5)))
                A('s_add_u32 %s, %s, 0x%x' % (s(T + 4), s(T + 4), XI))
                A('v_add_u32 %s, %s, %s' % (v(c.V_XA), s(T + 4), v(c.V_L16)))
                A('v_add_u32 v0, 0x1000, %s' % v(c.V_XA))
                c.image = True
            for b in range(2):
                for tt in range(2):
                    for t in range(8):
                        vm.issue(('x', b), [c.xrow(XF[b] + tt * 32 + 4 * t, t, c.S_VTO if tt else c.S_KXO)])
                A('s_add_u32 %s, %s, 0x10000' % (s(c.S_KXO), s(c.S_KXO)))
                A('s_add_u32 %s, %s, 0x10000' % (s(c.S_VTO), s(c.S_VTO)))

        def arrive_start():
            La = A.new_label('arr')
            A('s_cmp_lg_u32 %s, 0' % s(c.S_WAVE))
            A('s_cbranch_scc1 %s' % La)
            A('v_mov_b32 %s, %d' % (v(c.V_T + 1), D_START))
            A('s_mov_b64 exec, 1')
            A('buffer_atomic_add %s, %s, %s, 0 offen sc1' % (v(c.V_C1), v(c.V_T + 1), s(c.S_DB, 4)))
            A('s_mov_b64 exec, -1')
            A.label(La)
        if pa:
            dma, rdo = c.weights5(gate, first_x, vm)
            if pa == 2:
                A('s_barrier')
                arrive_start()
        else:
            c.weights4(gate, first_x)
            A('s_barrier')
            arrive_start()
            if hasattr(c, 'after_weights'):
                c.after_weights()
        if c.diag:
            A('s_memtime s[94:95]')
        if p.get('ts'):
            A('s_memrealtime s[94:95]')
        PR, PK, RD = c.V_PR, c.V_PR + 4, 104
        A('s_cmp_lt_u32 %s, 2' % s(c.S_WAVE))
        A('s_cselect_b32 %s, 4, 1' % s(T))
        A('s_cselect_b32 %s, 1, 4' % s(T + 1))
        A('s_lshl_b32 %s, %s, 10' % (s(T), s(T)))
        A('s_lshl_b32 %s, %s, 10' % (s(T + 1), s(T + 1)))
        A('s_mul_i32 %s, %s, %s' % (s(T + 2), s(T), s(c.S_WAVE)))
        A('s_add_u32 %s, %s, 0x%x' % (s(T + 2), s(T + 2), c.L_P4))
        A('v_add_u32 %s, %s, %s' % (v(PR), s(T + 2), v(c.V_L16)))
        A('v_add_u32 %s, %s, %s' % (v(PR + 1), s(T + 1), v(PR)))
        A('s_lshl_b32 %s, %s, 13' % (s(T + 2), s(c.S_WAVE)))
        A('s_add_u32 %s, %s, 0x%x' % (s(T + 2), s(T + 2), c.L_P4))
        A('v_add_u32 %s, %s, %s' % (v(c.V_PW), s(T + 2), v(c.V_L16)))
        A('s_and_b32 %s, %s, 1' % (s(T + 2), s(c.S_WAVE)))
        A('s_mul_i32 %s, %s, %s' % (s(T + 2), s(T + 2), s(T)))
        A('s_cmp_lt_u32 %s, 2' % s(c.S_WAVE))
        A('s_cselect_b32 %s, 10, 11' % s(T + 3))
        A('s_lshl_b32 %s, %s, %s' % (s(T + 3), s(c.S_C), s(T + 3)))
        A('s_add_u32 %s, %s, %s' % (s(T + 2), s(T + 2), s(T + 3)))
        A('s_lshl_b32 %s, %s, 13' % (s(T + 3), s(c.S_H)))
        A('s_add_u32 %s, %s, %s' % (s(T + 2), s(T + 2), s(T + 3)))
        A('s_cmp_lt_u32 %s, 2' % s(c.S_WAVE))
        A('s_mov_b32 %s, 0x%x' % (s(T + 3), KX))
        A('s_cselect_b32 %s, 0, 0x%x' % (s(T + 4), VT - KX))
        A('s_add_u32 %s, %s, %s' % (s(T + 2), s(T + 2), s(T + 3)))
        A('s_add_u32 %s, %s, %s' % (s(c.S_EXO), s(T + 2), s(T + 4)))
        A('s_mov_b32 %s, 0' % s(c.S_STEP))

        def reduce(b):
            rd = []
            for ww in range(4):
                for q in range(2):
                    rd.append('ds_read_b128 %s, %s offset:%d' % (v(RD + ww * 8 + q * 4, 4), v(PR + q), b * 32768 + ww * 8192))
            ad = []
            for half in range(2):
                for r in range(0, 8, 2):
                    ad.append('v_pk_add_f32 %s, %s, %s' % (v(RD + half * 16 + r, 2), v(RD + half * 16 + r, 2), v(RD + half * 16 + 8 + r, 2)))
            for r in range(0, 8, 2):
                ad.append('v_pk_add_f32 %s, %s, %s' % (v(RD + r, 2), v(RD + r, 2), v(RD + 16 + r, 2)))
            for q in range(4):
                ad.append('v_cvt_pk_bf16_f32 %s, %s, %s' % (v(PK + q), v(RD + 2 * q), v(RD + 2 * q + 1)))
            st = ['buffer_store_dwordx4 %s, %s, %s, %s offen sc1' % (v(PK, 4), v(c.V_L16), ws, s(c.S_EXO)),
                  's_add_u32 %s, %s, 0x40000' % (s(c.S_EXO), s(c.S_EXO))]
            return rd, ad, st

        def segment(b, first):
            fill = {}
            if not first:
                rd, ad, st = reduce(b ^ 1)
                for k, t in enumerate(rd):
                    fill.setdefault(k, []).append(t)
                fill.setdefault(11, []).append('s_waitcnt lgkmcnt(0)')
                for k, t in enumerate(ad):
                    fill.setdefault(12 + k // 2, []).append(t)
                fill.setdefault(22, []).extend(st)
            for t in range(8):
                fill.setdefault(33 + 2 * t, []).append(c.xrow(XF[b] + 4 * t, t, c.S_KXO))
            A('s_waitcnt vmcnt(16)')
            for idx in range(64):
                A(c.pmf4(idx, XF[b]))
                c.emit(fill.get(idx, []))
                if idx == 40:
                    for m in range(4):
                        A('ds_write_b128 %s, %s offset:%d' % (v(c.V_PW), v(c.V_PA + m * 4, 4), b * 32768 + m * 1024))
            for t in range(8):
                A(c.xrow(XF[b] + 32 + 4 * t, t, c.S_VTO))
            A('s_add_u32 %s, %s, 0x10000' % (s(c.S_KXO), s(c.S_KXO)))
            A('s_add_u32 %s, %s, 0x10000' % (s(c.S_VTO), s(c.S_VTO)))
            for m in range(4):
                A('ds_write_b128 %s, %s offset:%d' % (v(c.V_PW), v(c.V_PA + 16 + m * 4, 4), b * 32768 + 4096 + m * 1024))
            A('s_waitcnt lgkmcnt(0)')
            A('s_barrier')
        def segment5(sg):
            b = sg & 1
            fill = {}

            def add(k, tag, lst):
                fill.setdefault(k, []).append((tag, lst))
            if sg:
                rd, ad, st = reduce(b ^ 1)
                for k, t in enumerate(rd):
                    add(k, None, [t])
                add(11, None, ['s_waitcnt lgkmcnt(0)'])
                for k, t in enumerate(ad):
                    add(12 + k // 2, None, [t])
                add(22, 's', st)
            if pa == 1:
                if sg < 7:
                    for k in range(4):
                        add(2 * k, ('w', sg + 1), dma(4 * sg + 4 + k))
                if sg != 1:
                    for k, t in enumerate(rdo(max(sg - 1, 0))):
                        add(23 + k, None, [t])
                if sg >= 6:
                    for k in range(4):
                        add(33 + 2 * k, 'n', dma(32 + 4 * (sg - 6) + k))
            else:
                if sg in (2, 3):
                    for k, t in enumerate(rdo(2 * sg) + rdo(2 * sg + 1)):
                        add(23 + k, None, [t])
                if sg in (3, 4):
                    for k in range(8):
                        add(k, 'n', dma(32 + 8 * (sg - 3) + k))
            if sg < 6:
                for t in range(8):
                    add(33 + 2 * t, ('x', sg + 2), [c.xrow(XF[b] + 4 * t, t, c.S_KXO)])
            vm.wait(('x', sg))
            for idx in range(64):
                A(c.pmf4(idx, XF[b]))
                for tag, lst in fill.get(idx, []):
                    vm.issue(tag, lst)
                if idx == 40:
                    for m in range(4):
                        A('ds_write_b128 %s, %s offset:%d' % (v(c.V_PW), v(c.V_PA + m * 4, 4), b * 32768 + m * 1024))
            if sg < 6:
                for t in range(8):
                    vm.issue(('x', sg + 2), [c.xrow(XF[b] + 32 + 4 * t, t, c.S_VTO)])
                A('s_add_u32 %s, %s, 0x10000' % (s(c.S_KXO), s(c.S_KXO)))
                A('s_add_u32 %s, %s, 0x10000' % (s(c.S_VTO), s(c.S_VTO)))
            for m in range(4):
                A('ds_write_b128 %s, %s offset:%d' % (v(c.V_PW), v(c.V_PA + 16 + m * 4, 4), b * 32768 + 4096 + m * 1024))
            if sg == 7 and pa == 1:
                vm.wait(('w', 7))
                c.emit(rdo(7))
            A('s_waitcnt lgkmcnt(0)')
            A('s_barrier')
            if sg == 0 and pa == 1:
                arrive_start()
        if pa:
            for sg in range(8):
                segment5(sg)
            rd, ad, st = reduce(1)
            c.emit(rd + ['s_waitcnt lgkmcnt(0)'] + ad + st)
            for k in range(8, 16 if pa == 1 else 8):
                c.emit(dma(32 + k))
        else:
            Lp, Lq = A.new_label('pj'), A.new_label('pj')
            segment(0, True)
            A('s_branch %s' % Lq)
            A.label(Lp)
            segment(0, False)
            A.label(Lq)
            segment(1, False)
            A('s_add_u32 %s, %s, 2' % (s(c.S_STEP), s(c.S_STEP)))
            A('s_cmp_lt_u32 %s, %d' % (s(c.S_STEP), 8 * p['n']))
            A('s_cbranch_scc1 %s' % Lp)
            rd, ad, st = reduce(1)
            c.emit(rd + ['s_waitcnt lgkmcnt(0)'] + ad + st)
        if c.diag:
            A('s_memtime s[96:97]')
        if p.get('ts'):
            A('s_memrealtime s[92:93]')
        A('s_mov_b32 %s, 0' % s(c.S_STEP))
        t = c.V_T + 4
        A('v_mov_b32 %s, %d' % (v(t + 2), D_START))
        A('s_mov_b32 %s, 0' % s(c.S_CNT))
        Ls = A.new_label('sb')
        A.label(Ls)
        A('buffer_load_dwordx2 %s, %s, %s, 0 offen sc1' % (v(t, 2), v(t + 2), s(c.S_DB, 4)))
        A('s_add_u32 %s, %s, 1' % (s(c.S_CNT), s(c.S_CNT)))
        A('s_cmp_ge_u32 %s, 0x%x' % (s(c.S_CNT), POLL_MAX))
        A('s_cbranch_scc1 %s' % L_exit)
        A('s_waitcnt vmcnt(0)')
        A('v_readfirstlane_b32 %s, %s' % (s(T), v(t)))
        A('v_readfirstlane_b32 %s, %s' % (s(T + 4), v(t + 1)))
        A('s_cmp_lt_u32 %s, 128' % s(T))
        A('s_cbranch_scc1 %s' % Ls)
        if p['cal']:
            A('s_lshr_b32 %s, %s, %s' % (s(T + 4), s(T + 4), s(c.S_J)))
            A('s_and_b32 %s, %s, 1' % (s(T + 4), s(T + 4)))
            A('s_lshl_b32 %s, %s, 13' % (s(T + 4), s(T + 4)))
        else:
            A('s_mov_b32 %s, 0x%x' % (s(T + 4), p['sel'] * 0x2000))
        c.sides(T + 4)
        A('v_mov_b32 %s, 0' % v(c.V_T))
        A('ds_write_b32 %s, %s' % (v(c.V_Z), v(c.V_T)))
        c.emit(c.zero(c.A_QK, 24))
        if p.get('zw'):
            c.emit(c.zero(c.A_WO, 8))
        A('v_mov_b32 %s, %d' % (v(c.V_T + 7), D_KV))
        A('s_mov_b32 %s, %s' % (s(c.S_MEMOFF), s(c.S_MB)))
        A('s_mov_b32 %s, %s' % (s(c.S_OOFF), s(c.S_OBB)))
        A('s_cmp_eq_u32 %s, 2' % s(c.S_WAVE))
        A('s_cselect_b32 %s, %s, %s' % (s(c.S_SCOFF), s(c.S_WBB), s(c.S_SCBB)))
        A('s_mov_b32 %s, 3' % s(c.S_VT))
        c.before_loop()
        A('s_waitcnt lgkmcnt(0)')
        A('s_barrier')
        L1, L2 = A.new_label('p1'), A.new_label('p2')
        A('s_cmp_lg_u32 %s, 1' % s(c.S_WAVE))
        A('s_cbranch_scc1 %s' % L1)
        c.publish_mem0()
        c.publish_mem0_store()
        A.label(L1)
        A('s_cmp_lg_u32 %s, 0' % s(c.S_WAVE))
        A('s_cbranch_scc1 %s' % L2)
        for k in range(4):
            A('v_mov_b32 %s, 0x3f803f80' % v(c.V_ONE + k))
        A('s_mov_b32 %s, -1' % s(c.S_STEP))
        c.emit(c.kv_next())
        A('s_mov_b32 %s, 0' % s(c.S_STEP))
        A.label(L2)
        if c.diag:
            L3 = A.new_label('p3')
            A('s_cmp_lg_u32 %s, 3' % s(c.S_WAVE))
            A('s_cbranch_scc1 %s' % L3)
            c.sync_clock(2)
            A.label(L3)
        elif p.get('st'):
            A('s_memrealtime s[2:3]')
        c.loop(L_exit, L_done)

    def weights4(self, gate, first_x):
        A, c = self.A, self
        n0 = len(A.lines)
        Chain3.load_weights(self, 0, 'none')
        k = next(i for i in range(n0, len(A.lines)) if A.lines[i].startswith('s_waitcnt lgkmcnt(0)'))
        del A.lines[k + 1:]
        vsrc_qkv, vsrc_o, vtr, vtro = c.V_RD + 24, c.V_RD + 25, c.V_RD + 26, c.V_RD + 27
        for q in range(4):
            A('v_mov_b32 %s, %s' % (v(vsrc_qkv + q), v(c.V_RD + q)))
        T = c.S_T
        sbase = T + 2
        mats = [(K_WK, vsrc_qkv, 8192, 1), (K_WV, vsrc_qkv, 8192, 2), (K_WQ, vsrc_qkv, 8192, 0), (K_WO, vsrc_o, 2048, 3)]
        ptr = c.S_M

        def issue(m):
            ko, vs, stride, idx = mats[m]
            srd(A, c.S_W, ptr + 2 * m, 8 * MB)
            if c.p.get('hs'):
                A('s_and_b32 %s, %s, 1' % (s(T + 1), s(c.S_J)))
                A('s_lshl_b32 %s, %s, 13' % (s(T + 3), s(T + 1)))
                A('s_add_u32 %s, %s, %s' % (s(T + 3), s(T + 3), s(sbase)))
                A('s_add_u32 %s, %s, 0x%x' % (s(T + 3), s(T + 3), (m & 1) * 16384))
                A('s_mul_i32 %s, %s, 0x%x' % (s(T + 1), s(T + 1), 128 * stride))
                for q in range(16):
                    A('s_xor_b32 m0, %s, 0x%x' % (s(T + 3), q * 1024))
                    A('s_xor_b32 %s, %s, 0x%x' % (s(T), s(T + 1), q * 16 * stride))
                    A('buffer_load_dwordx4 %s, %s, %s offen lds' % (v(vs), s(c.S_W, 4), s(T)))
                return
            for q in range(16):
                A('s_add_u32 m0, %s, 0x%x' % (s(sbase), (m & 1) * 16384 + q * 1024))
                A('s_mov_b32 %s, 0x%x' % (s(T), q * 16 * stride))
                A('buffer_load_dwordx4 %s, %s, %s offen lds' % (v(vs), s(c.S_W, 4), s(T)))

        def readout(m):
            idx = mats[m][3]
            for t in range(8):
                for tau in range(2):
                    for hh in range(2):
                        A('ds_read_b64_tr_b16 %s, %s offset:%d' % (a(((idx * 2 + tau) * 8 + t) * 4 + 2 * hh, 2), v(vtr if idx < 3 else vtro),
                                                                   (m & 1) * 16384 + t * 2048 + hh * (256 if idx < 3 else 128) + tau * 32))
                if t & 1:
                    A('s_waitcnt lgkmcnt(0)')
        issue(0)
        issue(1)
        c.pst(1)
        gate()
        if c.arrive_x:
            st = c.pst
            A('s_waitcnt vmcnt(20)')
            st(4)
            st(11)
            readout(0)
            issue(2)
            A('s_waitcnt vmcnt(16)')
            st(5)
            c.arrive_x()
            readout(1)
            issue(3)
            A('s_waitcnt vmcnt(16)')
            st(6)
            readout(2)
            first_x()
            readout(3)
            return
        A('s_waitcnt vmcnt(16)')
        readout(0)
        issue(2)
        A('s_waitcnt vmcnt(16)')
        readout(1)
        issue(3)
        first_x()
        A('s_waitcnt vmcnt(48)')
        readout(2)
        A('s_waitcnt vmcnt(32)')
        readout(3)

    def weights5(self, gate, first_x, vm):
        A, c = self.A, self
        n0 = len(A.lines)
        Chain3.load_weights(self, 0, 'none')
        k = next(i for i in range(n0, len(A.lines)) if A.lines[i].startswith('s_waitcnt lgkmcnt(0)'))
        del A.lines[k + 1:]
        vq, vo, vtr, vtro = 144, 145, 146, 147
        T, SB, ptr = c.S_T, 70, c.S_M
        A('s_lshl_b32 %s, %s, 14' % (s(SB), s(c.S_WAVE)))
        A('v_mov_b32 %s, %s' % (v(vq), v(c.V_RD)))
        A('v_mov_b32 %s, %s' % (v(vo), v(c.V_RD + 1)))
        A('v_subrev_u32 %s, %s, %s' % (v(vtr), s(SB), v(c.V_RD + 2)))
        A('v_subrev_u32 %s, %s, %s' % (v(vtro), s(SB), v(c.V_RD + 3)))
        A('v_add_u32 %s, 0x10000, %s' % (v(vtro), v(vtro)))
        assert c.L_STAGE == 16384 and c.L_W2 == 81920 and c.L_P4 == 16384

        def piece(m, q):
            out = []
            if q == 0 and m < 4:
                out = ['s_mov_b32 %s, %s' % (s(c.S_W), s(ptr + 2 * m)), 's_mov_b32 %s, %s' % (s(c.S_W + 1), s(ptr + 2 * m + 1))]
            if q == 0 and m == 4:
                out = ['v_xor_b32 %s, 64, %s' % (v(vo), v(vo))]
            return out + ['s_add_u32 m0, %s, 0x%x' % (s(SB), (16384 if m == 0 or (m == 2 and c.p['pa'] == 2) else 81920) + q * 1024),
                          's_mov_b32 %s, 0x%x' % (s(SB + 1), q * 16 * (8192 if m < 3 else 2048)),
                          'buffer_load_dwordx4 %s, %s, %s offen lds' % (v(vq if m < 3 else vo), s(c.S_W, 4), s(SB + 1))]

        def reads(m, t):
            idx = (1, 2, 0, 3)[m]
            return ['ds_read_b64_tr_b16 %s, %s offset:%d' % (a(((idx * 2 + tau) * 8 + t) * 4 + 2 * hh, 2), v(vtr if idx < 3 else vtro),
                                                             t * 2048 + hh * (256 if idx < 3 else 128) + tau * 32) for tau in range(2) for hh in range(2)]

        def readout(m):
            for t in range(8):
                c.emit(reads(m, t))
                if t & 1:
                    A('s_waitcnt lgkmcnt(0)')
        srd(A, c.S_W, ptr, 8 * MB)
        dma = lambda i: piece(2 + (i >> 4), i & 15)
        rdo = lambda g: reads(2 + (g >> 2), 2 * (g & 3)) + reads(2 + (g >> 2), 2 * (g & 3) + 1)
        if c.p['pa'] == 2:
            for q in range(4):
                c.emit(piece(0, q))
            if c.p['cal'] and c.p.get('cw'):
                c.warm()
            A('s_waitcnt vmcnt(4)')
            c.xi_stores()
            c.early()
            for q in range(4, 16):
                c.emit(piece(0, q))
            if c.p['cal'] and c.p.get('cp') == 2:
                c.cal4()
            A('s_waitcnt vmcnt(%d)' % (28 + c.npoison))
            c.arrive_x()
            c.pst(1)
            for q in range(16):
                c.emit(piece(1, q))
            if c.p['cal'] and c.p.get('cp') == 1:
                c.cal4()
            gate()
            A('s_waitcnt vmcnt(16)')
            c.pst(4)
            readout(0)

            def behind(ld):
                A(ld)
                for q in range(16):
                    vm.issue('q', piece(2, q))
                A('v_add_u32 %s, 0x10000, %s' % (v(vtr), v(vtr)))
                A('s_waitcnt vmcnt(16)')
                c.pst(5)
                readout(1)
            first_x(behind)
            for q in range(16):
                vm.issue('o', piece(3, q))
            A('v_subrev_u32 %s, 0x10000, %s' % (v(vtr), v(vtr)))
            vm.wait('q')
            c.pst(6)
            readout(2)
            return dma, rdo
        for q in range(16):
            c.emit(piece(0, q))
        A('s_waitcnt vmcnt(%d)' % (32 + c.npoison))
        c.xi_stores()
        for q in range(16):
            c.emit(piece(1, q))
        c.pst(1)
        gate()
        A('s_waitcnt vmcnt(16)')
        c.pst(4)
        readout(0)
        c.arrive_x()
        A('v_add_u32 %s, 0x10000, %s' % (v(vtr), v(vtr)))
        c.pst(5)
        readout(1)
        first_x(sum([dma(i) for i in range(4)], []))
        return dma, rdo

    def kv_next(self):
        c = self
        T = c.S_T + 2
        ws = s(c.S_WS, 4)
        out = ['s_add_u32 %s, %s, 1' % (s(T), s(c.S_STEP)),
               's_lshl_b32 %s, %s, 5' % (s(T), s(T)),
               's_add_u32 %s, %s, %s' % (s(T), s(T), s(c.S_H)),
               's_lshl_b32 %s, %s, 3' % (s(T), s(T)),
               's_add_u32 %s, %s, %s' % (s(T), s(T), s(c.S_C)),
               's_add_u32 %s, %s, %s' % (s(T + 1), s(T), s(c.S_C)),
               's_lshl_b32 %s, %s, 10' % (s(T), s(T)),
               's_lshl_b32 %s, %s, 10' % (s(T + 1), s(T + 1)),
               's_add_u32 %s, %s, 0x%x' % (s(c.S_KXO), s(T), KX),
               's_add_u32 %s, %s, 0x%x' % (s(c.S_VTO), s(T + 1), VT)]
        m = 'sc1' if c.p['kl'] == 1 else ''
        if c.p['kl'] != 3 or not c.inloop:
            out += ['buffer_load_dwordx4 %s, %s, %s, %s offen %s' % (v(c.V_KXF, 4), v(c.V_L16), ws, s(c.S_KXO), m),
                    'buffer_load_dwordx4 %s, %s, %s, %s offen %s' % (v(c.V_KXF + 4, 4), v(c.V_SCL), ws, s(c.S_KXO), m),
                    'buffer_load_dwordx4 %s, %s, %s, %s offen %s' % (v(c.V_VTF, 4), v(c.V_L16), ws, s(c.S_VTO), m),
                    'buffer_load_dwordx4 %s, %s, %s, %s offen offset:1024 %s' % (v(c.V_VTF + 4, 4), v(c.V_L16), ws, s(c.S_VTO), m)]
        return out

    def exports(self):
        c = self
        T = c.S_T + 2
        ws = s(c.S_WS, 4)
        m = {1: 'sc1', 2: ''}.get(c.p['ex'])
        out = ['s_lshr_b32 %s, %s, 3' % (s(T), s(c.S_STEP)),
               's_and_b32 %s, %s, 7' % (s(T + 1), s(c.S_STEP)),
               's_lshl_b32 %s, %s, 14' % (s(T), s(T)),
               's_lshl_b32 %s, %s, 10' % (s(T + 1), s(T + 1)),
               's_add_u32 %s, %s, %s' % (s(T), s(T), s(T + 1)),
               's_add_u32 %s, %s, %s' % (s(c.S_EXO), s(T), s(c.S_EXB))]
        if m is None:
            return out, []
        st = ['s_mov_b64 exec, %s' % s(c.S_MP1, 2),
              'buffer_store_dwordx4 %s, %s, %s, %s offen %s' % (v(c.V_F, 4), v(c.V_KM), ws, s(c.S_EXO), m),
              's_mov_b64 exec, -1',
              'buffer_store_dword %s, %s, %s, %s offen %s' % (v(c.V_VMF), v(c.V_VM), ws, s(c.S_EXO), m),
              'buffer_store_dword %s, %s, %s, %s offen offset:256 %s' % (v(c.V_VMF + 2), v(c.V_VM), ws, s(c.S_EXO), m)]
        return out, st

    def gather4(self, loads, mf, two, L_exit, rc, tails, tg):
        A, c = self.A, self
        G = [A.new_label('g%d%s' % (k, tg)) for k in range(5)]
        R = [A.new_label('r%d%s' % (k, tg)) for k in range(4)]
        Ld = A.new_label('gd' + tg)
        A('s_mov_b32 %s, 15' % s(c.S_PD))
        A('s_mov_b32 %s, 0' % s(c.S_CNT))
        for k in range(4):
            A.label(G[k])
            A('s_bitcmp1_b32 %s, %d' % (s(c.S_PD), k))
            A('s_cbranch_scc0 %s' % G[k + 1])
            A('s_waitcnt vmcnt(3)')
            r = c.V_M + 4 * k
            if two:
                A('v_max_u32 %s, %s, %s ;poll' % (v(c.V_T), v(r), v(r + 2)))
                A('v_cmp_eq_u32 vcc, -1, %s' % v(c.V_T))
            else:
                A('v_cmp_eq_u32 vcc, -1, %s ;poll' % v(r))
            A('s_cbranch_vccnz %s' % R[k])
            if c.diag and c.p['fs']:
                A('s_memtime %s' % s(c.S_ST + 2 * ((2 if two else 8) + k), 2))
            for t in mf(k):
                A(t + ' ;poll')
            A('s_bitset0_b32 %s, %d' % (s(c.S_PD), k))
            A('s_cmp_eq_u32 %s, 0' % s(c.S_PD))
            A('s_cbranch_scc1 %s' % Ld)
            A('s_mov_b64 exec, 1')
            A(loads[k])
            A('s_mov_b64 exec, -1')
        A.label(G[4])
        A('s_add_u32 %s, %s, 1' % (s(c.S_CNT), s(c.S_CNT)))
        A('s_cmp_lt_u32 %s, 0x%x' % (s(c.S_CNT), POLL_MAX))
        A('s_cbranch_scc1 %s' % G[0])
        A('s_branch %s' % L_exit)

        def tail():
            for k in range(4):
                A.label(R[k])
                A('s_mov_b64 exec, vcc')
                A(loads[k])
                A('s_mov_b64 exec, -1')
                if c.diag:
                    A('s_add_u32 %s, %s, 1' % (s(c.S_RC + rc), s(c.S_RC + rc)))
                A('s_branch %s' % G[k + 1])
        tail()
        A.label(Ld)

    def loop(self, L_exit, L_done):
        A, c = self.A, self
        p = c.p
        ws = s(c.S_WS, 4)
        tg = c.tag
        emit = c.emit
        R = c.V_R
        tails = []
        c.inloop = True
        L_loop, L_last, L_Bo, L_C, L_Do, L_E = [A.new_label(n + tg) for n in ('step', 'last', 'Bo', 'C', 'Do', 'E')]

        def stamp(k):
            if c.diag:
                A('s_memtime %s' % s(c.S_ST + 2 * k, 2))

        A.label(L_loop)
        gl = c.gather_loads(c.S_MEMOFF)
        emit(gl)
        stamp(0)

        def qk(k):
            return [c.sm(c.A_QK + tau * 8 + m * 4, k, ((m * 2 + tau) * 8 + 2 * k) * 4) for tau in range(2) for m in range(2)]
        c.gather4(gl, qk, True, L_exit, 0, tails, 'm' + tg)
        for tau in range(2):
            for m in range(2):
                b = c.A_QK + tau * 8 + m * 4
                r = R + tau * 4 + m * 2
                A('v_pk_add_f32 %s, %s, %s' % (v(r, 2), v(b, 2), v(b + 2, 2)))
                A('ds_write2_b32 %s, %s, %s offset0:%d offset1:%d' % (v(c.V_QW2 if m else c.V_QW), v(r), v(r + 1), tau * 16, 196 + tau * 16))
        A('s_cmp_eq_u32 %s, 0' % s(c.S_WAVE))
        A('s_waitcnt lgkmcnt(0)')
        A('s_barrier')
        A('s_cbranch_scc0 %s' % L_Bo)

        def v_part(w0, fill):
            q = 0
            for k in range(4):
                for tau in range(2):
                    A(c.sm(c.A_V + tau * 4, k, ((4 + tau) * 8 + 2 * k) * 4) + ' ;poll')
                    emit(fill.get(q, []))
                    q += 1
            for tau in range(2):
                b = c.A_V + tau * 4
                A('v_pk_add_f32 %s, %s, %s' % (v(R + 2 * tau, 2), v(b, 2), v(b + 2, 2)))
            if not w0:
                A('ds_write_b128 %s, %s offset:%d' % (v(c.V_LW), v(R, 4), c.L_V))
                A('s_mov_b64 exec, 1')
                A('ds_add_u32 %s, %s' % (v(c.V_Z), v(c.V_C1)))
                A('s_mov_b64 exec, -1')

        def v_reduce(mid=()):
            D, fl = c.V_RD, c.V_T + 2
            L_vm, L_vr = A.new_label('vm' + tg), A.new_label('vr' + tg)

            def reads():
                A('ds_read_b32 %s, %s' % (v(fl), v(c.V_Z)))
                for ww in range(1, 4):
                    A('ds_read_b128 %s, %s offset:%d' % (v(D + 4 * ww - 4, 4), v(c.V_L16), c.L_V + ww * 1024))
            reads()
            emit(mid)
            A('s_waitcnt lgkmcnt(0)')
            A('v_cmp_ne_u32 vcc, %s, %s' % (s(c.S_VT), v(fl)))
            A('s_cbranch_vccnz %s' % L_vr)
            A.label(L_vm)
            for r in range(0, 4, 2):
                A('v_pk_add_f32 %s, %s, %s' % (v(R + r, 2), v(R + r, 2), v(D + r, 2)))
                A('v_pk_add_f32 %s, %s, %s' % (v(D + 4 + r, 2), v(D + 4 + r, 2), v(D + 8 + r, 2)))
            for r in range(0, 4, 2):
                A('v_pk_add_f32 %s, %s, %s' % (v(R + r, 2), v(R + r, 2), v(D + 4 + r, 2)))
            A('v_cvt_pk_bf16_f32 %s, %s, %s' % (v(c.V_VMF), v(R), v(R + 1)))
            A('v_cvt_pk_bf16_f32 %s, %s, %s' % (v(c.V_VMF + 2), v(R + 2), v(R + 3)))

            def tail_vr():
                A.label(L_vr)
                A('s_mov_b32 %s, 0' % s(c.S_CNT))
                Lr = A.new_label('vrl' + tg)
                A.label(Lr)
                reads()
                A('s_add_u32 %s, %s, 1' % (s(c.S_CNT), s(c.S_CNT)))
                A('s_cmp_ge_u32 %s, 0x%x' % (s(c.S_CNT), POLL_MAX * 4))
                A('s_cbranch_scc1 %s' % L_exit)
                A('s_waitcnt lgkmcnt(0)')
                A('v_cmp_ne_u32 vcc, %s, %s' % (s(c.S_VT), v(fl)))
                A('s_cbranch_vccnz %s' % Lr)
                A('s_branch %s' % L_vm)
            tails.append(tail_vr)

        D = c.V_RD
        S = c.V_RD + 16
        SP = c.A_QK
        for ww in range(4):
            for tau in range(2):
                A('ds_read_b128 %s, %s offset:%d' % (v(D + ww * 8 + tau * 4, 4), v(c.V_QR), ww * 3136 + tau * 64))
        A('s_cmp_eq_u32 %s, %d' % (s(c.S_STEP), c.nsteps - 1))
        A('s_waitcnt lgkmcnt(4)')
        for r in range(0, 8, 2):
            A('v_pk_add_f32 %s, %s, %s' % (v(D + r, 2), v(D + r, 2), v(D + 8 + r, 2)))
        A('s_waitcnt lgkmcnt(2)')
        for r in range(0, 8, 2):
            A('v_pk_add_f32 %s, %s, %s' % (v(D + r, 2), v(D + r, 2), v(D + 16 + r, 2)))
        A('s_waitcnt lgkmcnt(0)')
        for r in range(0, 8, 2):
            A('v_pk_add_f32 %s, %s, %s' % (v(D + r, 2), v(D + r, 2), v(D + 24 + r, 2)))
        for q in range(4):
            A('v_cvt_pk_bf16_f32 %s, %s, %s' % (v(c.V_F + q), v(D + 2 * q), v(D + 2 * q + 1)))
        A('s_cbranch_scc1 %s' % L_last)
        A(MF % (v(S + 8, 4), v(c.V_F, 4), v(c.V_F, 4), '0'))
        A(MF % (v(S, 4), v(c.V_KXF, 4), v(c.V_F, 4), '0') + ' ;poll')
        A(MF % (v(S + 4, 4), v(c.V_KXF + 4, 4), v(c.V_F, 4), '0') + ' ;poll')
        A('s_mov_b64 exec, %s' % s(c.S_MSM, 2))
        for r in range(4):
            A('buffer_store_dword %s, %s, %s, %s offen offset:%d' % (v(S + 8 + r), v(c.V_SCM), ws, s(c.S_SCOFF), r * 128))
        A('s_mov_b64 exec, %s' % s(c.S_MP0, 2))
        A('buffer_store_dwordx4 %s, %s, %s, %s offen' % (v(S, 4), v(c.V_SC), ws, s(c.S_SCOFF)))
        A('buffer_store_dwordx4 %s, %s, %s, %s offen offset:128' % (v(S + 4, 4), v(c.V_SC), ws, s(c.S_SCOFF)))
        A('s_mov_b64 exec, -1')
        stamp(3)
        scl = ['buffer_load_dwordx4 %s, %s, %s, %s offen sc1' % (v(SP + 4 * k, 4), v(c.V_SC + 1 + k if k < 3 else c.V_SCL), ws, s(c.S_SCOFF))
               for k in range(4)]
        fill = {0: ['v_mov_b32_dpp %s, %s row_ror:8 row_mask:0xf bank_mask:0xc' % (v(S + r), v(S + 4 + r)) for r in range(4)]}
        for q in range(4):
            fill.setdefault(1 + q, []).extend(c.zero(c.A_WO + 2 * q, 2))
        nr = 1
        for k in ('sa', 'sb'):
            if p[k] < 8 and nr < p['si']:
                fill.setdefault(p[k], []).extend(scl)
                nr += 1
        v_part(True, fill)
        v_reduce(scl * (p['si'] - nr + 1))
        X = c.V_RD
        m, t = c.V_T, c.V_T + 1
        PP = R + 4

        def sums():
            for r in range(0, 4, 2):
                A('v_pk_add_f32 %s, %s, %s ;poll' % (v(X + r, 2), v(S + r, 2), v(SP + r, 2)))
                A('v_pk_add_f32 %s, %s, %s ;poll' % (v(X + 6 + r, 2), v(SP + 4 + r, 2), v(SP + 8 + r, 2)))
            A('v_pk_add_f32 %s, %s, %s ;poll' % (v(X + 4, 2), v(SP + 12, 2), v(SP + 14, 2)))
            for r in range(0, 4, 2):
                A('v_pk_add_f32 %s, %s, %s' % (v(X + r, 2), v(X + r, 2), v(X + 6 + r, 2)))
            A('v_add_f32 %s, %s, %s' % (v(X + 4), v(X + 4), v(X + 5)))
            A('v_pk_add_f32 %s, %s, %s' % (v(X + 6, 2), v(X, 2), v(X + 2, 2)))
            A('v_max3_f32 %s, %s, %s, %s' % (v(m), v(X), v(X + 1), v(X + 2)))
            A('v_add_f32 %s, %s, %s' % (v(X + 6), v(X + 6), v(X + 4)))
            A('v_max3_f32 %s, %s, %s, %s' % (v(m), v(m), v(X + 3), v(X + 4)))
            A('v_cmp_u_f32 vcc, %s, %s' % (v(X + 6), v(X + 7)))
            A('v_max_f32_dpp %s, %s, %s row_ror:8 row_mask:0xf bank_mask:0xf' % (v(m), v(m), v(m)))
        c.rounds(A.new_label('sct' + tg), A.new_label('sco' + tg), L_exit, scl, [SP + 4 * k for k in range(4)], sums, p['si'], 1, tails, tg)
        if p['op'] == 2:
            A('s_barrier')
        stamp(4)
        ol = c.gather_loads(c.S_OOFF)
        A('v_mov_b32 %s, %s' % (v(t), v(m)))
        A('v_permlane16_swap_b32 %s, %s' % (v(m), v(t)))
        A('v_max_f32 %s, %s, %s' % (v(m), v(m), v(t)))
        A('v_mov_b32 %s, %s' % (v(t), v(m)))
        A('v_permlane32_swap_b32 %s, %s' % (v(m), v(t)))
        A('v_max_f32 %s, %s, %s' % (v(m), v(m), v(t)))
        A('v_mul_f32 %s, %s, %s' % (v(m), s(c.S_CSC), v(m)))
        for r in (4, 0, 1, 2, 3):
            A('v_fma_f32 %s, %s, %s, -%s' % (v(X + r), v(X + r), s(c.S_CSC), v(m)))
        for r in (4, 0, 1, 2, 3):
            A('v_exp_f32 %s, %s' % (v(X + r), v(X + r)))
            if r == 1:
                A('v_mov_b32_dpp %s, %s row_ror:8 row_mask:0xf bank_mask:0xf' % (v(t), v(X + 4)))
            if r == 2:
                A('v_cvt_pk_bf16_f32 %s, %s, %s' % (v(c.V_PM), v(X + 4), v(t)))
                A('v_cvt_pk_bf16_f32 %s, %s, %s' % (v(PP), v(X), v(X + 1)))
        O = c.V_RD + 8
        A(MF16 % (v(O + 8, 4), v(c.V_ONE, 2), v(c.V_PM, 2), '0'))
        A('v_cvt_pk_bf16_f32 %s, %s, %s' % (v(PP + 1), v(X + 2), v(X + 3)))
        A('v_mov_b32_dpp %s, %s row_ror:8 row_mask:0xf bank_mask:0xf' % (v(PP + 2), v(PP)))
        A(MF16 % (v(O, 4), v(c.V_VMF, 2), v(c.V_PM, 2), '0'))
        A(MF16 % (v(O + 4, 4), v(c.V_VMF + 2, 2), v(c.V_PM, 2), '0'))
        A('v_mov_b32_dpp %s, %s row_ror:8 row_mask:0xf bank_mask:0xf' % (v(PP + 3), v(PP + 1)))
        A(MF % (v(O + 8, 4), v(c.V_ONE, 4), v(PP, 4), v(O + 8, 4)))
        A(MF % (v(O, 4), v(c.V_VTF, 4), v(PP, 4), v(O, 4)) + ' ;poll')
        A(MF % (v(O + 4, 4), v(c.V_VTF + 4, 4), v(PP, 4), v(O + 4, 4)) + ' ;poll')
        if p['o0'] == 1:
            emit(ol)
        if p['op'] == 3:
            A('s_barrier')
        A('v_rcp_f32 %s, %s' % (v(m), v(O + 8)))
        A('s_mov_b64 exec, %s' % s(c.S_MP0, 2))
        for r in range(0, 8, 2):
            A('v_pk_mul_f32 %s, %s, %s op_sel_hi:[1,0]' % (v(O + r, 2), v(O + r, 2), v(m, 2)))
            A('v_cvt_pk_bf16_f32 %s, %s, %s' % (v(R + r // 2), v(O + r), v(O + r + 1)))
        A('buffer_store_dwordx4 %s, %s, %s, %s offen' % (v(R, 4), v(c.V_OST), ws, s(c.S_OOFF)))
        A('s_mov_b64 exec, -1')
        if p['op'] == 0:
            A('s_barrier')
        if p['o0'] == 1:
            A('s_waitcnt vmcnt(4)')
        else:
            emit(ol)
        stamp(5)

        A.label(L_C)

        def wo(k):
            return [c.sm(c.A_WO + tau * 4, k, 192 + (tau * 8 + 2 * k) * 4) for tau in range(2)]
        c.gather4(ol, wo, False, L_exit, 2, tails, 'o' + tg)
        for tau in range(2):
            b = c.A_WO + tau * 4
            A('v_pk_add_f32 %s, %s, %s' % (v(R + 2 * tau, 2), v(b, 2), v(b + 2, 2)))
            A('ds_write2_b32 %s, %s, %s offset0:%d offset1:%d' % (v(c.V_OW), v(R + 2 * tau), v(R + 2 * tau + 1), tau * 16, 224 + tau * 16))
        A('s_cmp_eq_u32 %s, 2' % s(c.S_WAVE))
        A('s_waitcnt lgkmcnt(0)')
        A('s_barrier')
        A('s_cbranch_scc0 %s' % L_Do)

        for ww in range(4):
            A('ds_read_b128 %s, %s offset:%d' % (v(D + 4 * ww, 4), v(c.V_OR), ww * 1600))
        A('s_waitcnt lgkmcnt(2)')
        for r in range(0, 4, 2):
            A('v_pk_add_f32 %s, %s, %s' % (v(D + r, 2), v(D + r, 2), v(D + 4 + r, 2)))
        A('s_waitcnt lgkmcnt(0)')
        for r in range(0, 4, 2):
            A('v_pk_add_f32 %s, %s, %s' % (v(D + 8 + r, 2), v(D + 8 + r, 2), v(D + 12 + r, 2)))
        for r in range(0, 4, 2):
            A('v_pk_add_f32 %s, %s, %s' % (v(R + r, 2), v(D + r, 2), v(D + 8 + r, 2)))
        A('v_bfi_b32 %s, %s, %s, %s' % (v(R), v(c.V_FF), v(c.V_TAG), v(R)))
        A('buffer_store_dwordx4 %s, %s, %s, %s offen sc1' % (v(R, 4), v(c.V_WA), ws, s(c.S_WOFF)))
        stamp(9)
        W = c.V_WP
        wl = ['buffer_load_dwordx4 %s, %s, %s, %s offen sc1' % (v(W + 4 * k, 4), v(c.V_WA + 1 + k), ws, s(c.S_WOFF)) for k in range(3)]
        emit(c.zero(c.A_QK, 24))
        A('s_mov_b32 %s, %s' % (s(c.S_MEMOFF), s(c.S_NMEM)))
        A('s_add_u32 %s, %s, 1' % (s(c.S_STEP), s(c.S_STEP)))
        A('s_mov_b32 %s, 0' % s(c.S_CNT))
        c.pause(p['wa'])
        for k in range(p['wi']):
            emit(wl)
            if k + 1 < p['wi']:
                c.pause(p['wb'])
        L_wb, L_wm = A.new_label('wb' + tg), A.new_label('wm' + tg)
        A('s_waitcnt vmcnt(%d)' % (3 * (p['wi'] - 1)))
        if p['mp'] == 2:
            A('s_barrier')
        A.label(L_wb)
        for k in range(3):
            A('v_cmp_ne_u32_sdwa %s, %s, %s src0_sel:BYTE_0 src1_sel:BYTE_0 ;poll' % (s(c.S_M + 2 * k, 2), v(W + 4 * k), v(c.V_TAG)))
        for r in range(0, 4, 2):
            A('v_pk_add_f32 %s, %s, %s ;poll' % (v(D + r, 2), v(R + r, 2), v(W + r, 2)))
            A('v_pk_add_f32 %s, %s, %s ;poll' % (v(D + 4 + r, 2), v(W + 4 + r, 2), v(W + 8 + r, 2)))
        c.or_masks(3)
        for r in range(0, 4, 2):
            A('v_pk_add_f32 %s, %s, %s' % (v(D + r, 2), v(D + r, 2), v(D + 4 + r, 2)))
        A('s_cbranch_scc1 %s' % L_wm)
        if p['mp'] == 3:
            A('s_barrier')
        A('v_cvt_pk_bf16_f32 %s, %s, %s' % (v(D + 8), v(D), v(D + 1)))
        A('v_cvt_pk_bf16_f32 %s, %s, %s' % (v(D + 9), v(D + 2), v(D + 3)))
        A('buffer_store_dwordx2 %s, %s, %s, %s offen' % (v(D + 8, 2), v(c.V_MST), ws, s(c.S_MEMOFF)))
        stamp(10)
        if p['mp'] == 0:
            A('s_barrier')
        A('s_branch %s' % L_loop)

        def tail_w():
            A.label(L_wm)
            emit(wl)
            A('s_add_u32 %s, %s, 1' % (s(c.S_CNT), s(c.S_CNT)))
            if c.diag:
                A('s_add_u32 %s, %s, 1' % (s(c.S_RC + 3), s(c.S_RC + 3)))
            A('s_cmp_ge_u32 %s, 0x%x' % (s(c.S_CNT), POLL_MAX))
            A('s_cbranch_scc1 %s' % L_exit)
            A('s_waitcnt vmcnt(%d)' % (3 * (p['wi'] - 1)))
            A('s_branch %s' % L_wb)
        tails.append(tail_w)

        A.label(L_Bo)
        stamp(1)
        v_part(False, {})
        A('s_cmp_eq_u32 %s, %d' % (s(c.S_STEP), c.nsteps - 1))
        A('s_cbranch_scc1 %s' % L_done)
        emit(c.zero(c.A_WO, 8))
        emit(c.slot(c.S_OOFF, c.S_OBB, 14, 0) + c.slot(c.S_NMEM, c.S_MB, 14, 1) + c.wslot(c.S_WOFF, 0))
        A('v_mov_b32 %s, %s' % (v(c.V_TAG), s(c.S_STEP)))
        poi = c.slot(c.S_PMEM, c.S_MB, 14, 3) + c.slot(c.S_PO, c.S_OBB, 14, 2) + c.slot(c.S_PSC, c.S_SCBB, 13, 2) + c.poison_list()[1:]
        if p['pz'] == 0:
            L3 = A.new_label('b3' + tg)
            A('s_cmp_lg_u32 %s, 3' % s(c.S_WAVE))
            A('s_cbranch_scc1 %s' % L3)
            emit(poi)
            A.label(L3)
        if c.diag:
            c.dump()
        if p['op'] != 1:
            A('s_barrier')
        stamp(6)
        emit(ol)
        A('s_branch %s' % L_C)

        A.label(L_Do)
        stamp(7)
        L0 = A.new_label('d0' + tg)
        A('s_cmp_lg_u32 %s, 0' % s(c.S_WAVE))
        A('s_cbranch_scc1 %s' % L0)
        eo, es = c.exports()
        emit(eo + es)
        L_k1, L_k2, L_ks, L_k3 = [A.new_label(n + tg) for n in ('k1', 'k2', 'ks', 'k3')]
        T = c.S_T
        A('s_and_b32 %s, %s, 7' % (s(T + 5), s(c.S_STEP)))
        A('s_cmp_eq_u32 %s, 7' % s(T + 5))
        A('s_cbranch_scc1 %s' % L_ks)
        A.label(L_k1)
        emit(c.kv_next())
        A('s_cmp_eq_u32 %s, 6' % s(T + 5))
        A('s_cbranch_scc0 %s' % L_k2)
        A('s_lshr_b32 %s, %s, 1' % (s(T), s(c.S_STEP)))
        A('s_add_u32 %s, %s, %d' % (s(T), s(T), D_KV + 1))
        A('s_min_u32 %s, %s, %d' % (s(T), s(T), D_KV + 28))
        A('v_mov_b32 %s, %s' % (v(c.V_T + 7), s(T)))
        A('buffer_load_dword %s, %s, %s, 0 offen sc1' % (v(c.V_KC), v(c.V_T + 7), s(c.S_DB, 4)))
        A.label(L_k2)
        if p['ex']:
            A('s_cmp_eq_u32 %s, 0' % s(T + 5))
            A('s_cbranch_scc0 %s' % L_k3)
            A('v_mov_b32 %s, %s' % (v(c.V_T), s(c.S_STEP)))
            emit(c.prog_store(c.V_T))
            A.label(L_k3)
        emit(c.slot(c.S_OOFF, c.S_OBB, 14, 1) + c.slot(c.S_SCOFF, c.S_SCBB, 13, 1) + c.slot(c.S_NMEM, c.S_MB, 14, 1))
        A('s_add_u32 %s, %s, 3' % (s(c.S_VT), s(c.S_VT)))
        if c.diag:
            c.dump()
        A.label(L0)
        if p['pz'] == 1:
            L3 = A.new_label('d3' + tg)
            A('s_cmp_lg_u32 %s, 3' % s(c.S_WAVE))
            A('s_cbranch_scc1 %s' % L3)
            emit(poi)
            A.label(L3)
        emit(c.zero(c.A_QK, 24))
        A('s_mov_b32 %s, %s' % (s(c.S_MEMOFF), s(c.S_NMEM)))
        A('s_add_u32 %s, %s, 1' % (s(c.S_STEP), s(c.S_STEP)))
        if p['mp'] != 1:
            A('s_barrier')
        A('s_branch %s' % L_loop)
        A.label(L_ks)
        A('s_cmp_lt_u32 %s, %d' % (s(c.S_STEP), 8 * p['n'] - 1))
        A('s_cbranch_scc1 %s' % L_k1)
        A('s_mov_b32 %s, 0' % s(c.S_CNT))
        Lk = A.new_label('kp' + tg)
        A.label(Lk)
        A('v_readfirstlane_b32 %s, %s ;poll' % (s(T), v(c.V_KC)))
        A('s_and_b32 %s, %s, 0xff' % (s(T), s(T)))
        A('s_cmp_ge_u32 %s, %d' % (s(T), p['kvt']))
        A('s_cbranch_scc1 %s' % L_k1)
        A('buffer_load_dword %s, %s, %s, 0 offen sc1' % (v(c.V_KC), v(c.V_T + 7), s(c.S_DB, 4)))
        A('s_add_u32 %s, %s, 1' % (s(c.S_CNT), s(c.S_CNT)))
        A('s_cmp_ge_u32 %s, 0x%x' % (s(c.S_CNT), POLL_MAX))
        A('s_cbranch_scc1 %s' % L_exit)
        A('s_waitcnt vmcnt(0)')
        A('s_branch %s' % Lk)

        c.inloop = False
        A.label(L_last)
        v_part(True, {})
        v_reduce()
        emit(eo + es)
        A('v_mov_b32 %s, %d' % (v(c.V_T), c.nsteps))
        A('s_waitcnt vmcnt(0)')
        emit(c.prog_store(c.V_T))
        A('s_branch %s' % L_done)
        for t in tails:
            t()
```

```python
from itertools import combinations
from asm import *
from layout import *
from chain2 import Chain, srd, MF, POLL_MAX
from chain3 import MF16, SM
from chain4 import Chain4


class Chain5(Chain4):
    V_WPZ = 17
    S_LO, S_HI = 4, 5
    WOFS = 0xb0000

    def __init__(self, A, diag=False, nsteps=64, prm=None, tag=''):
        p = dict(la=1, nr=3, wa=0, wb=8, n1=4, n2=2, un=2, pz=1, wf=1, mp=3, op=2)
        p.update(prm or {})
        Chain4.__init__(self, A, diag, nsteps, p, tag)

    def setup(self):
        A, c = self.A, self
        Chain4.setup(self)
        T = c.S_T
        t0 = c.V_T + 4
        A('v_lshlrev_b32 %s, 3, %s' % (v(t0), v(c.V_L)))
        for k in range(4):
            A('s_add_u32 %s, %s, %d' % (s(T), s(c.S_X), k))
            A('s_and_b32 %s, %s, 3' % (s(T), s(T)))
            A('s_lshl_b32 %s, %s, 11' % (s(T), s(T)))
            A('v_add_u32 %s, %s, %s' % (v(c.V_WA + k), s(T), v(t0)))
            if k == 0:
                A('v_add_u32 %s, %s, %s' % (v(c.V_WPZ), s(T), v(c.V_L16)))
        A('v_add_u32 %s, 512, %s' % (v(c.V_VM), v(t0)))
        if c.p['la']:
            A('s_mul_i32 %s, %s, 3136' % (s(T), s(c.S_WAVE)))
            A('v_subrev_u32 %s, %s, %s' % (v(c.V_QW), s(T), v(c.V_QW)))
            A('v_subrev_u32 %s, %s, %s' % (v(c.V_QW2), s(T), v(c.V_QW2)))
            A('s_mul_i32 %s, %s, 1600' % (s(T), s(c.S_WAVE)))
            A('v_subrev_u32 %s, %s, %s' % (v(c.V_OW), s(T), v(c.V_OW)))

    def sides(self, ssel):
        Chain4.sides(self, ssel)
        self.A('s_add_u32 %s, %s, 0x%x' % (s(self.S_WBB), s(self.S_WBB), self.WOFS))

    def wslot(self, dst, add):
        return self.slot(dst, self.S_WBB, 14, add)

    def wpoison(self):
        c = self
        return ['buffer_store_dwordx4 %s, %s, %s, %s offen offset:%d sc1' % (v(c.V_POI, 4), v(c.V_WPZ), s(c.S_WS, 4), s(c.S_PW), q * 1024)
                for q in range((c.p['nr'] + 1) // 2)]

    def initial_poison(self):
        A, c = self.A, self
        A('s_mov_b32 %s, %s' % (s(c.S_STEP), s(c.S_WAVE)))
        A('s_add_u32 %s, %s, 0x%x' % (s(c.S_WBB), s(c.S_JB), c.WOFS))
        c.emit(c.slot(c.S_PMEM, c.S_MB, 14, 0) + c.slot(c.S_PO, c.S_OBB, 14, 0) + c.wslot(c.S_PW, 0) + c.slot(c.S_PSC, c.S_SCBB, 13, 0))
        c.emit(c.poison_list()[1:] + c.wpoison())
        A('s_add_u32 %s, %s, 0x2000' % (s(c.S_PW), s(c.S_PW)))
        c.emit(c.wpoison())
        A('s_and_b32 %s, %s, 1' % (s(c.S_T + 4), s(c.S_WAVE)))
        A('s_lshl_b32 %s, %s, 13' % (s(c.S_T + 4), s(c.S_T + 4)))
        c.sides(c.S_T + 4)
        A('v_mov_b32 %s, 0' % v(c.V_T))
        c.emit(c.prog_store(c.V_T))
        self.npoison = 8 + 2 * len(c.wpoison())

    def before_loop(self):
        A, c = self.A, self
        A('s_mov_b32 %s, 0x3f80' % s(c.S_LO))
        A('s_mov_b32 %s, 0x3f800000' % s(c.S_HI))
        if c.p['la']:
            c.emit(c.zero(c.V_RD, 4))
            A('ds_write_b128 %s, %s' % (v(c.V_QR), v(c.V_RD, 4)))
            A('ds_write_b128 %s, %s offset:64' % (v(c.V_QR), v(c.V_RD, 4)))
            A('ds_write_b128 %s, %s' % (v(c.V_OR), v(c.V_RD, 4)))

    def exports(self):
        c = self
        out, st = Chain4.exports(self)
        if st:
            m = {1: 'sc1', 2: ''}[c.p['ex']]
            st = st[:3] + ['v_mov_b32 %s, %s' % (v(c.V_T + 4), v(c.V_VMF)),
                           'v_mov_b32 %s, %s' % (v(c.V_T + 5), v(c.V_VMF + 2)),
                           'buffer_store_dwordx2 %s, %s, %s, %s offen %s' % (v(c.V_T + 4, 2), v(c.V_VM), s(c.S_WS, 4), s(c.S_EXO), m)]
        return out, st

    def gather4(self, loads, mf, two, L_exit, rc, tails, tg):
        A, c = self.A, self
        p = c.p
        Ld = A.new_label('gd' + tg)
        M = lambda k: s(c.S_M + 2 * k, 2)
        lab = {}

        def L(kind, *key):
            k = (kind,) + key
            if k not in lab:
                lab[k] = A.new_label('g%s%s' % (kind, tg))
            return lab[k]

        def check(k):
            r = c.V_M + 4 * k
            if two:
                return ['v_max_u32 %s, %s, %s ;poll' % (v(c.V_T), v(r), v(r + 2)), 'v_cmp_eq_u32 vcc, -1, %s' % v(c.V_T)]
            return ['v_cmp_eq_u32 vcc, -1, %s ;poll' % v(r)]

        def mfs(k):
            out = []
            if c.diag and p['fs']:
                out.append('s_memtime %s ;poll' % s(c.S_ST + 2 * ((2 if two else 8) + k), 2))
            return out + [t + ' ;poll' for t in mf(k)]

        later = []

        def node(k, F):
            A('s_cbranch_vccnz %s' % L('f', k, F))
            later.append((k, F))
            m = mfs(k)
            if k < 3:
                c.emit(m[:-1] + ['s_waitcnt vmcnt(%d)' % (2 - k + len(F))] + check(k + 1) + m[-1:])
                node(k + 1, F)
            else:
                c.emit(m)
                if F:
                    A('s_branch %s' % L('s', F))

        A('s_mov_b32 %s, 0' % s(c.S_CNT))
        A('s_waitcnt vmcnt(3)')
        c.emit(check(0))
        node(0, ())
        A.label(Ld)

        def tail():
            done = 0
            while done < len(later):
                k, F = later[done]
                done += 1
                A.label(L('f', k, F))
                F2 = F + (k,)
                A('s_mov_b64 %s, vcc' % M(k))
                A('s_mov_b64 exec, vcc')
                A(loads[k])
                if k < 3:
                    A('s_mov_b64 exec, -1')
                    A('s_waitcnt vmcnt(%d)' % (2 - k + len(F2)))
                    c.emit(check(k + 1))
                    node(k + 1, F2)
                else:
                    A('s_branch %s' % L('s', F2))
            for n in range(1, 5):
                for F in combinations(range(4), n):
                    A.label(L('s', F))
                    if n == 1:
                        A('s_mov_b64 exec, %s' % M(F[0]))
                    A.label(L('l', F))
                    for u in range(p['un'] if n == 1 else 1):
                        for k in F:
                            if n > 1:
                                A('s_mov_b64 exec, %s' % M(k))
                            A('s_waitcnt vmcnt(%d)' % (p['n1'] if n == 1 else min(p['n2'] * n, 8)))
                            c.emit(check(k))
                            A('s_cbranch_vccz %s' % L('o', k, F))
                            A(loads[k])
                            if c.diag:
                                A('s_add_u32 %s, %s, 1' % (s(c.S_RC + rc), s(c.S_RC + rc)))
                    A('s_add_u32 %s, %s, 1' % (s(c.S_CNT), s(c.S_CNT)))
                    A('s_cmp_lt_u32 %s, 0x%x' % (s(c.S_CNT), POLL_MAX))
                    A('s_cbranch_scc1 %s' % L('l', F))
                    A('s_mov_b64 exec, -1')
                    A('s_branch %s' % L_exit)
                    for k in F:
                        A.label(L('o', k, F))
                        A('s_mov_b64 exec, -1')
                        c.emit(mfs(k))
                        R = tuple(q for q in F if q != k)
                        A('s_branch %s' % (L('s', R) if R else Ld))
        tails.append(tail)

    def loop(self, L_exit, L_done):
        A, c = self.A, self
        p = c.p
        ws = s(c.S_WS, 4)
        tg = c.tag
        emit = c.emit
        R = c.V_R
        tails = []
        c.inloop = True
        L_loop, L_last, L_Bo, L_C, L_Do, L_E = [A.new_label(n + tg) for n in ('step', 'last', 'Bo', 'C', 'Do', 'E')]

        def stamp(k):
            if c.diag:
                A('s_memtime %s' % s(c.S_ST + 2 * k, 2))

        A.label(L_loop)
        gl = c.gather_loads(c.S_MEMOFF)
        emit(gl)
        stamp(0)

        def qk(k):
            return [c.sm(c.A_QK + tau * 8 + m * 4, k, ((m * 2 + tau) * 8 + 2 * k) * 4) for tau in range(2) for m in range(2)]
        c.gather4(gl, qk, True, L_exit, 0, tails, 'm' + tg)
        for tau in range(2):
            for m in range(2):
                b = c.A_QK + tau * 8 + m * 4
                r = R + tau * 4 + m * 2
                A('v_pk_add_f32 %s, %s, %s' % (v(r, 2), v(b, 2), v(b + 2, 2)))
                if p['la']:
                    A('ds_add_f32 %s, %s offset:%d' % (v(c.V_QW2 if m else c.V_QW), v(r), tau * 64))
                    A('ds_add_f32 %s, %s offset:%d' % (v(c.V_QW2 if m else c.V_QW), v(r + 1), 784 + tau * 64))
                else:
                    A('ds_write2_b32 %s, %s, %s offset0:%d offset1:%d' % (v(c.V_QW2 if m else c.V_QW), v(r), v(r + 1), tau * 16, 196 + tau * 16))
        A('s_cmp_eq_u32 %s, 0' % s(c.S_WAVE))
        A('s_waitcnt lgkmcnt(0)')
        A('s_barrier')
        A('s_cbranch_scc0 %s' % L_Bo)

        def v_part(w0, fill):
            q = 0
            for k in range(4):
                for tau in range(2):
                    A(c.sm(c.A_V + tau * 4, k, ((4 + tau) * 8 + 2 * k) * 4) + ' ;poll')
                    emit(fill.get(q, []))
                    q += 1
            for tau in range(2):
                b = c.A_V + tau * 4
                A('v_pk_add_f32 %s, %s, %s' % (v(R + 2 * tau, 2), v(b, 2), v(b + 2, 2)))
            if not w0:
                A('ds_write_b128 %s, %s offset:%d' % (v(c.V_LW), v(R, 4), c.L_V))
                A('s_mov_b64 exec, 1')
                A('ds_add_u32 %s, %s' % (v(c.V_Z), v(c.V_C1)))
                A('s_mov_b64 exec, -1')

        def v_reduce(mid=()):
            D, fl = c.V_RD, c.V_T + 2
            L_vm, L_vr = A.new_label('vm' + tg), A.new_label('vr' + tg)

            def reads():
                A('ds_read_b32 %s, %s' % (v(fl), v(c.V_Z)))
                for ww in range(1, 4):
                    A('ds_read_b128 %s, %s offset:%d' % (v(D + 4 * ww - 4, 4), v(c.V_L16), c.L_V + ww * 1024))
            reads()
            emit(mid)
            A('s_waitcnt lgkmcnt(0)')
            A('v_cmp_ne_u32 vcc, %s, %s' % (s(c.S_VT), v(fl)))
            A('s_cbranch_vccnz %s' % L_vr)
            A.label(L_vm)
            for r in range(0, 4, 2):
                A('v_pk_add_f32 %s, %s, %s' % (v(R + r, 2), v(R + r, 2), v(D + r, 2)))
                A('v_pk_add_f32 %s, %s, %s' % (v(D + 4 + r, 2), v(D + 4 + r, 2), v(D + 8 + r, 2)))
            for r in range(0, 4, 2):
                A('v_pk_add_f32 %s, %s, %s' % (v(R + r, 2), v(R + r, 2), v(D + 4 + r, 2)))
            A('v_cvt_pk_bf16_f32 %s, %s, %s' % (v(c.V_VMF), v(R), v(R + 1)))
            A('v_cvt_pk_bf16_f32 %s, %s, %s' % (v(c.V_VMF + 2), v(R + 2), v(R + 3)))

            def tail_vr():
                A.label(L_vr)
                A('s_mov_b32 %s, 0' % s(c.S_CNT))
                Lr = A.new_label('vrl' + tg)
                A.label(Lr)
                reads()
                A('s_add_u32 %s, %s, 1' % (s(c.S_CNT), s(c.S_CNT)))
                A('s_cmp_ge_u32 %s, 0x%x' % (s(c.S_CNT), POLL_MAX * 4))
                A('s_cbranch_scc1 %s' % L_exit)
                A('s_waitcnt lgkmcnt(0)')
                A('v_cmp_ne_u32 vcc, %s, %s' % (s(c.S_VT), v(fl)))
                A('s_cbranch_vccnz %s' % Lr)
                A('s_branch %s' % L_vm)
            tails.append(tail_vr)

        D = c.V_RD
        S = c.V_RD + 16
        SP = c.A_QK
        if p['la']:
            for tau in range(2):
                A('ds_read_b128 %s, %s offset:%d' % (v(D + tau * 4, 4), v(c.V_QR), tau * 64))
            emit(c.zero(D + 8, 4))
            A('s_cmp_eq_u32 %s, %d' % (s(c.S_STEP), c.nsteps - 1))
            A('s_waitcnt lgkmcnt(0)')
        else:
            for ww in range(4):
                for tau in range(2):
                    A('ds_read_b128 %s, %s offset:%d' % (v(D + ww * 8 + tau * 4, 4), v(c.V_QR), ww * 3136 + tau * 64))
            A('s_cmp_eq_u32 %s, %d' % (s(c.S_STEP), c.nsteps - 1))
            A('s_waitcnt lgkmcnt(4)')
            for r in range(0, 8, 2):
                A('v_pk_add_f32 %s, %s, %s' % (v(D + r, 2), v(D + r, 2), v(D + 8 + r, 2)))
            A('s_waitcnt lgkmcnt(2)')
            for r in range(0, 8, 2):
                A('v_pk_add_f32 %s, %s, %s' % (v(D + r, 2), v(D + r, 2), v(D + 16 + r, 2)))
            A('s_waitcnt lgkmcnt(0)')
            for r in range(0, 8, 2):
                A('v_pk_add_f32 %s, %s, %s' % (v(D + r, 2), v(D + r, 2), v(D + 24 + r, 2)))
        for q in range(4):
            A('v_cvt_pk_bf16_f32 %s, %s, %s' % (v(c.V_F + q), v(D + 2 * q), v(D + 2 * q + 1)))
        A('s_cbranch_scc1 %s' % L_last)
        A(MF % (v(S + 8, 4), v(c.V_F, 4), v(c.V_F, 4), '0'))
        A(MF % (v(S, 4), v(c.V_KXF, 4), v(c.V_F, 4), '0') + ' ;poll')
        A(MF % (v(S + 4, 4), v(c.V_KXF + 4, 4), v(c.V_F, 4), '0') + ' ;poll')
        A('s_mov_b64 exec, %s' % s(c.S_MSM, 2))
        for r in range(4):
            A('buffer_store_dword %s, %s, %s, %s offen offset:%d' % (v(S + 8 + r), v(c.V_SCM), ws, s(c.S_SCOFF), r * 128))
        A('s_mov_b64 exec, %s' % s(c.S_MP0, 2))
        A('buffer_store_dwordx4 %s, %s, %s, %s offen' % (v(S, 4), v(c.V_SC), ws, s(c.S_SCOFF)))
        A('buffer_store_dwordx4 %s, %s, %s, %s offen offset:128' % (v(S + 4, 4), v(c.V_SC), ws, s(c.S_SCOFF)))
        A('s_mov_b64 exec, -1')
        stamp(3)
        if p['la']:
            for tau in range(2):
                A('ds_write_b128 %s, %s offset:%d' % (v(c.V_QR), v(D + 8, 4), tau * 64))
        scl = ['buffer_load_dwordx4 %s, %s, %s, %s offen sc1' % (v(SP + 4 * k, 4), v(c.V_SC + 1 + k if k < 3 else c.V_SCL), ws, s(c.S_SCOFF))
               for k in range(4)]
        fill = {0: ['v_mov_b32_dpp %s, %s row_ror:8 row_mask:0xf bank_mask:0xc' % (v(S + r), v(S + 4 + r)) for r in range(4)]}
        for q in range(4):
            fill.setdefault(1 + q, []).extend(c.zero(c.A_WO + 2 * q, 2))
        nr = 1
        for k in ('sa', 'sb'):
            if p[k] < 8 and nr < p['si']:
                fill.setdefault(p[k], []).extend(scl)
                nr += 1
        v_part(True, fill)
        v_reduce(scl * (p['si'] - nr + 1))
        X = c.V_RD
        m, t = c.V_T, c.V_T + 1
        PP = R + 4

        def sums():
            for r in range(0, 4, 2):
                A('v_pk_add_f32 %s, %s, %s ;poll' % (v(X + r, 2), v(S + r, 2), v(SP + r, 2)))
                A('v_pk_add_f32 %s, %s, %s ;poll' % (v(X + 6 + r, 2), v(SP + 4 + r, 2), v(SP + 8 + r, 2)))
            A('v_pk_add_f32 %s, %s, %s ;poll' % (v(X + 4, 2), v(SP + 12, 2), v(SP + 14, 2)))
            for r in range(0, 4, 2):
                A('v_pk_add_f32 %s, %s, %s' % (v(X + r, 2), v(X + r, 2), v(X + 6 + r, 2)))
            A('v_add_f32 %s, %s, %s' % (v(X + 4), v(X + 4), v(X + 5)))
            A('v_pk_add_f32 %s, %s, %s' % (v(X + 6, 2), v(X, 2), v(X + 2, 2)))
            A('v_max3_f32 %s, %s, %s, %s' % (v(m), v(X), v(X + 1), v(X + 2)))
            A('v_add_f32 %s, %s, %s' % (v(X + 6), v(X + 6), v(X + 4)))
            A('v_max3_f32 %s, %s, %s, %s' % (v(m), v(m), v(X + 3), v(X + 4)))
            A('v_cmp_u_f32 vcc, %s, %s' % (v(X + 6), v(X + 7)))
            A('v_max_f32_dpp %s, %s, %s row_ror:8 row_mask:0xf bank_mask:0xf' % (v(m), v(m), v(m)))
        c.rounds(A.new_label('sct' + tg), A.new_label('sco' + tg), L_exit, scl, [SP + 4 * k for k in range(4)], sums, p['si'], 1, tails, tg)
        if p['op'] == 2:
            A('s_barrier')
        stamp(4)
        ol = c.gather_loads(c.S_OOFF)
        A('v_mov_b32 %s, %s' % (v(t), v(m)))
        A('v_permlane16_swap_b32 %s, %s' % (v(m), v(t)))
        A('v_max_f32 %s, %s, %s' % (v(m), v(m), v(t)))
        A('v_mov_b32 %s, %s' % (v(t), v(m)))
        A('v_permlane32_swap_b32 %s, %s' % (v(m), v(t)))
        A('v_max_f32 %s, %s, %s' % (v(m), v(m), v(t)))
        A('v_mul_f32 %s, %s, %s' % (v(m), s(c.S_CSC), v(m)))
        for r in (4, 0, 1, 2, 3):
            A('v_fma_f32 %s, %s, %s, -%s' % (v(X + r), v(X + r), s(c.S_CSC), v(m)))
        for r in (4, 0, 1, 2, 3):
            A('v_exp_f32 %s, %s' % (v(X + r), v(X + r)))
            if r == 1:
                A('v_mov_b32_dpp %s, %s row_ror:8 row_mask:0xf bank_mask:0xf' % (v(t), v(X + 4)))
            if r == 2:
                A('v_cvt_pk_bf16_f32 %s, %s, %s' % (v(c.V_PM), v(X + 4), v(t)))
                A('v_cvt_pk_bf16_f32 %s, %s, %s' % (v(PP), v(X), v(X + 1)))
        O = c.V_RD + 8
        A(MF16 % (v(O + 8, 4), v(c.V_ONE, 2), v(c.V_PM, 2), '0'))
        A('v_cvt_pk_bf16_f32 %s, %s, %s' % (v(PP + 1), v(X + 2), v(X + 3)))
        A('v_mov_b32_dpp %s, %s row_ror:8 row_mask:0xf bank_mask:0xf' % (v(PP + 2), v(PP)))
        A(MF16 % (v(O, 4), v(c.V_VMF, 2), v(c.V_PM, 2), '0'))
        A(MF16 % (v(O + 4, 4), v(c.V_VMF + 2, 2), v(c.V_PM, 2), '0'))
        A('v_mov_b32_dpp %s, %s row_ror:8 row_mask:0xf bank_mask:0xf' % (v(PP + 3), v(PP + 1)))
        A(MF % (v(O + 8, 4), v(c.V_ONE, 4), v(PP, 4), v(O + 8, 4)))
        A(MF % (v(O, 4), v(c.V_VTF, 4), v(PP, 4), v(O, 4)) + ' ;poll')
        A(MF % (v(O + 4, 4), v(c.V_VTF + 4, 4), v(PP, 4), v(O + 4, 4)) + ' ;poll')
        if p['o0'] == 1:
            emit(ol)
        if p['op'] == 3:
            A('s_barrier')
        A('v_rcp_f32 %s, %s' % (v(m), v(O + 8)))
        A('s_mov_b64 exec, %s' % s(c.S_MP0, 2))
        for r in range(0, 8, 2):
            A('v_pk_mul_f32 %s, %s, %s op_sel_hi:[1,0]' % (v(O + r, 2), v(O + r, 2), v(m, 2)))
            A('v_cvt_pk_bf16_f32 %s, %s, %s' % (v(R + r // 2), v(O + r), v(O + r + 1)))
        A('buffer_store_dwordx4 %s, %s, %s, %s offen' % (v(R, 4), v(c.V_OST), ws, s(c.S_OOFF)))
        A('s_mov_b64 exec, -1')
        if p['op'] == 0:
            A('s_barrier')
        if p['o0'] == 1:
            A('s_waitcnt vmcnt(4)')
        else:
            emit(ol)
        stamp(5)

        A.label(L_C)

        def wo(k):
            return [c.sm(c.A_WO + tau * 4, k, 192 + (tau * 8 + 2 * k) * 4) for tau in range(2)]
        c.gather4(ol, wo, False, L_exit, 2, tails, 'o' + tg)
        for tau in range(2):
            b = c.A_WO + tau * 4
            A('v_pk_add_f32 %s, %s, %s' % (v(R + 2 * tau, 2), v(b, 2), v(b + 2, 2)))
            if p['la']:
                A('ds_add_f32 %s, %s offset:%d' % (v(c.V_OW), v(R + 2 * tau), tau * 64))
                A('ds_add_f32 %s, %s offset:%d' % (v(c.V_OW), v(R + 2 * tau + 1), 896 + tau * 64))
            else:
                A('ds_write2_b32 %s, %s, %s offset0:%d offset1:%d' % (v(c.V_OW), v(R + 2 * tau), v(R + 2 * tau + 1), tau * 16, 224 + tau * 16))
        A('s_cmp_eq_u32 %s, 2' % s(c.S_WAVE))
        A('s_waitcnt lgkmcnt(0)')
        A('s_barrier')
        A('s_cbranch_scc0 %s' % L_Do)

        if p['la']:
            A('ds_read_b128 %s, %s' % (v(R, 4), v(c.V_OR)))
            emit(c.zero(D + 12, 4))
            A('s_waitcnt lgkmcnt(0)')
        else:
            for ww in range(4):
                A('ds_read_b128 %s, %s offset:%d' % (v(D + 4 * ww, 4), v(c.V_OR), ww * 1600))
            A('s_waitcnt lgkmcnt(2)')
            for r in range(0, 4, 2):
                A('v_pk_add_f32 %s, %s, %s' % (v(D + r, 2), v(D + r, 2), v(D + 4 + r, 2)))
            A('s_waitcnt lgkmcnt(0)')
            for r in range(0, 4, 2):
                A('v_pk_add_f32 %s, %s, %s' % (v(D + 8 + r, 2), v(D + 8 + r, 2), v(D + 12 + r, 2)))
            for r in range(0, 4, 2):
                A('v_pk_add_f32 %s, %s, %s' % (v(R + r, 2), v(D + r, 2), v(D + 8 + r, 2)))
        for q in range(2):
            A('v_cvt_pk_bf16_f32 %s, %s, %s' % (v(R + 4 + q), v(R + 2 * q), v(R + 2 * q + 1)))
        NR = p['nr']
        for r in range(NR):
            A('buffer_store_dwordx2 %s, %s, %s, %s offen offset:%d sc1' % (v(R + 4, 2), v(c.V_WA), ws, s(c.S_WOFF), r * 512))
        stamp(9)
        W = c.V_WP

        def wl(r):
            return ['buffer_load_dwordx2 %s, %s, %s, %s offen offset:%d sc1' % (v(W + 6 * r + 2 * k, 2), v(c.V_WA + 1 + k), ws, s(c.S_WOFF), r * 512)
                    for k in range(3)]
        work = (['ds_write_b128 %s, %s' % (v(c.V_OR), v(D + 12, 4))] if p['la'] else []) + c.zero(c.A_QK, 24) + \
            ['s_mov_b32 %s, %s' % (s(c.S_MEMOFF), s(c.S_NMEM)), 's_add_u32 %s, %s, 1' % (s(c.S_STEP), s(c.S_STEP)), 's_mov_b32 %s, 0' % s(c.S_CNT)]
        poi = c.slot(c.S_PMEM, c.S_MB, 14, 3) + c.slot(c.S_PO, c.S_OBB, 14, 2) + c.slot(c.S_PSC, c.S_SCBB, 13, 2) + c.poison_list()[1:]
        nxt = c.slot(c.S_OOFF, c.S_OBB, 14, 1) + c.slot(c.S_NMEM, c.S_MB, 14, 1)
        eo, es = c.exports()
        if p.get('ke'):
            E = c.A_QK
            for ww in range(4):
                for tau in range(2):
                    A('ds_read_b128 %s, %s offset:%d' % (v(E + ww * 8 + tau * 4, 4), v(c.V_QR), ww * 3136 + tau * 64))
            emit(eo)
            for ww in range(1, 4):
                A('s_waitcnt lgkmcnt(%d)' % (6 - 2 * ww))
                for r in range(0, 8, 2):
                    A('v_pk_add_f32 %s, %s, %s' % (v(E + r, 2), v(E + r, 2), v(E + 8 * ww + r, 2)))
            for q in range(4):
                A('v_cvt_pk_bf16_f32 %s, %s, %s' % (v(c.V_F + q), v(E + 2 * q), v(E + 2 * q + 1)))
            emit(es[:3])
        if p.get('sl'):
            assert p['pz'] == 3
            emit(nxt + c.wslot(c.S_PW, 2))
            if p['sl'] == 2:
                emit(c.wslot(c.S_SCOFF, 1))
        if p['pz'] == 2:
            emit(poi)
        late = []
        if p['pz'] == 3:
            pl = poi + c.wpoison()
            k0 = next(i for i, q in enumerate(pl) if q.startswith('buffer_'))
            k0 = {0: len(pl), 1: k0, 2: k0 + 1, 3: len(pl) - 1}[p.get('ord', 0)]
            emit(pl[:k0])
            late = pl[k0:]
        if p.get('zw'):
            emit(c.zero(c.A_WO, 8))
        if p.get('wk'):
            emit(work)
            work = []
        emit(late)
        c.pause(p['wa'])
        for r in range(NR):
            emit(wl(r))
            if r == 0:
                emit(work)
            if r + 1 < NR:
                c.pause(p['wb'] if r else max(p['wb'] - 7, 0))
        extra = p['wf'] - 1
        for _ in range(extra):
            c.pause(p['wb'])
            emit(wl(NR - 1))
        Lw = [A.new_label('w%d%s' % (r, tg)) for r in range(NR + 1)]

        def consume(r, first):
            A.label(Lw[r])
            A('s_waitcnt vmcnt(%d)' % (3 * (NR - 1 - r + extra)))
            if first and p['mp'] == 2:
                A('s_barrier')
            a = W + 6 * r
            A('v_max3_u32 %s, %s, %s, %s ;poll' % (v(c.V_T), v(a), v(a + 2), v(a + 4)))
            for e in range(4):
                A('v_dot2_f32_bf16 %s, %s, %s, %s ;poll' % (v(D + e), v(a + (e >> 1)), s(c.S_HI if e & 1 else c.S_LO), v(R + e)))
                if e == 0:
                    A('v_cmp_eq_u32 vcc, -1, %s' % v(c.V_T))
            for k in (1, 2):
                for e in range(4):
                    A('v_dot2c_f32_bf16 %s, %s, %s ;poll' % (v(D + e), s(c.S_HI if e & 1 else c.S_LO), v(a + 2 * k + (e >> 1))))
                if k == 1:
                    A('s_cbranch_vccnz %s' % Lw[r + 1])
            if p['mp'] == 3:
                A('s_barrier')
            A('v_cvt_pk_bf16_f32 %s, %s, %s' % (v(D + 8), v(D), v(D + 1)))
            A('v_cvt_pk_bf16_f32 %s, %s, %s' % (v(D + 9), v(D + 2), v(D + 3)))
            A('buffer_store_dwordx2 %s, %s, %s, %s offen' % (v(D + 8, 2), v(c.V_MST), ws, s(c.S_MEMOFF)))
            stamp(10)
            if c.diag and r:
                A('s_add_u32 %s, %s, %d' % (s(c.S_RC + 1), s(c.S_RC + 1), 1 if r == 1 else 0x10000))
            if p['mp'] == 0:
                A('s_barrier')
            A('s_branch %s' % L_loop)
        consume(0, True)

        def tail_w():
            for r in range(1, NR):
                consume(r, False)
            A.label(Lw[NR])
            emit(wl(NR - 1))
            A('s_add_u32 %s, %s, 1' % (s(c.S_CNT), s(c.S_CNT)))
            if c.diag:
                A('s_add_u32 %s, %s, 1' % (s(c.S_RC + 3), s(c.S_RC + 3)))
            A('s_cmp_lt_u32 %s, 0x%x' % (s(c.S_CNT), POLL_MAX))
            A('s_cbranch_scc1 %s' % Lw[NR - 1])
            A('s_branch %s' % L_exit)
        tails.append(tail_w)

        A.label(L_Bo)
        stamp(1)
        v_part(False, {})
        A('s_cmp_eq_u32 %s, %d' % (s(c.S_STEP), c.nsteps - 1))
        A('s_cbranch_scc1 %s' % L_done)
        if not p.get('zw'):
            emit(c.zero(c.A_WO, 8))
        if p.get('sl') == 2:
            A('s_mov_b32 %s, %s' % (s(c.S_WOFF), s(c.S_SCOFF)))
        elif p.get('sl'):
            emit(c.wslot(c.S_WOFF, 0))
        else:
            emit(c.slot(c.S_OOFF, c.S_OBB, 14, 0) + c.slot(c.S_NMEM, c.S_MB, 14, 1) + c.wslot(c.S_WOFF, 0))
            emit(c.wslot(c.S_PW, 2))
        poi = c.slot(c.S_PMEM, c.S_MB, 14, 3) + c.slot(c.S_PO, c.S_OBB, 14, 2) + c.slot(c.S_PSC, c.S_SCBB, 13, 2) + c.poison_list()[1:]
        if p['pz'] == 0:
            L3 = A.new_label('b3' + tg)
            A('s_cmp_lg_u32 %s, 3' % s(c.S_WAVE))
            A('s_cbranch_scc1 %s' % L3)
            emit(poi)
            A.label(L3)
        if c.diag:
            c.dump()
        if p['op'] != 1:
            A('s_barrier')
        stamp(6)
        emit(ol)
        A('s_branch %s' % L_C)

        A.label(L_Do)
        stamp(7)
        L0 = A.new_label('d0' + tg)
        A('s_cmp_lg_u32 %s, 0' % s(c.S_WAVE))
        A('s_cbranch_scc1 %s' % L0)
        emit(eo + es[3 if p.get('ke') else 0:])
        L_k1, L_k2, L_ks, L_k3 = [A.new_label(n + tg) for n in ('k1', 'k2', 'ks', 'k3')]
        T = c.S_T
        A('s_and_b32 %s, %s, 7' % (s(T + 5), s(c.S_STEP)))
        A('s_cmp_eq_u32 %s, 7' % s(T + 5))
        A('s_cbranch_scc1 %s' % L_ks)
        A.label(L_k1)
        emit(c.kv_next())
        A('s_cmp_eq_u32 %s, 6' % s(T + 5))
        A('s_cbranch_scc0 %s' % L_k2)
        A('s_lshr_b32 %s, %s, 1' % (s(T), s(c.S_STEP)))
        A('s_add_u32 %s, %s, %d' % (s(T), s(T), D_KV + 1))
        A('s_min_u32 %s, %s, %d' % (s(T), s(T), D_KV + 28))
        A('v_mov_b32 %s, %s' % (v(c.V_T + 7), s(T)))
        A('buffer_load_dword %s, %s, %s, 0 offen sc1' % (v(c.V_KC), v(c.V_T + 7), s(c.S_DB, 4)))
        A.label(L_k2)
        if p['ex']:
            A('s_cmp_eq_u32 %s, 0' % s(T + 5))
            A('s_cbranch_scc0 %s' % L_k3)
            A('v_mov_b32 %s, %s' % (v(c.V_T), s(c.S_STEP)))
            emit(c.prog_store(c.V_T))
            A.label(L_k3)
        emit(c.slot(c.S_SCOFF, c.S_SCBB, 13, 1) + ([] if p.get('sl') else nxt))
        A('s_add_u32 %s, %s, 3' % (s(c.S_VT), s(c.S_VT)))
        if c.diag:
            c.dump()
        A.label(L0)
        if p.get('sl'):
            emit(nxt)
        L3 = A.new_label('d3' + tg)
        A('s_cmp_lg_u32 %s, 3' % s(c.S_WAVE))
        A('s_cbranch_scc1 %s' % L3)
        if p['pz'] != 3:
            emit(c.wpoison())
        A.label(L3)
        if p.get('zw'):
            emit(c.zero(c.A_WO, 8))
        emit(c.zero(c.A_QK, 24))
        if p['pz'] == 1:
            L3 = A.new_label('d1' + tg)
            A('s_cmp_lg_u32 %s, 1' % s(c.S_WAVE))
            A('s_cbranch_scc1 %s' % L3)
            emit(poi)
            A.label(L3)
        A('s_mov_b32 %s, %s' % (s(c.S_MEMOFF), s(c.S_NMEM)))
        A('s_add_u32 %s, %s, 1' % (s(c.S_STEP), s(c.S_STEP)))
        if p['mp'] != 1:
            A('s_barrier')
        A('s_branch %s' % L_loop)
        A.label(L_ks)
        A('s_cmp_lt_u32 %s, %d' % (s(c.S_STEP), 8 * p['n'] - 1))
        A('s_cbranch_scc1 %s' % L_k1)
        A('s_mov_b32 %s, 0' % s(c.S_CNT))
        Lk = A.new_label('kp' + tg)
        A.label(Lk)
        A('v_readfirstlane_b32 %s, %s ;poll' % (s(T), v(c.V_KC)))
        A('s_and_b32 %s, %s, 0xff' % (s(T), s(T)))
        A('s_cmp_ge_u32 %s, %d' % (s(T), p['kvt']))
        A('s_cbranch_scc1 %s' % L_k1)
        A('buffer_load_dword %s, %s, %s, 0 offen sc1' % (v(c.V_KC), v(c.V_T + 7), s(c.S_DB, 4)))
        A('s_add_u32 %s, %s, 1' % (s(c.S_CNT), s(c.S_CNT)))
        A('s_cmp_ge_u32 %s, 0x%x' % (s(c.S_CNT), POLL_MAX))
        A('s_cbranch_scc1 %s' % L_exit)
        A('s_waitcnt vmcnt(0)')
        A('s_branch %s' % Lk)

        c.inloop = False
        A.label(L_last)
        v_part(True, {})
        v_reduce()
        l1, l2 = c.last_stores() if hasattr(c, 'last_stores') else (eo + es, c.prog_store(c.V_T))
        emit(l1)
        A('v_mov_b32 %s, %d' % (v(c.V_T), c.nsteps))
        A('s_waitcnt vmcnt(0)')
        emit(l2)
        A('s_branch %s' % L_done)
        for t in tails:
            t()
```

```python
from asm import *
from layout import *
from chain2 import srd, MF, POLL_MAX
from chain5 import Chain5
from attn2 import Attn2, weave
from gside2 import VM


class Chain6(Chain5):
    S_SELW = 97

    def txbase(self, dst, sx, rbi):
        A, c = self.A, self
        A('s_lshl_b32 %s, %s, 2' % (s(dst), s(c.S_J)))
        A('s_add_u32 %s, %s, %s' % (s(dst), s(dst), s(sx)))
        A('s_lshl_b32 %s, %s, 3' % (s(dst), s(dst)))
        A('s_add_u32 %s, %s, %s' % (s(dst), s(dst), s(c.S_WAVE)))
        A('s_lshl_b32 %s, %s, 12' % (s(dst), s(dst)))
        A('s_add_u32 %s, %s, 0x%x' % (s(dst), s(dst), TX + rbi * 16384))

    def initial_poison(self):
        A, c = self.A, self
        Chain5.initial_poison(self)
        T = c.S_T
        c.txbase(T, c.S_X, 0)
        A('s_add_u32 %s, %s, 0x4000' % (s(T + 1), s(T)))
        for r in range(2):
            for k in range(1, 4):
                A('buffer_store_dwordx4 %s, %s, %s, %s offen offset:%d sc1' % (v(c.V_POI, 4), v(c.V_L16), s(c.S_WS, 4), s(T + r), k * 1024))
        A('buffer_store_dword %s, %s, %s, %s offen sc1' % (v(c.V_T), v(c.V_L16), s(c.S_WS, 4), s(T)))
        self.npoison += 7

    L_W2 = 81920

    def after_weights(self):
        A, c = self.A, self
        T = c.S_T
        vs = c.V_RD + 25
        A('v_xor_b32 %s, 64, %s' % (v(vs), v(vs)))
        A('s_lshl_b32 %s, %s, 14' % (s(T + 1), s(c.S_WAVE)))
        for q in range(16):
            A('s_add_u32 m0, %s, 0x%x' % (s(T + 1), c.L_W2 + q * 1024))
            A('s_mov_b32 %s, 0x%x' % (s(T), q * 16 * 2048))
            A('buffer_load_dwordx4 %s, %s, %s offen lds' % (v(vs), s(c.S_W, 4), s(T)))

    def last_stores(self):
        c = self
        ex = c.p['ex']
        c.p['ex'] = 2
        eo, es = c.exports()
        c.p['ex'] = ex
        return eo + es, [t.replace(' sc1', '') for t in c.prog_store(c.V_T)]

    def before_loop(self):
        Chain5.before_loop(self)
        self.A('v_readfirstlane_b32 %s, %s' % (s(self.S_SELW), v(self.V_T + 5)))
        if self.p.get('ts'):
            A, c = self.A, self
            T = c.S_T
            A('s_lshl_b32 %s, %s, 5' % (s(T), s(c.S_X)))
            A('s_add_u32 %s, %s, %s' % (s(T), s(T), s(c.S_J)))
            A('s_lshl_b32 %s, %s, 3' % (s(T), s(T)))
            A('s_add_u32 %s, %s, 0x%x' % (s(T), s(T), DIAG2 + 0x10000))
            A('v_mov_b32 v40, s94')
            A('v_mov_b32 v41, s92')
            A('v_mov_b32 v42, 0')
            A('buffer_store_dwordx2 v[40:41], v42, %s, %s offen' % (s(c.S_WS, 4), s(T)))
            A('s_lshl_b32 %s, %s, 1' % (s(T), s(T)))
            A('s_sub_u32 %s, %s, 0x%x' % (s(T), s(T), DIAG2 + 0x10000 - 0x1000))
            for k in range(4):
                A('v_mov_b32 v%d, s%d' % (44 + k, 84 + 2 * k))
            A('buffer_store_dwordx4 v[44:47], v42, %s, %s offen' % (s(c.S_WS, 4), s(T)))

    def tail(self, L_exit, L_stop):
        A, c = self.A, self
        ma = c.p.get('ma', 2)
        ws, db = s(c.S_WS, 4), s(c.S_DB, 4)
        at = Attn2(A, c.V_L, c.V_L16, c.S_WS)
        SEG, UB, E, OB, CNT, TH, CA, OUT, FT = 26, 27, 28, 32, 34, 35, 36, 40, 44
        SB, T = 60, c.S_T
        vP, vF, vG, vK, vA, vW, vR, vO, vB = 4, 6, 10, 12, 14, 18, 21, 22, 24
        vm = VM(A)

        def st(k):
            if c.p.get('ts'):
                A('s_memrealtime %s' % s(74 + 2 * k, 2))
        A('s_load_dwordx2 %s, s[0:1], %d' % (s(T + 6, 2), K_OUT))
        if ma == 2:
            A('s_lshl_b32 %s, %s, 2' % (s(SEG), s(c.S_C)))
            A('s_add_u32 %s, %s, %s' % (s(SEG), s(SEG), s(c.S_WAVE)))
            A('s_add_u32 %s, %s, 48' % (s(SEG), s(SEG)))
        else:
            A('s_lshr_b32 %s, %s, 1' % (s(T), s(c.S_WAVE)))
            A('s_lshl_b32 %s, %s, 1' % (s(SEG), s(c.S_C)))
            A('s_add_u32 %s, %s, %s' % (s(SEG), s(SEG), s(T)))
            A('s_add_u32 %s, %s, 56' % (s(SEG), s(SEG)))
        A('s_and_b32 %s, %s, 28' % (s(T), s(c.S_J)))
        A('v_and_b32 %s, 3, %s' % (v(vP), v(c.V_L)))
        A('v_add_u32 %s, %s, %s' % (v(vP), s(T), v(vP)))
        A('v_lshrrev_b32 %s, %s, %s' % (v(vP + 1), v(vP), s(c.S_SELW)))
        A('v_and_b32 %s, 1, %s' % (v(vP + 1), v(vP + 1)))
        A('v_lshlrev_b32 %s, 20, %s' % (v(vP), v(vP)))
        A('v_lshl_add_u32 %s, %s, 13, %s' % (v(vP), v(vP + 1), v(vP)))
        A('s_lshl_b32 %s, %s, 2' % (s(CA), s(c.S_X)))
        A('s_add_u32 %s, %s, 0x%x' % (s(CA), s(CA), JB + 0x8000))
        A('v_mov_b32 %s, %d' % (v(vK), D_KV + 24))
        A('s_lshr_b32 %s, %s, 3' % (s(T), s(c.S_J)))
        A('s_lshl_b32 %s, %s, 4' % (s(T), s(T)))
        A('s_add_u32 %s, %s, %d' % (s(T), s(T), D_FT + 18 * 4))
        A('v_mov_b32 %s, %s' % (v(vK + 1), s(T)))
        flags = ['buffer_load_dword %s, %s, %s, %s offen sc1' % (v(vP + 1), v(vP), ws, s(CA)),
                 'buffer_load_dwordx2 %s, %s, %s, 0 offen sc1' % (v(vF, 2), v(vK), db)]
        vm.issue('f', flags)
        vm.issue('f', ['buffer_load_dwordx2 %s, %s, %s, 0 offen sc1' % (v(vF + 2, 2), v(vK + 1), db)])
        if c.p.get('tk'):
            A('v_and_b32 %s, 7, %s' % (v(vA), v(c.V_L)))
            A('v_lshlrev_b32 %s, 2, %s' % (v(vA), v(vA)))
            vm.issue('f', ['buffer_load_dword %s, %s, %s, 0 offen sc1' % (v(vA + 1), v(vA), db)])
        A('s_lshl_b32 %s, %s, 5' % (s(UB), s(SEG)))
        A('s_add_u32 %s, %s, %s' % (s(UB), s(UB), s(c.S_H)))
        A('s_lshl_b32 %s, %s, 13' % (s(UB), s(UB)))
        for off, dst, tg in ((KX, at.V_K, 'k'), (VT, at.V_VT, 'v')):
            vm.issue(tg, ['s_add_u32 %s, %s, 0x%x' % (s(T), s(UB), off), 's_add_u32 %s, %s, 0x1000' % (s(T + 1), s(T))] + at.ld8(dst, T, T + 1))
        A('v_and_b32 %s, 15, %s' % (v(vG), v(c.V_L)))
        A('v_lshlrev_b32 %s, 2, %s' % (v(vG), v(vG)))
        A('s_lshl_b32 %s, %s, 7' % (s(T), s(SEG)))
        A('s_add_u32 %s, %s, 0x%x' % (s(T), s(T), GV))
        vm.issue('v', ['buffer_load_dword %s, %s, %s, %s offen offset:64 sc1' % (v(vG + 1), v(vG), ws, s(T)),
                       'buffer_load_dword %s, %s, %s, %s offen sc1' % (v(vG), v(vG), ws, s(T))])
        at.setup()
        A('s_cmp_ge_u32 %s, 62' % s(SEG))
        A('s_cselect_b32 %s, 64, 0' % s(TH))
        A('s_lshl_b32 %s, %s, 3' % (s(T), s(c.S_X)))
        A('s_lshr_b32 %s, %s, 3' % (s(T + 1), s(SEG)))
        A('s_add_u32 %s, %s, %s' % (s(T), s(T), s(T + 1)))
        A('s_lshl_b32 %s, %s, 4' % (s(T), s(T)))
        A('s_and_b32 %s, %s, 7' % (s(T + 2), s(SEG)))
        A('s_add_u32 %s, %s, %s' % (s(T), s(T), s(T + 2)))
        A('s_lshl_b32 %s, %s, 10' % (s(T), s(T)))
        A('s_add_u32 %s, %s, 0x%x' % (s(T), s(T), JB + 0x10000))
        for q in range(4):
            A('v_readlane_b32 %s, %s, %d' % (s(E + q), v(vP), q))
        for q in range(4):
            A('s_add_u32 %s, %s, %s' % (s(E + q), s(E + q), s(T)))
        A('s_lshl_b32 %s, %s, 5' % (s(OB), s(T + 1)))
        A('s_add_u32 %s, %s, %s' % (s(OB), s(OB), s(c.S_H)))
        A('s_lshl_b32 %s, %s, 4' % (s(OB), s(OB)))
        A('s_add_u32 %s, %s, %s' % (s(OB), s(OB), s(T + 2)))
        A('s_lshl_b32 %s, %s, 12' % (s(OB), s(OB)))
        A('s_add_u32 %s, %s, 0x%x' % (s(OB), s(OB), OI))
        A('s_add_u32 %s, %s, 0x8000' % (s(OB + 1), s(OB)))
        A('s_waitcnt lgkmcnt(0)')
        srd(A, OUT, T + 6, 4 * MB)
        A('s_mov_b32 %s, 0' % s(CNT))
        Lc, Lr = A.new_label('tc'), A.new_label('tr')
        vm.wait('f')
        if c.p.get('tk'):
            A('v_cmp_ne_u32 vcc, -1, %s' % v(vA + 1))
            A('s_cbranch_vccnz %s' % L_exit)
        A.label(Lc)
        A('v_readfirstlane_b32 %s, %s ;poll' % (s(T), v(vF)))
        A('v_readfirstlane_b32 %s, %s ;poll' % (s(T + 1), v(vF + 1)))
        A('v_cmp_gt_u32 vcc, %s, %s ;poll' % (s(TH), v(vP + 1)))
        if ma == 2:
            A('s_min_u32 %s, %s, %s' % (s(T + 1), s(T), s(T + 1)))
        A('s_cbranch_vccnz %s' % Lr)
        A('s_cmp_lt_u32 %s, 0x1000' % s(T + 1))
        A('s_cbranch_scc1 %s' % Lr)
        st(0)
        vm.issue('q', ['s_add_u32 %s, %s, 0x%x' % (s(T), s(UB), QX), 's_add_u32 %s, %s, 0x1000' % (s(T + 1), s(T))]
                 + at.ld_km(E, 0) + at.ld8(at.V_Q, T, T + 1))
        vm.issue('m', at.ld_vm(E, 0))
        for k in range(2):
            A('v_readfirstlane_b32 %s, %s ;poll' % (s(FT + k), v(vF + 2 + k)))
        W0 = at.V_O
        for q in range(16):
            r, b = W0 + (q & 7) * 4, 192 + 4 * q
            for k in range(4):
                A('v_accvgpr_read_b32 %s, %s' % (v(r + k), a(b + k)))
            A('v_permlane16_swap_b32 %s, %s' % (v(r), v(r + 1)))
            A('v_permlane16_swap_b32 %s, %s' % (v(r + 2), v(r + 3)))
            A('v_accvgpr_write_b32 %s, %s' % (a(b), v(r)))
            A('v_accvgpr_write_b32 %s, %s' % (a(b + 2), v(r + 1)))
            A('v_accvgpr_write_b32 %s, %s' % (a(b + 1), v(r + 2)))
            A('v_accvgpr_write_b32 %s, %s' % (a(b + 3), v(r + 3)))
        A('v_lshrrev_b32 %s, 2, %s' % (v(vB), v(c.V_L)))
        A('v_and_b32 %s, 3, %s' % (v(vB + 1), v(c.V_L)))
        A('v_lshlrev_b32 %s, 6, %s' % (v(vB), v(vB)))
        A('v_lshl_add_u32 %s, %s, 3, %s' % (v(vB), v(vB + 1), v(vB)))
        A('s_lshl_b32 %s, %s, 14' % (s(T), s(c.S_WAVE)))
        A('s_add_u32 %s, %s, 0x%x' % (s(T), s(T), c.L_W2))
        A('v_add_u32 %s, %s, %s' % (v(vB), s(T), v(vB)))
        for t_ in range(8):
            for tau in range(2):
                for hh in range(2):
                    A('ds_read_b64_tr_b16 %s, %s offset:%d' % (a(128 + (tau * 8 + t_) * 4 + 2 * hh, 2), v(vB), t_ * 2048 + hh * 1024 + tau * 32))
            if t_ & 1:
                A('s_waitcnt lgkmcnt(0)')
        A('s_lshr_b32 %s, %s, 1' % (s(T), s(c.S_X)))
        A('s_lshl_b32 %s, %s, 11' % (s(T), s(T)))
        A('v_add_u32 %s, %s, %s' % (v(vA), s(T), v(c.V_L16)))
        A('v_xor_b32 %s, 0x800, %s' % (v(vA + 1), v(vA)))
        for k in range(4):
            A('s_add_u32 %s, %s, %d' % (s(T), s(c.S_WAVE), k))
            A('s_and_b32 %s, %s, 3' % (s(T), s(T)))
            A('s_mul_i32 %s, %s, 0x6000' % (s(T), s(T)))
            if k > 1:
                A('s_add_u32 %s, %s, 0x%x' % (s(T), s(T), (k - 1) * 8192))
            A('v_add_u32 %s, %s, %s' % (v(vW + k - 1 if k else vR), s(T), v(c.V_L16)))
        A('v_lshrrev_b32 %s, 4, %s' % (v(vB), v(c.V_L)))
        A('v_and_b32 %s, 1, %s' % (v(vO), v(vB)))
        A('v_lshlrev_b32 %s, 5, %s' % (v(vO), v(vO)))
        A('v_lshrrev_b32 %s, 1, %s' % (v(vB), v(vB)))
        A('v_lshl_add_u32 %s, %s, 4, %s' % (v(vO), v(vB), v(vO)))
        A('v_and_b32 %s, 15, %s' % (v(vB), v(c.V_L)))
        A('v_lshl_add_u32 %s, %s, 11, %s' % (v(vO), v(vB), v(vO)))
        vm.wait('q')
        st(1)
        if ma == 2:
            vm.issue(None, at.scores())
            vm.issue(None, weave(at.softmax(0), at.softmax(1)))
            vm.wait('m')
            for tq in range(2):
                vm.issue(None, at.pv(tq))
                vm.issue('s', at.scale(vG + tq) + at.stores(OB, OB + 1, tq * 2048, ''))
        else:
            L1, L2 = A.new_label('t1'), A.new_label('t2')
            A('s_bitcmp1_b32 %s, 0' % s(c.S_WAVE))
            A('s_cbranch_scc1 %s' % L1)
            for tq in range(2):
                if tq:
                    A.label(L1)
                c.emit([t for k, t in enumerate(at.scores()) if (k % 5 >= 2) == bool(tq)])
                c.emit(at.softmax(tq))
                A('s_waitcnt vmcnt(0)')
                c.emit(at.pv(tq) + at.scale(vG + tq) + at.stores(OB, OB + 1, tq * 2048, ''))
                if not tq:
                    A('s_branch %s' % L2)
            A.label(L2)
        A('s_lshl_b32 %s, %s, 15' % (s(CA), s(c.S_X)))
        A('s_add_u32 %s, %s, 0x%x' % (s(CA), s(CA), TX))
        if ma == 2:
            A('s_cmp_lt_u32 %s, 2' % s(c.S_C))
            A('s_cselect_b32 %s, 1, 0x100' % s(T))
        else:
            A('s_mov_b32 %s, 0x80' % s(T))
        A('v_mov_b32 %s, %s' % (v(vP), s(T)))
        A('v_mov_b32 %s, 0' % v(vP + 1))
        La = A.new_label('ta')
        A('s_cmp_lg_u32 %s, 0' % s(c.S_WAVE))
        A('s_waitcnt vmcnt(0)')
        A('s_barrier')
        A('s_cbranch_scc1 %s' % La)
        A('s_mov_b64 exec, 1')
        A('buffer_atomic_add %s, %s, %s, %s offen' % (v(vP), v(vP + 1), ws, s(CA)))
        A('s_mov_b64 exec, -1')
        A.label(La)
        st(2)

        def spin(load, cond):
            L = A.new_label('tp')
            A('s_mov_b32 %s, 0' % s(CNT))
            A.label(L)
            A(load)
            A('s_add_u32 %s, %s, 1' % (s(CNT), s(CNT)))
            A('s_cmp_ge_u32 %s, 0x%x' % (s(CNT), POLL_MAX))
            A('s_cbranch_scc1 %s' % L_exit)
            A('s_waitcnt vmcnt(0)')
            A('v_readfirstlane_b32 %s, %s' % (s(T), v(vP)))
            cond()
            A('s_cbranch_scc0 %s' % L)
        cload = 'buffer_load_dword %s, %s, %s, %s offen sc1' % (v(vP), v(vP + 1), ws, s(CA))
        RING, NB, NP = 128, 32, 64
        RD, KEEP = 32, (64, 96)

        def loads(rbi):
            out = []
            for i in range(NP):
                grp, k, t = i >> 4, (i >> 3) & 1, i & 7
                pre = []
                if i & 15 == 0:
                    pre = ['s_add_u32 %s, %s, %d' % (s(T), s(c.S_WAVE), grp), 's_and_b32 %s, %s, 3' % (s(T), s(T)), 's_lshl_b32 %s, %s, 12' % (s(T), s(T)),
                           's_add_u32 %s, %s, %s' % (s(SB), s(T), s(SB + 4 + rbi))]
                    pre += ['s_add_u32 %s, %s, 0x%x' % (s(SB + u), s(SB), u * 32768) for u in range(1, 4)]
                out.append(pre + ['buffer_load_dwordx4 %s, %s, %s, %s offen offset:%d' % (v(RING + (i % NB) * 4, 4), v(vA + k), ws, s(SB + (t >> 1)), (t & 1) * 1024)])
            return out

        def project(rbi, ld, fill):
            for i in range(NP):
                vm.wait(('p', rbi, i))
                slot, t = i >> 3, i & 7
                for q in range(4):
                    d = a((slot * 4 + q) * 4, 4)
                    A(MF % (d, a((128 if q >> 1 else 192) + ((q & 1) * 8 + t) * 4, 4), v(RING + (i % NB) * 4, 4), d if t else '0'))
                    if q == 0 and i and i - 1 + NB < NP:
                        vm.issue(('p', rbi, i - 1 + NB), ld[i - 1 + NB])
                    if i >= 32 and (i & 1) == 0 and q == 2:
                        A(wr((i >> 4) - 1, (i & 15) >> 1))
                for tg, lst in fill.get(i, []):
                    vm.issue(tg, lst)

        def wr(grp, q):
            return 'ds_write_b128 %s, %s offset:%d' % (v(vW + grp - 1), a((grp * 8 + q) * 4, 4), q * 1024)

        def scatter():
            for q in range(8):
                A(wr(3, q))

        def reduce(rbi):
            K = KEEP[rbi]
            for q in range(32):
                A('v_accvgpr_read_b32 %s, %s' % (v(K + q), a(q)))
            A('s_waitcnt lgkmcnt(0)')
            A('s_barrier')
            for rel in range(3):
                for q in range(8):
                    A('ds_read_b128 %s, %s offset:%d' % (v(RD + 4 * q, 4), v(vR), rel * 8192 + q * 1024))
                for q in range(8):
                    A('s_waitcnt lgkmcnt(%d)' % (7 - q))
                    for r in (0, 2):
                        A('v_pk_add_f32 %s, %s, %s' % (v(K + 4 * q + r, 2), v(K + 4 * q + r, 2), v(RD + 4 * q + r, 2)))
            Lo, Le = A.new_label('ro'), A.new_label('re')
            A('s_bitcmp1_b32 %s, 0' % s(c.S_X))
            A('s_cbranch_scc1 %s' % Lo)
            n0 = list(vm.q)
            for b in range(2):
                if b:
                    A.label(Lo)
                    vm.q = list(n0)
                for k in range(1, 4):
                    r = K + 8 * (k ^ b)
                    A('s_xor_b32 %s, %s, %d' % (s(T + 1), s(c.S_X), k))
                    c.txbase(T, T + 1, rbi)
                    for q in range(4):
                        A('v_cvt_pk_bf16_f32 %s, %s, %s' % (v(RD + 4 * k + q), v(r + 2 * q), v(r + 2 * q + 1)))
                    vm.issue('x', ['buffer_store_dwordx4 %s, %s, %s, %s offen offset:%d sc1' % (v(RD + 4 * k, 4), v(c.V_L16), ws, s(T), k * 1024)])
                if b:
                    for q in range(8):
                        A('v_mov_b32 %s, %s' % (v(K + q), v(K + 8 + q)))
                else:
                    A('s_branch %s' % Le)
            A.label(Le)

        A('s_lshl_b32 %s, %s, 2' % (s(T), s(c.S_X)))
        A('s_add_u32 %s, %s, %s' % (s(T), s(T), s(c.S_WAVE)))
        A('s_lshl_b32 %s, %s, 3' % (s(T), s(T)))
        A('s_and_b32 %s, %s, 1' % (s(T + 1), s(c.S_J)))
        A('s_add_u32 %s, %s, %s' % (s(T), s(T), s(T + 1)))
        A('s_lshl_b32 %s, %s, 14' % (s(T), s(T)))
        A('s_add_u32 %s, %s, 0x%x' % (s(SB + 4), s(T), OI + 6 * 64 * 32768))
        A('s_add_u32 %s, %s, 0x%x' % (s(SB + 5), s(T), OI + 7 * 64 * 32768))
        if ma == 2:
            def c6():
                A('s_and_b32 %s, %s, 0xff' % (s(T), s(T)))
                A('s_cmp_ge_u32 %s, 16' % s(T))
            spin(cload, c6)
        else:
            Lk = A.new_label('t6')
            A('v_readfirstlane_b32 %s, %s ;poll' % (s(T), v(vF)))
            A('s_cmp_ge_u32 %s, 0x%x' % (s(T), c.p['k6']))
            A('s_cbranch_scc1 %s' % Lk)
            spin('buffer_load_dword %s, %s, %s, 0 offen sc1' % (v(vP), v(vK), db), lambda: A('s_cmp_ge_u32 %s, 0x%x' % (s(T), c.p['k6'])))
            A.label(Lk)
        st(3)
        vm = VM(A)
        ld = loads(0)
        for i in range(NB):
            vm.issue(('p', 0, i), ld[i])
        project(0, ld, {44: [('c', [cload])]})
        st(4)
        scatter()
        L7 = A.new_label('t7')
        vm.wait('c')
        A('v_readfirstlane_b32 %s, %s' % (s(T), v(vP)))
        A('s_cmp_ge_u32 %s, 0x1000' % s(T))
        A('s_cbranch_scc1 %s' % L7)
        spin(cload, lambda: A('s_cmp_ge_u32 %s, 0x1000' % s(T)))
        A.label(L7)
        ld = loads(1)
        for i in range(NB):
            vm.issue(('p', 1, i), ld[i])
        reduce(0)
        Lb = A.new_label('tb')
        A('s_min_u32 %s, %s, %s' % (s(T), s(FT), s(FT + 1)))
        A('s_cmp_ge_u32 %s, 0x400' % s(T))
        A('s_cbranch_scc1 %s' % Lb)
        for k in range(2):
            spin('buffer_load_dword %s, %s, %s, 0 offen offset:%d sc1' % (v(vP), v(vK + 1), db, 4 * k), lambda: A('s_cmp_ge_u32 %s, 0x400' % s(T)))
        A.label(Lb)
        st(5)
        BBo, OUo, TXo = 46, 47, 48
        A('s_and_b32 %s, %s, 1' % (s(T), s(c.S_J)))
        A('s_lshl_b32 %s, %s, 2' % (s(T), s(T)))
        A('s_add_u32 %s, %s, %s' % (s(T), s(T), s(c.S_WAVE)))
        A('s_lshl_b32 %s, %s, 1' % (s(T), s(T)))
        A('s_lshr_b32 %s, %s, 1' % (s(T + 1), s(c.S_X)))
        A('s_add_u32 %s, %s, %s' % (s(T), s(T), s(T + 1)))
        A('s_lshl_b32 %s, %s, 15' % (s(T), s(T)))
        A('s_and_b32 %s, %s, 1' % (s(T + 2), s(c.S_X)))
        A('s_xor_b32 %s, %s, %s' % (s(T + 2), s(T + 2), s(c.S_J)))
        A('s_lshl_b32 %s, %s, 10' % (s(T + 1), s(T + 2)))
        A('s_add_u32 %s, %s, %s' % (s(BBo), s(T), s(T + 1)))
        A('s_add_u32 %s, %s, 0x%x' % (s(BBo), s(BBo), BB + 6 * 0x80000))
        A('s_lshl_b32 %s, %s, 6' % (s(T + 1), s(T + 2)))
        A('s_add_u32 %s, %s, %s' % (s(OUo), s(T), s(T + 1)))
        A('s_add_u32 %s, %s, 0x%x' % (s(OUo), s(OUo), 6 * 0x80000))
        c.txbase(TXo, c.S_X, 0)
        A('s_add_u32 %s, %s, 0x4000' % (s(TXo + 1), s(TXo)))
        A('s_add_u32 %s, %s, 0x80000' % (s(TXo + 2), s(BBo)))

        def recv(rbi):
            K = KEEP[rbi]
            return ['buffer_load_dwordx4 %s, %s, %s, %s offen offset:%d sc1' % (v(K + 8 + 4 * k, 4), v(c.V_L16), ws, s(TXo + rbi), (k + 1) * 1024) for k in range(3)] + [
                'buffer_load_dword %s, off, %s, 0 offset:%d sc1' % (v(vF + 3), db, D_FB)]

        def bbl(rbi):
            return ['buffer_load_dwordx4 %s, %s, %s, %s offen sc1' % (v(28 if rbi else KEEP[0] + 20, 4), v(c.V_L16), ws, s(TXo + 2 if rbi else BBo))]

        def finish(rbi):
            K = KEEP[rbi]
            Lq, Lp = A.new_label('fq'), A.new_label('fp')
            A('s_mov_b32 %s, 0' % s(CNT))
            A.label(Lp)
            t = vP
            A('v_max3_u32 %s, %s, %s, %s ;poll' % (v(t), v(K + 8), v(K + 9), v(K + 10)))
            for q in range(11, 19, 2):
                A('v_max3_u32 %s, %s, %s, %s ;poll' % (v(t), v(t), v(K + q), v(K + q + 1)))
            A('v_max_u32 %s, %s, %s ;poll' % (v(t), v(t), v(K + 19)))
            A('v_cmp_eq_u32 vcc, -1, %s' % v(t))
            A('s_cbranch_vccz %s' % Lq)
            c.emit(recv(rbi))
            A('s_add_u32 %s, %s, 1' % (s(CNT), s(CNT)))
            A('s_cmp_ge_u32 %s, 0x%x' % (s(CNT), POLL_MAX))
            A('s_cbranch_scc1 %s' % L_exit)
            A('s_waitcnt vmcnt(0)')
            A('s_branch %s' % Lp)
            A.label(Lq)
            A('v_cmp_ne_u32 vcc, 0, %s ;poll' % v(vF + 3))
            A('s_cbranch_vccnz %s' % L_stop)
            A('s_mov_b32 %s, 0xffff0000' % s(T + 3))
            u = K + 24
            for p in range(4):
                r = 28 if (rbi and p == 3) else K + 8 + 4 * p
                for k in range(4):
                    A('v_lshlrev_b32 %s, 16, %s ;poll' % (v(u + 2 * k), v(r + k)))
                    A('v_and_b32 %s, %s, %s ;poll' % (v(u + 2 * k + 1), s(T + 3), v(r + k)))
                for k in range(4):
                    A('v_pk_add_f32 %s, %s, %s' % (v(K + 2 * k, 2), v(K + 2 * k, 2), v(u + 2 * k, 2)))
            for q in range(4):
                A('v_cvt_pk_bf16_f32 %s, %s, %s' % (v(K + q), v(K + 2 * q), v(K + 2 * q + 1)))
            A('v_permlane16_swap_b32 %s, %s' % (v(K), v(K + 2)))
            A('v_permlane16_swap_b32 %s, %s' % (v(K + 1), v(K + 3)))
            if rbi:
                A('s_add_u32 %s, %s, 0x80000' % (s(OUo), s(OUo)))
            vm.issue('o', ['buffer_store_dwordx4 %s, %s, %s, %s offen' % (v(K, 4), v(vO), s(OUT, 4), s(OUo))])
        A('s_barrier')
        project(1, ld, {40: [('r0', bbl(0) + recv(0) + bbl(1))]})
        st(6)
        scatter()
        vm.wait('r0')
        finish(0)
        reduce(1)
        st(7)
        vm.issue('r1', recv(1))
        vm.wait('r1')
        finish(1)
        Le = A.new_label('te')
        A('s_branch %s' % Le)
        A.label(Lr)
        c.emit(flags)
        A('s_add_u32 %s, %s, 1' % (s(CNT), s(CNT)))
        A('s_cmp_ge_u32 %s, 0x%x' % (s(CNT), POLL_MAX))
        A('s_cbranch_scc1 %s' % L_exit)
        A('s_waitcnt vmcnt(0)')
        A('s_branch %s' % Lc)
        A.label(Le)
```

```python
from asm import *
from layout import *
from gemm import srd

FB = 0xE000000
XB, QB, KB, VB, OBF, GB, UB, YB, BBF = [FB + k * 0x80000 for k in range(9)]


def emit(A, L_in, L_end):
    WS, DB, SW, SX, SO, SM = 8, 12, 16, 20, 24, 28
    P = 32
    SEG, JOB, NB, NBN, KN, KI, A0, AK, WK, WSTEP, C0, LDA, LDW, LDC, H = range(40, 55)
    T = 56
    LO, HI, CSC, MSK = 64, 65, 66, 67
    VL, VN, VG, VA, VW, VC, VD, VL16, VV = 0, 1, 2, 4, 8, 16, 17, 20, 21
    ws = s(WS, 4)
    A.label(L_in)
    A('s_mov_b64 exec, -1')
    A('s_waitcnt vmcnt(0) lgkmcnt(0)')
    A('s_load_dwordx2 %s, s[0:1], %d' % (s(P, 2), K_DBG))
    A('s_load_dwordx2 %s, s[0:1], %d' % (s(P + 2, 2), K_WS))
    A('s_load_dwordx2 %s, s[0:1], %d' % (s(P + 4, 2), K_X))
    A('s_load_dwordx2 %s, s[0:1], %d' % (s(P + 6, 2), K_OUT))
    A('s_waitcnt lgkmcnt(0)')
    srd(A, DB, P, 256)
    srd(A, WS, P + 2, WS_BYTES)
    srd(A, SX, P + 4, 4 * MB)
    srd(A, SO, P + 6, 4 * MB)
    A('v_mov_b32 v1, 1')
    A('v_mov_b32 v2, %d' % D_FB)
    A('s_mov_b64 exec, 1')
    A('buffer_atomic_add v1, v2, %s, 0 offen sc0 sc1' % s(DB, 4))
    A('s_waitcnt vmcnt(0)')
    A('v_readfirstlane_b32 %s, v1' % s(T))
    A('s_mov_b64 exec, -1')
    A('s_cmp_eq_u32 %s, 0' % s(T))
    Lrun, Lw = A.new_label('fbrun'), A.new_label('fbw')
    A('s_cbranch_scc1 %s' % Lrun)
    A('s_mov_b32 %s, 0' % s(T))
    A.label(Lw)
    A('buffer_load_dword v1, v2, %s, 0 offen sc1' % s(DB, 4))
    A('s_add_u32 %s, %s, 1' % (s(T), s(T)))
    A('s_waitcnt vmcnt(0)')
    A('s_cmp_lt_u32 %s, 1024' % s(T))
    A('s_cbranch_scc1 %s' % Lw)
    A('s_branch %s' % L_end)
    A.label(Lrun)
    A('v_mbcnt_lo_u32_b32 %s, -1, 0' % v(VL))
    A('v_mbcnt_hi_u32_b32 %s, -1, %s' % (v(VL), v(VL)))
    A('v_and_b32 %s, 15, %s' % (v(VN), v(VL)))
    A('v_lshrrev_b32 %s, 4, %s' % (v(VG), v(VL)))
    A('v_lshlrev_b32 %s, 4, %s' % (v(VL16), v(VL)))
    A('s_mov_b32 %s, 0x05040100' % s(LO))
    A('s_mov_b32 %s, 0x07060302' % s(HI))
    A('s_mov_b32 %s, 0x3e0293ee' % s(CSC))
    A('s_mov_b32 %s, 0xffff0000' % s(MSK))
    for qt in range(3):
        d = VD + qt
        A('v_add_u32 %s, %d, %s' % (v(d), 16 * qt, v(VN)))
        A('v_cmp_gt_u32 vcc, 8, %s' % v(d))
        A('v_min_u32 %s, 39, %s' % (v(d), v(d)))
        A('v_cndmask_b32 %s, %s, 39, vcc' % (v(d), v(d)))
        A('v_lshlrev_b32 %s, 2, %s' % (v(32), v(VG)))
        A('v_sub_u32 %s, %s, %s' % (v(d), v(d), v(32)))
    A('v_lshlrev_b32 %s, 15, %s' % (v(VV), v(VG)))
    A('v_lshl_add_u32 %s, %s, 4, %s' % (v(VV), v(VN), v(VV)))
    for k in range(4):
        A('v_mov_b32 %s, 0' % v(32 + k))
    A('s_mov_b32 %s, 0x%x' % (s(T), XB + 40 * 2048))
    for k in range(16):
        A('buffer_store_dwordx4 %s, %s, %s, %s offen' % (v(32, 4), v(VL16), ws, s(T)))
        A('s_add_u32 %s, %s, 1024' % (s(T), s(T)))
    A('s_mov_b32 %s, 0' % s(SEG))

    def copy16(src):
        for k in range(16):
            A('buffer_load_dwordx4 %s, %s, %s, %s offen' % (v(32 + 4 * k, 4), v(VL16), src, s(T)))
            A('s_add_u32 %s, %s, 1024' % (s(T), s(T)))
        A('s_waitcnt vmcnt(0)')
        for k in range(16):
            A('buffer_store_dwordx4 %s, %s, %s, %s offen' % (v(32 + 4 * k, 4), v(VL16), ws, s(T + 1)))
            A('s_add_u32 %s, %s, 1024' % (s(T + 1), s(T + 1)))
        A('s_waitcnt vmcnt(0)')

    def acc(c, t):
        return (c * 3 + t) * 4

    def zero():
        for r in range(96):
            A('v_accvgpr_write_b32 %s, 0' % a(r))

    def mult(w, ops, pairs=4):
        for c in range(8):
            b = 240 + (c & 1) * 4
            for p in range(pairs):
                A('v_perm_b32 %s, %s, %s, %s' % (v(b + p), v(w + (2 * p + 1) * 4 + (c >> 1)), v(w + 2 * p * 4 + (c >> 1)), s(HI if c & 1 else LO)))
            for t in range(3):
                A('v_mfma_f32_16x16x32_bf16 %s, %s, %s, %s' % (a(acc(c, t), 4), v(ops[t], 4), v(b, 4), a(acc(c, t), 4)))

    def rows(dst, ld, n, step, lane, lmul, col):
        for k in range(n):
            A('v_mul_u32_u24 %s, %d, %s' % (v(dst + k), lmul, v(lane)))
            A('v_add_u32 %s, %d, %s' % (v(dst + k), k * step, v(dst + k)))
            A('v_mul_lo_u32 %s, %s, %s' % (v(dst + k), v(dst + k), s(ld)))
            A('v_lshl_add_u32 %s, %s, 4, %s' % (v(dst + k), v(col), v(dst + k)))

    def store():
        A('s_mov_b32 %s, %s' % (s(T), s(C0)))
        A('s_mul_i32 %s, %s, 12' % (s(T + 1), s(LDC)))
        for t in range(3):
            for i in range(4):
                u = 216 + (i & 1) * 12
                for c in range(8):
                    A('v_accvgpr_read_b32 %s, %s' % (v(u + c), a(acc(c, t) + i)))
                for q in range(4):
                    A('v_cvt_pk_bf16_f32 %s, %s, %s' % (v(u + 8 + q), v(u + 2 * q), v(u + 2 * q + 1)))
                A('buffer_store_dwordx4 %s, %s, %s, %s offen' % (v(u + 8, 4), v(VC), ws, s(T)))
                A('s_waitcnt vmcnt(1)')
                A('s_add_u32 %s, %s, %s' % (s(T), s(T), s(LDC)))
            A('s_add_u32 %s, %s, %s' % (s(T), s(T), s(T + 1)))
        A('s_waitcnt vmcnt(0)')

    def unpack(dst, src, n):
        for k in range(n):
            A('v_lshlrev_b32 %s, 16, %s' % (v(dst + 2 * k), v(src + k)))
            A('v_and_b32 %s, %s, %s' % (v(dst + 2 * k + 1), s(MSK), v(src + k)))

    def sigmoid(d, x):
        A('v_mul_f32 %s, 0xbfb8aa3b, %s' % (v(d), v(x)))
        A('v_exp_f32 %s, %s' % (v(d), v(d)))
        A('v_add_f32 %s, 1.0, %s' % (v(d), v(d)))
        A('v_rcp_f32 %s, %s' % (v(d), v(d)))

    Lseg, Lm, Lx, Lc, Ljob, Lgo, Lblk, Lk, Lna, Lh, Le, Lr = [A.new_label('fb' + n) for n in 'seg m x c job go blk k na h e r'.split()]
    A.label(Lseg)
    A('s_mov_b32 %s, 0x%x' % (s(T + 1), XB))
    A('s_cmp_lg_u32 %s, 0' % s(SEG))
    A('s_cbranch_scc1 %s' % Lm)
    A('s_load_dwordx2 %s, s[0:1], %d' % (s(P, 2), K_MEM0))
    A('s_waitcnt lgkmcnt(0)')
    srd(A, SM, P, 16384)
    A('s_mov_b32 %s, 0' % s(T))
    copy16(s(SM, 4))
    A('s_branch %s' % Lx)
    A.label(Lm)
    A('s_mov_b32 %s, 0x%x' % (s(T), YB))
    copy16(ws)
    A.label(Lx)
    A('s_lshl_b32 %s, %s, 16' % (s(T), s(SEG)))
    A('s_mov_b32 %s, 0' % s(KI))
    A.label(Lc)
    copy16(s(SX, 4))
    A('s_add_u32 %s, %s, 1' % (s(KI), s(KI)))
    A('s_cmp_lt_u32 %s, 4' % s(KI))
    A('s_cbranch_scc1 %s' % Lc)
    A('s_mov_b32 %s, 0' % s(JOB))
    A.label(Ljob)
    jobs = [(K_WQ, XB, 1024, 4096, QB), (K_WK, XB, 1024, 4096, KB), (K_WV, XB, 1024, 4096, VB), (K_WG, XB, 1024, 3584, GB), (K_WU, XB, 1024, 3584, UB),
            (K_WO, OBF, 4096, 1024, YB), (K_WD, GB, 3584, 1024, BBF)]
    for j, (kw, a0, K, N, c0) in enumerate(jobs):
        Ln = A.new_label('fbn')
        if j < 6:
            A('s_cmp_lg_u32 %s, %d' % (s(JOB), j))
            A('s_cbranch_scc1 %s' % Ln)
        A('s_load_dwordx2 %s, s[0:1], %d' % (s(P, 2), kw))
        A('s_waitcnt lgkmcnt(0)')
        srd(A, SW, P, K * N * 2)
        for r, val in ((A0, a0), (LDA, 2 * K), (LDW, 2 * N), (LDC, 2 * N), (WSTEP, 64 * N), (KN, K // 128 - 1), (NBN, N // 128), (C0, c0)):
            A('s_mov_b32 %s, 0x%x' % (s(r), val))
        if j < 6:
            A('s_branch %s' % Lgo)
            A.label(Ln)
    A.label(Lgo)
    rows(VA, LDA, 3, 16, VN, 1, VG)
    rows(VW, LDW, 8, 1, VG, 8, VN)
    rows(VC, LDC, 1, 0, VG, 4, VN)
    A('s_mov_b32 %s, 0' % s(NB))
    A.label(Lblk)
    zero()
    A('s_mov_b32 %s, %s' % (s(AK), s(A0)))
    A('s_lshl_b32 %s, %s, 8' % (s(WK), s(NB)))

    def issue(st):
        b = 32 + 44 * st
        for j in range(8):
            A('buffer_load_dwordx4 %s, %s, %s, %s offen' % (v(b + 4 * j, 4), v(VW + j), s(SW, 4), s(WK)))
        for t in range(3):
            A('buffer_load_dwordx4 %s, %s, %s, %s offen' % (v(b + 32 + 4 * t, 4), v(VA + t), ws, s(AK)))
        A('s_add_u32 %s, %s, %s' % (s(WK), s(WK), s(WSTEP)))
        A('s_add_u32 %s, %s, 64' % (s(AK), s(AK)))

    def comp(st):
        b = 32 + 44 * st
        mult(b, [b + 32, b + 36, b + 40])
    for st in range(4):
        issue(st)
    A('s_mov_b32 %s, 0' % s(KI))
    A.label(Lk)
    for st in range(4):
        A('s_waitcnt vmcnt(33)')
        comp(st)
        issue(st)
    A('s_add_u32 %s, %s, 1' % (s(KI), s(KI)))
    A('s_cmp_lt_u32 %s, %s' % (s(KI), s(KN)))
    A('s_cbranch_scc1 %s' % Lk)
    for st in range(4):
        A('s_waitcnt vmcnt(%d)' % (33 - 11 * st))
        comp(st)
    store()
    A('s_add_u32 %s, %s, 256' % (s(C0), s(C0)))
    A('s_add_u32 %s, %s, 1' % (s(NB), s(NB)))
    A('s_cmp_lt_u32 %s, %s' % (s(NB), s(NBN)))
    A('s_cbranch_scc1 %s' % Lblk)
    A('s_add_u32 %s, %s, 1' % (s(JOB), s(JOB)))
    A('s_cmp_lg_u32 %s, 5' % s(JOB))
    A('s_cbranch_scc1 %s' % Lna)
    A('s_mov_b32 %s, 8192' % s(LDC))
    rows(VA, LDC, 3, 16, VN, 1, VG)
    rows(VC, LDC, 1, 0, VG, 4, VN)
    A('s_mov_b32 %s, 0' % s(H))
    A.label(Lh)
    RQ, RK, RV, RS, RP = 32, 80, 128, 176, 212
    for base, reg in ((QB, RQ), (KB, RK)):
        A('s_add_u32 %s, %s, 0x%x' % (s(T), s(H), base))
        for t in range(3):
            for e in range(4):
                A('buffer_load_dwordx4 %s, %s, %s, %s offen offset:%d' % (v(reg + (t * 4 + e) * 4, 4), v(VA + t), ws, s(T), e * 64))
    for kt in range(3):
        for i in range(4):
            A('s_add_u32 %s, %s, 0x%x' % (s(T), s(H), VB + (kt * 16 + i) * 8192))
            A('buffer_load_dwordx4 %s, %s, %s, %s offen' % (v(RV + (kt * 4 + i) * 4, 4), v(VV), ws, s(T)))
    zero()
    A('s_waitcnt vmcnt(0)')
    for e in range(4):
        for qt in range(3):
            for kt in range(3):
                d = v(RS + (qt * 3 + kt) * 4, 4)
                A('v_mfma_f32_16x16x32_bf16 %s, %s, %s, %s' % (d, v(RK + (kt * 4 + e) * 4, 4), v(RQ + (qt * 4 + e) * 4, 4), d if e else '0'))
    m, t, ninf = 32, 33, 34
    A('v_mov_b32 %s, 0xf149f2ca' % v(ninf))
    for qt in range(3):
        S = RS + qt * 12
        for k in range(12):
            A('v_cmp_le_i32 vcc, %d, %s' % ((k >> 2) * 16 + (k & 3), v(VD + qt)))
            A('v_cndmask_b32 %s, %s, %s, vcc' % (v(S + k), v(ninf), v(S + k)))
        A('v_max_f32 %s, %s, %s' % (v(m), v(S), v(S + 1)))
        for k in range(2, 12, 2):
            A('v_max3_f32 %s, %s, %s, %s' % (v(m), v(m), v(S + k), v(S + k + 1)))
        for sw in ('16', '32'):
            A('v_mov_b32 %s, %s' % (v(t), v(m)))
            A('v_permlane%s_swap_b32 %s, %s' % (sw, v(m), v(t)))
            A('v_max_f32 %s, %s, %s' % (v(m), v(m), v(t)))
        for k in range(12):
            A('v_sub_f32 %s, %s, %s' % (v(S + k), v(S + k), v(m)))
            A('v_mul_f32 %s, %s, %s' % (v(S + k), s(CSC), v(S + k)))
            A('v_exp_f32 %s, %s' % (v(S + k), v(S + k)))
        A('v_add_f32 %s, %s, %s' % (v(m), v(S), v(S + 1)))
        for k in range(2, 12):
            A('v_add_f32 %s, %s, %s' % (v(m), v(m), v(S + k)))
        for sw in ('16', '32'):
            A('v_mov_b32 %s, %s' % (v(t), v(m)))
            A('v_permlane%s_swap_b32 %s, %s' % (sw, v(m), v(t)))
            A('v_add_f32 %s, %s, %s' % (v(m), v(m), v(t)))
        A('v_rcp_f32 %s, %s' % (v(m), v(m)))
        for k in range(12):
            A('v_mul_f32 %s, %s, %s' % (v(S + k), v(S + k), v(m)))
        for q in range(6):
            A('v_cvt_pk_bf16_f32 %s, %s, %s' % (v(RP + qt * 8 + q), v(S + 2 * q), v(S + 2 * q + 1)))
        A('v_mov_b32 %s, 0' % v(RP + qt * 8 + 6))
        A('v_mov_b32 %s, 0' % v(RP + qt * 8 + 7))
    mult(RV, [RP, RP + 8, RP + 16])
    for r in (242, 243, 246, 247):
        A('v_mov_b32 %s, 0' % v(r))
    mult(RV + 32, [RP + 4, RP + 12, RP + 20], pairs=2)
    A('s_add_u32 %s, %s, 0x%x' % (s(C0), s(H), OBF))
    store()
    A('s_add_u32 %s, %s, 256' % (s(H), s(H)))
    A('s_cmp_lt_u32 %s, 8192' % s(H))
    A('s_cbranch_scc1 %s' % Lh)
    A('s_mov_b32 %s, 0x%x' % (s(T), GB + 8 * 7168))
    A.label(Le)
    A('s_add_u32 %s, %s, 0x%x' % (s(T + 1), s(T), UB - GB))
    A('buffer_load_dwordx4 %s, %s, %s, %s offen' % (v(32, 4), v(VL16), ws, s(T)))
    A('buffer_load_dwordx4 %s, %s, %s, %s offen' % (v(36, 4), v(VL16), ws, s(T + 1)))
    A('s_waitcnt vmcnt(0)')
    unpack(40, 32, 8)
    for k in range(8):
        sigmoid(56 + k, 40 + k)
        A('v_mul_f32 %s, %s, %s' % (v(40 + k), v(40 + k), v(56 + k)))
        A('v_mul_f32 %s, %s, %s' % (v(40 + k), v(40 + k), v(48 + k)))
    for q in range(4):
        A('v_cvt_pk_bf16_f32 %s, %s, %s' % (v(64 + q), v(40 + 2 * q), v(41 + 2 * q)))
    A('buffer_store_dwordx4 %s, %s, %s, %s offen' % (v(64, 4), v(VL16), ws, s(T)))
    A('s_waitcnt vmcnt(0)')
    A('s_add_u32 %s, %s, 1024' % (s(T), s(T)))
    A('s_cmp_lt_u32 %s, 0x%x' % (s(T), GB + 40 * 7168))
    A('s_cbranch_scc1 %s' % Le)
    A.label(Lna)
    A('s_cmp_lt_u32 %s, 7' % s(JOB))
    A('s_cbranch_scc1 %s' % Ljob)
    A('s_load_dwordx2 %s, s[0:1], %d' % (s(P, 2), K_GW))
    A('s_waitcnt lgkmcnt(0)')
    srd(A, SM, P, 2048)
    for k in range(2):
        A('buffer_load_dwordx4 %s, %s, %s, 0 offen offset:%d' % (v(32 + 4 * k, 4), v(VL16), s(SM, 4), 1024 * k))
    A('s_waitcnt vmcnt(0)')
    unpack(128, 32, 8)
    A('s_mov_b32 %s, %d' % (s(KI), 8 * 2048))
    A('s_lshl_b32 %s, %s, 16' % (s(T + 3), s(SEG)))
    A.label(Lr)
    for n, base in enumerate((XB, YB, BBF)):
        A('s_add_u32 %s, %s, 0x%x' % (s(T), s(KI), base))
        for k in range(2):
            A('buffer_load_dwordx4 %s, %s, %s, %s offen offset:%d' % (v(32 + 8 * n + 4 * k, 4), v(VL16), ws, s(T), 1024 * k))
    A('s_waitcnt vmcnt(0)')
    unpack(64, 32, 24)
    z, t = 32, 33
    A('v_mul_f32 %s, %s, %s' % (v(z), v(64), v(128)))
    for k in range(1, 16):
        A('v_fma_f32 %s, %s, %s, %s' % (v(z), v(64 + k), v(128 + k), v(z)))
    for sw in ('16', '32'):
        A('v_mov_b32 %s, %s' % (v(t), v(z)))
        A('v_permlane%s_swap_b32 %s, %s' % (sw, v(z), v(t)))
        A('v_add_f32 %s, %s, %s' % (v(z), v(z), v(t)))
    for r in (8, 4, 2, 1):
        A('s_nop 1')
        A('v_mov_b32_dpp %s, %s row_ror:%d row_mask:0xf bank_mask:0xf' % (v(t), v(z), r))
        A('v_add_f32 %s, %s, %s' % (v(z), v(z), v(t)))
    sigmoid(z, z)
    A('v_sub_f32 %s, 1.0, %s' % (v(t), v(z)))
    for k in range(16):
        A('v_mul_f32 %s, %s, %s' % (v(96 + k), v(t), v(96 + k)))
        A('v_fma_f32 %s, %s, %s, %s' % (v(96 + k), v(z), v(80 + k), v(96 + k)))
    for q in range(8):
        A('v_cvt_pk_bf16_f32 %s, %s, %s' % (v(40 + q), v(96 + 2 * q), v(97 + 2 * q)))
    for k in range(2):
        A('buffer_store_dwordx4 %s, %s, %s, %s offen offset:%d' % (v(40 + 4 * k, 4), v(VL16), s(SO, 4), s(T + 3), 1024 * k))
    A('s_waitcnt vmcnt(0)')
    A('s_add_u32 %s, %s, 2048' % (s(T + 3), s(T + 3)))
    A('s_add_u32 %s, %s, 2048' % (s(KI), s(KI)))
    A('s_cmp_lt_u32 %s, %d' % (s(KI), 40 * 2048))
    A('s_cbranch_scc1 %s' % Lr)
    A('s_add_u32 %s, %s, 1' % (s(SEG), s(SEG)))
    A('s_cmp_lt_u32 %s, 64' % s(SEG))
    A('s_cbranch_scc1 %s' % Lseg)
    A('s_branch %s' % L_end)
```

```python
from asm import *
from layout import *


def srd(A, d, ptr, nbytes):
    A('s_mov_b32 %s, %s' % (s(d), s(ptr)))
    A('s_mov_b32 %s, %s' % (s(d + 1), s(ptr + 1)))
    A('s_mov_b32 %s, 0x%x' % (s(d + 2), nbytes))
    A('s_mov_b32 %s, 0x20000' % s(d + 3))


class Gemm:
    S_WS = 8
    S_A = 12
    S_B = 16
    S_WAVE, S_WN, S_WM = 20, 21, 22
    S_SA, S_SB, S_DA, S_DB = 23, 24, 25, 26
    S_CNT = 27
    S_MA, S_MB = 28, 29
    S_T = 30
    V_L = 1
    V_XA = 2
    V_WA = 4
    V_DA = 12
    V_DB = 20
    V_N = 24
    V_G = 25
    V_L16 = 26
    V_T = 28
    V_W = 128
    V_X = 192
    L_A = 0
    L_B = 65536
    L_SP = 131072

    def __init__(self, A, opts=()):
        self.A = A
        self.opts = set(opts)
        self.hh_off = 1024
        self.swap = False

    def acc(self, fg, tm, tau=0):
        return ((fg * 8 + tm) * 2 + tau) * 4

    def wf(self, buf, fn):
        return self.V_W + buf * 32 + fn * 4

    def xf(self, buf, tm):
        return self.V_X + buf * 32 + tm * 4

    def setup(self):
        A, c = self.A, self
        A('v_and_b32 %s, 63, v0' % v(c.V_L))
        A('v_lshrrev_b32 %s, 6, v0' % v(c.V_T))
        A('s_nop 0')
        A('v_readfirstlane_b32 %s, %s' % (s(c.S_WAVE), v(c.V_T)))
        A('s_and_b32 %s, %s, 1' % (s(c.S_WN), s(c.S_WAVE)))
        A('s_lshr_b32 %s, %s, 1' % (s(c.S_WM), s(c.S_WAVE)))
        A('s_lshl_b32 %s, %s, 13' % (s(c.S_MA), s(c.S_WAVE)))
        A('s_lshl_b32 %s, %s, 12' % (s(c.S_MB), s(c.S_WAVE)))
        A('s_add_u32 %s, %s, 0x%x' % (s(c.S_MB), s(c.S_MB), c.L_B))
        A('v_lshrrev_b32 %s, 4, %s' % (v(c.V_G), v(c.V_L)))
        A('v_and_b32 %s, 15, %s' % (v(c.V_N), v(c.V_L)))
        A('v_lshlrev_b32 %s, 4, %s' % (v(c.V_L16), v(c.V_L)))

    def lds_addr_rows(self):
        A, c = self.A, self
        t0, t1 = c.V_T, c.V_T + 1
        A('v_lshrrev_b32 %s, 1, %s' % (v(t0), v(c.V_N)))
        A('v_xor_b32 %s, %s, %s' % (v(t0), v(t0), v(c.V_G)))
        A('v_lshlrev_b32 %s, 7, %s' % (v(t1), v(c.V_N)))
        A('s_lshl_b32 %s, %s, 14' % (s(c.S_T), s(c.S_WM)))
        A('v_add_u32 %s, %s, %s' % (v(t1), s(c.S_T), v(t1)))
        for q in range(2):
            A('v_xor_b32 %s, %d, %s' % (v(c.V_XA + q), 4 * q, v(t0)))
            A('v_lshl_add_u32 %s, %s, 4, %s' % (v(c.V_XA + q), v(c.V_XA + q), v(t1)))

    def lds_addr_frag(self):
        A, c = self.A, self
        A('s_lshl_b32 %s, %s, 14' % (s(c.S_T), s(c.S_WM)))
        A('v_add_u32 %s, %s, %s' % (v(c.V_XA), s(c.S_T), v(c.V_L16)))
        A('v_add_u32 %s, 0x400, %s' % (v(c.V_XA + 1), v(c.V_XA)))

    def lds_addr_w(self, glu=False, perm=False):
        A, c = self.A, self
        r, base, t, f = c.V_T, c.V_T + 1, c.V_T + 2, c.V_T + 3
        A('v_bfe_u32 %s, %s, 2, 2' % (v(r), v(c.V_L)))
        A('v_lshl_add_u32 %s, %s, %d, %s' % (v(base), v(c.V_G), 2 if perm else 3, v(r)))
        A('v_lshlrev_b32 %s, 8, %s' % (v(base), v(base)))
        A('v_and_b32 %s, 3, %s' % (v(t), v(c.V_L)))
        A('v_lshl_add_u32 %s, %s, 3, %s' % (v(base), v(t), v(base)))
        A('v_and_b32 %s, 1, %s' % (v(f), v(c.V_G)))
        A('v_lshl_or_b32 %s, %s, 2, %s' % (v(f), v(f), v(r)))
        if glu:
            A('s_lshl_b32 %s, %s, 2' % (s(c.S_T), s(c.S_WN)))
            A('v_xor_b32 %s, %s, %s' % (v(f), s(c.S_T), v(f)))
            A('v_add_u32 %s, 0x%x, %s' % (v(base), c.L_B, v(base)))
        else:
            A('s_lshl_b32 %s, %s, 13' % (s(c.S_T), s(c.S_WN)))
            A('s_add_u32 %s, %s, 0x%x' % (s(c.S_T), s(c.S_T), c.L_B))
            A('v_add_u32 %s, %s, %s' % (v(base), s(c.S_T), v(base)))
        for fn in range(8):
            A('v_xor_b32 %s, %d, %s' % (v(t), (fn & 3) if glu else fn, v(f)))
            A('v_lshl_add_u32 %s, %s, 5, %s' % (v(c.V_WA + fn), v(t), v(base)))
            if glu and fn >= 4:
                A('v_add_u32 %s, 0x2000, %s' % (v(c.V_WA + fn), v(c.V_WA + fn)))

    def dma_addr_rows(self, s_row0, lda_shift):
        A, c = self.A, self
        t0, t1, t2 = c.V_T, c.V_T + 1, c.V_T + 2
        A('s_lshl_b32 %s, %s, 6' % (s(c.S_T), s(c.S_WAVE)))
        A('s_add_u32 %s, %s, %s' % (s(c.S_T), s(c.S_T), s(s_row0)))
        A('v_lshrrev_b32 %s, 3, %s' % (v(t0), v(c.V_L)))
        A('v_add_u32 %s, %s, %s' % (v(t0), s(c.S_T), v(t0)))
        A('v_lshlrev_b32 %s, %d, %s' % (v(t0), lda_shift, v(t0)))
        A('v_and_b32 %s, 7, %s' % (v(t1), v(c.V_L)))
        A('v_xor_b32 %s, %s, %s' % (v(t1), v(t1), v(c.V_G)))
        for q in range(8):
            A('v_xor_b32 %s, %d, %s' % (v(t2), 4 * (q & 1), v(t1)))
            A('v_lshl_add_u32 %s, %s, 4, %s' % (v(c.V_DA + q), v(t2), v(t0)))
            k = ((8 * q) << lda_shift) - (q & 3) * 1024
            if k:
                A('v_add_u32 %s, 0x%x, %s' % (v(c.V_DA + q), k, v(c.V_DA + q)))
        A('s_mov_b32 %s, 128' % s(c.S_DA))

    def dma_addr_frag(self):
        A, c = self.A, self
        for q in range(8):
            A('s_add_u32 %s, %s, 0x%x' % (s(c.S_T), s(c.S_MA), (q >> 2) * 4096))
            A('v_add_u32 %s, %s, %s' % (v(c.V_DA + q), s(c.S_T), v(c.V_L16)))
        A('s_mov_b32 %s, 0x8000' % s(c.S_DA))

    def dma_addr_w(self, s_colbyte, ldb, perm=False):
        A, c = self.A, self
        t0, t1, t2 = c.V_T, c.V_T + 1, c.V_T + 2
        A('v_lshlrev_b32 %s, 1, %s' % (v(t2), v(c.V_G)))
        A('v_xor_b32 %s, %s, %s' % (v(t1), v(c.V_N), v(t2)))
        A('s_lshl_b32 %s, %s, 4' % (s(c.S_T), s(c.S_WN)))
        A('v_add_u32 %s, %s, %s' % (v(t0), s(c.S_T), v(c.V_G)))
        A('s_mov_b32 %s, %d' % (s(c.S_T), ldb))
        A('v_mul_lo_u32 %s, %s, %s' % (v(t0), v(t0), s(c.S_T)))
        A('v_add_u32 %s, %s, %s' % (v(t0), s(s_colbyte), v(t0)))
        for q in range(4):
            b = (q & 1) if perm else (q >> 1)
            A('v_xor_b32 %s, %d, %s' % (v(t2), 8 * b, v(t1)))
            A('v_lshl_add_u32 %s, %s, 4, %s' % (v(c.V_DB + q), v(t2), v(t0)))
            if q:
                A('v_add_u32 %s, 0x%x, %s' % (v(c.V_DB + q), 4 * q * ldb - q * 1024, v(c.V_DB + q)))
        A('s_mov_b32 %s, %d' % (s(c.S_DB), 32 * ldb))

    def dma_a(self, abuf):
        c = self
        out = []
        for q in range(8):
            pre = []
            if q % 4 == 0:
                pre = ['s_add_u32 m0, %s, 0x%x' % (s(c.S_MA), c.L_A + abuf * 32768 + (q >> 2) * 4096)]
            post = ['s_add_u32 %s, %s, %s' % (s(c.S_SA), s(c.S_SA), s(c.S_DA))] if q == 7 else []
            out.append((pre, 'buffer_load_dwordx4 %s, %s, %s offen offset:%d lds' % (v(c.V_DA + q), s(c.S_A, 4), s(c.S_SA), (q & 3) * 1024), post))
        return out

    def dma_b(self, bbuf):
        c = self
        out = []
        for q in range(4):
            pre = ['s_add_u32 m0, %s, 0x%x' % (s(c.S_MB), bbuf * 16384)] if q == 0 else []
            post = ['s_add_u32 %s, %s, %s' % (s(c.S_SB), s(c.S_SB), s(c.S_DB))] if q == 3 else []
            out.append((pre, 'buffer_load_dwordx4 %s, %s, %s offen offset:%d lds' % (v(c.V_DB + q), s(c.S_B, 4), s(c.S_SB), q * 1024), post))
        return out

    def reads(self, step, perm):
        c = self
        fb = step & 1
        half = step & 1
        abuf = (step >> 1) & 1
        bbuf = step & 3
        out = []
        for t in range(8):
            out.append('ds_read_b128 %s, %s offset:%d' % (v(c.xf(fb, t), 4), v(c.V_XA + half), abuf * 32768 + t * 2048))
            for hh in range(2):
                out.append('ds_read_b64_tr_b16 %s, %s offset:%d' % (v(c.wf(fb, t) + 2 * hh, 2), v(c.V_WA + t),
                                                                   bbuf * 16384 + hh * (4096 if perm else 1024)))
        return out

    def emit_dma(self, d):
        A = self.A
        for p in d[0]:
            A(p)
        A(d[1])
        for p in d[2]:
            A(p)

    def prologue(self):
        A, c = self.A, self
        for d in c.dma_b(0) + c.dma_a(0) + c.dma_b(1) + c.dma_b(2) + c.dma_a(1) + c.dma_b(3):
            c.emit_dma(d)
        A('s_waitcnt vmcnt(20)')
        A('s_barrier')

    def tile_start(self, perm):
        A, c = self.A, self
        for r in c.reads(0, perm):
            A(r)
        A('s_waitcnt vmcnt(16) lgkmcnt(0)')
        A('s_barrier')

    def iteration(self, ph, perm, first=False):
        A, c = self.A, self
        fb = ph & 1
        rd = c.reads((ph + 1) & 3, perm)
        dm = (c.dma_a(((ph + 3) >> 1) & 1) if ph & 1 else []) + c.dma_b(ph)
        fill = [[] for _ in range(64)]
        for k, r in enumerate(rd):
            fill[2 * k].append(r)
        for k, d in enumerate(dm):
            g = 3 + 4 * k
            if d[0]:
                fill[g - 2] = fill[g - 2] + d[0]
            fill[g] = fill[g] + [d[1]]
            if d[2]:
                fill[g + 2] = fill[g + 2] + d[2]
        k = 0
        order = [(fn, tm) for fn in range(8) for tm in range(8)]
        if 'snake' in c.opts:
            order = [(fn, tm if fn % 2 == 0 else 7 - tm) for fn in range(8) for tm in range(8)]
        if 'tmout' in c.opts:
            order = [(fn, tm) for tm in range(8) for fn in range(8)]
        if 'diag' in c.opts:
            order = [((q + r) % 8, r) for q in range(8) for r in range(8)]
        for fn, tm in order:
            ac = a(c.acc(fn >> 1, tm, fn & 1), 4)
            wx = (v(c.wf(fb, fn), 4), v(c.xf(fb, tm), 4))
            if c.swap:
                ac = a(((fn * 4 + (tm >> 1)) * 2 + (tm & 1)) * 4, 4)
                wx = wx[::-1]
            if k == 63:
                A('s_waitcnt vmcnt(%d) lgkmcnt(0)' % (16 if ph & 1 else 8))
                A('s_barrier')
            A('v_mfma_f32_16x16x32_bf16 %s, %s, %s, %s' % (ac, wx[0], wx[1], '0' if first else ac))
            for f in fill[k]:
                if 'nolds' in c.opts and f.startswith('ds_read') and not first:
                    continue
                if 'nodma' in c.opts and f.startswith('buffer_load'):
                    continue
                A(f)
            k += 1

    def main(self, perm, switch, early=None):
        A, c = self.A, self
        L1, L0, Lns = A.new_label('g1'), A.new_label('g0'), A.new_label('gns')
        c.iteration(0, perm, first=True)
        A('s_branch %s' % L1)
        A.label(L0)
        if early:
            Le = A.new_label('ge')
            A('s_cmp_lg_u32 %s, 2' % s(c.S_CNT))
            A('s_cbranch_scc1 %s' % Le)
            early()
            A.label(Le)
        A('s_cmp_lg_u32 %s, 1' % s(c.S_CNT))
        A('s_cbranch_scc1 %s' % Lns)
        switch()
        A.label(Lns)
        c.iteration(0, perm)
        A.label(L1)
        c.iteration(1, perm)
        c.iteration(2, perm)
        A('s_sub_u32 %s, %s, 1' % (s(c.S_CNT), s(c.S_CNT)))
        c.iteration(3, perm)
        A('s_cmp_lg_u32 %s, 0' % s(c.S_CNT))
        A('s_cbranch_scc1 %s' % L0)

    def null_switch(self):
        A, c = self.A, self
        A('s_mov_b32 %s, 0' % s(c.S_A + 2))
        A('s_mov_b32 %s, 0' % s(c.S_B + 2))

    def rd8(self, tmp, areg):
        for r in range(8):
            self.A('v_accvgpr_read_b32 %s, %s' % (v(tmp + r), a(areg + r)))

    def pk8(self, dst, tmp):
        for q in range(4):
            self.A('v_cvt_pk_bf16_f32 %s, %s, %s' % (v(dst + q), v(tmp + 2 * q), v(tmp + 2 * q + 1)))

    def epi_frag(self, s_base, off, mod='sc1', accf=None, tms=range(8)):
        A, c = self.A, self
        n = 0
        accf = accf or c.acc
        for tm in tms:
            A('s_add_u32 %s, %s, 0x%x' % (s(c.S_T), s(s_base), off(0, tm)))
            for fg in range(4):
                d = c.V_T + 16 + (n % 8) * 4
                t = c.V_T + (n % 2) * 8
                c.rd8(t, accf(fg, tm))
                c.pk8(d, t)
                A('buffer_store_dwordx4 %s, %s, %s, %s offen offset:%d %s' % (v(d, 4), v(c.V_L16), s(c.S_WS, 4), s(c.S_T), off(fg, tm) - off(0, tm), mod))
                n += 1

    def epi_glu(self, s_base, v_g):
        A, c = self.A, self
        A('s_mov_b32 %s, 0xbfb8aa3b' % s(c.S_T + 1))
        n = 0
        for tm in range(8):
            if tm % 2 == 0:
                A('s_add_u32 %s, %s, 0x%x' % (s(c.S_T), s(s_base), tm * 2048))
            for fg in range(2):
                b = c.V_T + (n % 2) * 24
                gt, up, e = b, b + 8, b + 16
                d = c.V_T + 48 + (n % 4) * 4
                c.rd8(gt, c.acc(fg, tm))
                for r in range(8):
                    A('v_mul_f32 %s, %s, %s' % (v(e + r), s(c.S_T + 1), v(gt + r)))
                for r in range(8):
                    A('v_exp_f32 %s, %s' % (v(e + r), v(e + r)))
                    A('v_accvgpr_read_b32 %s, %s' % (v(up + r), a(c.acc(fg + 2, tm) + r)))
                for r in range(0, 8, 2):
                    A('v_pk_add_f32 %s, %s, 1.0 op_sel_hi:[1,0]' % (v(e + r, 2), v(e + r, 2)))
                for r in range(8):
                    A('v_rcp_f32 %s, %s' % (v(e + r), v(e + r)))
                    if r % 2 == 1:
                        A('v_pk_mul_f32 %s, %s, %s' % (v(gt + r - 1, 2), v(gt + r - 1, 2), v(up + r - 1, 2)))
                for r in range(8):
                    A('v_mul_f32 %s, %s, %s' % (v(e + r), v(e + r), v(v_g + tm)))
                for r in range(0, 8, 2):
                    A('v_pk_mul_f32 %s, %s, %s' % (v(gt + r, 2), v(gt + r, 2), v(e + r, 2)))
                c.pk8(d, gt)
                A('buffer_store_dwordx4 %s, %s, %s, %s offen offset:%d sc1' % (v(d, 4), v(c.V_L16), s(c.S_WS, 4), s(c.S_T), (tm & 1) * 2048 + fg * 1024))
                n += 1
```

```python
from asm import *
from layout import *
from gemm import Gemm, srd
from gside import poll_dword, signal, POLL_MAX
from attn2 import Attn2, weave

T_K, T_V, T_Q, T_QA, T_H, T_NONE = range(6)


class VM:
    def __init__(self, A):
        self.A, self.q = A, []

    def issue(self, tag, lst):
        for t in lst:
            self.A(t)
            if t.startswith('buffer_'):
                self.q.append(tag)

    def wait(self, tag):
        last = max(k for k, e in enumerate(self.q) if e == tag)
        self.A('s_waitcnt vmcnt(%d)' % min(63, len(self.q) - 1 - last))


class GSide2:
    S_DB = 48
    S_SEL, S_PH = 46, 47
    P_X, P_WQ, P_WG, P_WU, P_WD, P_WO = 52, 54, 56, 58, 60, 62
    P_WK, P_WV = P_WD, P_WO
    S_XG, S_J, S_SLOT = 64, 65, 66
    S_TY, S_RB, S_CB = 67, 68, 69
    S_NTY, S_NRB, S_NCB = 70, 71, 72
    S_EB = 73
    S_U = 74
    S_OUT = 84
    S_E = 98
    V_G8 = 112
    V_PG = 127
    V_ST = 100

    table = [[(0, 0, 22, 10), (0, 0, 24, 8), (0, 0, 24, 8), (16, 4, 0, 0)],
             [(0, 0, 14, 8), (0, 0, 14, 10), (0, 0, 16, 8), (12, 4, 0, 0)],
             [(0, 20, 0, 3), (0, 16, 0, 7), (0, 16, 0, 8), (0, 12, 0, 0)],
             [(20, 8, 3, 11), (16, 12, 7, 7), (16, 12, 8, 8), (20, 8, 0, 0)]]

    def __init__(self, A, tag='', diag=False, m=2, late=False, claims=False, eo=0):
        self.eo = eo
        self.late = late
        self.claims = claims
        self.A = A
        self.c = Gemm(A)
        self.at = Attn2(A, Gemm.V_L, Gemm.V_L16, Gemm.S_WS)
        self.tag = tag
        self.diag = diag
        self.m = m

    def decode(self):
        A, g = self.A, self
        U = g.S_U
        L = [A.new_label('d%d%s' % (k, g.tag)) for k in range(8)]
        Lkv, Lq, Ld, Ln = [A.new_label(n + g.tag) for n in ('dkv', 'dq', 'dd', 'dn')]
        j, xg = s(g.S_J), s(g.S_XG)
        A('s_cmp_lg_u32 %s, 0' % s(g.S_SLOT))
        A('s_cbranch_scc1 %s' % L[1])
        A('s_and_b32 %s, %s, 3' % (s(g.S_NRB), j))
        A('s_add_u32 %s, %s, 1' % (s(g.S_NRB), s(g.S_NRB)))
        A('s_lshr_b32 %s, %s, 2' % (s(U), j))
        A.label(Lkv)
        A('s_lshl_b32 %s, %s, 3' % (s(g.S_NCB), xg))
        A('s_add_u32 %s, %s, %s' % (s(g.S_NCB), s(g.S_NCB), s(U)))
        A('s_lshr_b32 %s, %s, 4' % (s(g.S_NTY), s(g.S_NCB)))
        A('s_and_b32 %s, %s, 15' % (s(g.S_NCB), s(g.S_NCB)))
        A('s_branch %s' % Ld)
        A.label(L[1])
        A('s_cmp_lg_u32 %s, 1' % s(g.S_SLOT))
        A('s_cbranch_scc1 %s' % L[2])
        A('s_mul_i32 %s, %s, 43' % (s(U), j))
        A('s_lshr_b32 %s, %s, 7' % (s(U), s(U)))
        A('s_mul_i32 %s, %s, 3' % (s(U + 1), s(U)))
        A('s_sub_u32 %s, %s, %s' % (s(g.S_NRB), j, s(U + 1)))
        A('s_add_u32 %s, %s, 5' % (s(g.S_NRB), s(g.S_NRB)))
        A('s_cmp_lt_u32 %s, 24' % j)
        A('s_cbranch_scc1 %s' % Lkv)
        A('s_mov_b32 %s, %s' % (s(g.S_NCB), xg))
        A('s_branch %s' % L[6])
        A.label(L[2])
        A('s_lshr_b32 %s, %s, 3' % (s(U), j))
        A('s_cmp_lg_u32 %s, 2' % s(g.S_SLOT))
        A('s_cbranch_scc1 %s' % L[3])
        A('s_lshl_b32 %s, %s, 2' % (s(g.S_NCB), xg))
        A('s_add_u32 %s, %s, 4' % (s(U), s(U)))
        A('s_add_u32 %s, %s, %s' % (s(g.S_NCB), s(g.S_NCB), s(U)))
        A('s_branch %s' % L[6])
        A.label(L[3])
        A('s_cmp_lg_u32 %s, 3' % s(g.S_SLOT))
        A('s_cbranch_scc1 %s' % L[4])
        A('s_bitcmp1_b32 %s, 0' % xg)
        A('s_cbranch_scc1 %s' % Lq)
        A('s_lshl_b32 %s, %s, 1' % (s(g.S_NCB), xg))
        A('s_add_u32 %s, %s, 20' % (s(U), s(U)))
        A('s_add_u32 %s, %s, %s' % (s(g.S_NCB), s(g.S_NCB), s(U)))
        A.label(L[6])
        A('s_and_b32 %s, %s, 7' % (s(g.S_NRB), j))
        A('s_mov_b32 %s, %d' % (s(g.S_NTY), T_H))
        A('s_branch %s' % Ld)
        A.label(Lq)
        A('s_lshr_b32 %s, %s, 1' % (s(g.S_NCB), xg))
        A('s_lshl_b32 %s, %s, 3' % (s(g.S_NCB), s(g.S_NCB)))
        A('s_lshr_b32 %s, %s, 2' % (s(U), j))
        A('s_add_u32 %s, %s, %s' % (s(g.S_NCB), s(g.S_NCB), s(U)))
        A('s_and_b32 %s, %s, 3' % (s(g.S_NRB), j))
        A('s_mov_b32 %s, %d' % (s(g.S_NTY), T_QA))
        A('s_branch %s' % Ld)
        A.label(L[4])
        A('s_cmp_lg_u32 %s, 4' % s(g.S_SLOT))
        A('s_cbranch_scc1 %s' % Ln)
        A('s_cmp_ge_u32 %s, 2' % xg)
        A('s_cbranch_scc1 %s' % Ln)
        A('s_and_b32 %s, %s, 15' % (s(g.S_NCB), j))
        A('s_lshr_b32 %s, %s, 4' % (s(U), j))
        A('s_lshl_b32 %s, %s, 1' % (s(g.S_NRB), xg))
        A('s_add_u32 %s, %s, 4' % (s(U), s(U)))
        A('s_add_u32 %s, %s, %s' % (s(g.S_NRB), s(g.S_NRB), s(U)))
        A('s_cmp_eq_u32 %s, 0' % xg)
        A('s_cselect_b32 %s, %d, %d' % (s(g.S_NTY), T_QA, T_Q))
        A('s_branch %s' % Ld)
        A.label(Ln)
        A('s_mov_b32 %s, %d' % (s(g.S_NTY), T_NONE))
        A.label(Ld)

    def target(self):
        A, g, c = self.A, self, self.c
        U = g.S_U
        Lh, Lu, Ld, Lw, Lv = [A.new_label(n + g.tag) for n in ('th', 'tu', 'td', 'tw', 'tv')]
        srd(A, c.S_A, g.P_X, 4 * MB)
        A('s_lshl_b32 %s, %s, 8' % (s(U), s(g.S_NRB)))
        c.dma_addr_rows(U, 11)
        A('s_mov_b32 %s, 0' % s(c.S_SA))
        A('s_mov_b32 %s, 0' % s(c.S_SB))
        A('s_cmp_eq_u32 %s, %d' % (s(g.S_NTY), T_H))
        A('s_cbranch_scc1 %s' % Lh)
        srd(A, c.S_B, g.P_WQ, 8 * MB)
        A('s_cmp_ge_u32 %s, %d' % (s(g.S_NTY), T_Q))
        A('s_cbranch_scc1 %s' % Lw)
        srd(A, c.S_B, g.P_WK, 8 * MB)
        A('s_cmp_eq_u32 %s, %d' % (s(g.S_NTY), T_K))
        A('s_cbranch_scc1 %s' % Lw)
        srd(A, c.S_B, g.P_WV, 8 * MB)
        A.label(Lw)
        A('s_lshl_b32 %s, %s, 9' % (s(U), s(g.S_NCB)))
        A('s_lshl_b32 %s, %s, 8' % (s(U + 1), s(c.S_WM)))
        A('s_add_u32 %s, %s, %s' % (s(U), s(U), s(U + 1)))
        c.dma_addr_w(U, 8192)
        A('s_branch %s' % Ld)
        A.label(Lh)
        srd(A, c.S_B, g.P_WG, 7 * MB)
        A('s_cmp_eq_u32 %s, 0' % s(c.S_WM))
        A('s_cbranch_scc1 %s' % Lu)
        srd(A, c.S_B, g.P_WU, 7 * MB)
        A.label(Lu)
        A('s_lshl_b32 %s, %s, 8' % (s(U), s(g.S_NCB)))
        c.dma_addr_w(U, 7168)
        A.label(Ld)

    def stamp(self):
        if not self.diag:
            return
        A, g, c = self.A, self, self.c
        T = c.S_T
        A('s_memrealtime %s' % s(T, 2))
        A('s_lshl_b32 %s, %s, 5' % (s(T + 2), s(g.S_XG)))
        A('s_add_u32 %s, %s, %s' % (s(T + 2), s(T + 2), s(g.S_J)))
        A('s_lshl_b32 %s, %s, 4' % (s(T + 2), s(T + 2)))
        A('s_add_u32 %s, %s, %s' % (s(T + 2), s(T + 2), s(97)))
        A('s_lshl_b32 %s, %s, 2' % (s(T + 2), s(T + 2)))
        A('s_add_u32 %s, %s, 0x%x' % (s(T + 2), s(T + 2), DIAG + 0x8000))
        A('s_add_u32 s97, s97, 1')
        A('s_waitcnt lgkmcnt(0)')
        A('v_mov_b32 %s, %s' % (v(c.V_T), s(T)))
        A('v_mov_b32 %s, 0' % v(c.V_T + 1))
        A('s_mov_b64 exec, 1')
        A('buffer_store_dword %s, %s, %s, %s offen' % (v(c.V_T), v(c.V_T + 1), s(c.S_WS, 4), s(T + 2)))
        A('s_mov_b64 exec, -1')

    def epi_attn(self, L_exit, late=False):
        A, g, c, at = self.A, self, self.c, self.at
        U, E, T = g.S_U, g.S_E, c.S_T
        H, X, JQ, S0 = U, U + 1, U + 2, U + 6
        n = 2 if late else 4
        if late:
            A('s_mov_b32 %s, %s' % (s(H), s(g.S_CB)))
            A('s_lshl_b32 %s, %s, 1' % (s(S0), s(c.S_WAVE)))
        else:
            A('s_lshl_b32 %s, %s, 1' % (s(H), s(g.S_CB)))
            A('s_add_u32 %s, %s, %s' % (s(H), s(H), s(c.S_WN)))
            A('s_lshl_b32 %s, %s, 2' % (s(S0), s(c.S_WM)))
        A('s_lshr_b32 %s, %s, 3' % (s(X), s(H)))
        A('s_and_b32 %s, %s, 7' % (s(JQ), s(H)))
        A('s_lshl_b32 %s, %s, 2' % (s(JQ), s(JQ)))
        t = c.V_T
        A('v_and_b32 %s, 3, %s' % (v(t), v(c.V_L)))
        A('v_add_u32 %s, %s, %s' % (v(t), s(JQ), v(t)))
        A('v_lshrrev_b32 %s, %s, %s' % (v(t + 1), v(t), s(g.S_SEL)))
        A('v_and_b32 %s, 1, %s' % (v(t + 1), v(t + 1)))
        A('v_lshlrev_b32 %s, 20, %s' % (v(t), v(t)))
        A('v_lshl_add_u32 %s, %s, 13, %s' % (v(t), v(t + 1), v(t)))
        A('s_lshl_b32 %s, %s, 2' % (s(U + 3), s(X)))
        A('s_add_u32 %s, %s, 0x%x' % (s(U + 3), s(U + 3), JB + 0x8000))
        A('s_lshl_b32 %s, %s, 3' % (s(U + 4), s(g.S_RB)))
        A('s_add_u32 %s, %s, 8' % (s(U + 4), s(U + 4)))
        A('s_mov_b32 %s, 0' % s(U + 5))
        Lp = A.new_label('pg' + g.tag)
        A.label(Lp)
        A('buffer_load_dword %s, %s, %s, %s offen sc1' % (v(t + 1), v(t), s(c.S_WS, 4), s(U + 3)))
        A('s_add_u32 %s, %s, 1' % (s(U + 5), s(U + 5)))
        A('s_cmp_ge_u32 %s, 0x%x' % (s(U + 5), POLL_MAX))
        A('s_cbranch_scc1 %s' % L_exit)
        A('s_waitcnt vmcnt(0)')
        A('v_cmp_gt_u32 vcc, %s, %s' % (s(U + 4), v(t + 1)))
        A('s_cbranch_vccnz %s' % Lp)
        A('s_lshl_b32 %s, %s, 3' % (s(U + 3), s(X)))
        A('s_add_u32 %s, %s, %s' % (s(U + 3), s(U + 3), s(g.S_RB)))
        A('s_lshl_b32 %s, %s, 4' % (s(U + 3), s(U + 3)))
        A('s_add_u32 %s, %s, %s' % (s(U + 3), s(U + 3), s(S0)))
        A('s_lshl_b32 %s, %s, 10' % (s(U + 3), s(U + 3)))
        A('s_add_u32 %s, %s, 0x%x' % (s(U + 3), s(U + 3), JB + 0x10000))
        for q in range(4):
            A('v_readlane_b32 %s, %s, %d' % (s(E + q), v(t), q))
        for q in range(4):
            A('s_add_u32 %s, %s, %s' % (s(E + q), s(E + q), s(U + 3)))
        OB = U + 4
        A('s_lshl_b32 %s, %s, 5' % (s(OB), s(g.S_RB)))
        A('s_add_u32 %s, %s, %s' % (s(OB), s(OB), s(H)))
        A('s_lshl_b32 %s, %s, 4' % (s(OB), s(OB)))
        A('s_add_u32 %s, %s, %s' % (s(OB), s(OB), s(S0)))
        A('s_lshl_b32 %s, %s, 12' % (s(OB), s(OB)))
        A('s_add_u32 %s, %s, 0x%x' % (s(OB), s(OB), OI))
        vm = VM(A)

        def kpart(i):
            vm.issue(('k', i), ['s_add_u32 %s, %s, 0x%x' % (s(T), s(g.S_EB), KX + i * 0x40000), 's_add_u32 %s, %s, 0x1000' % (s(T + 1), s(T))]
                     + at.ld_km(E, i * 1024) + at.ld8(at.V_K, T, T + 1))

        def vpart(i):
            vm.issue(('v', i), ['s_add_u32 %s, %s, 0x%x' % (s(T), s(g.S_EB), VT + i * 0x40000), 's_add_u32 %s, %s, 0x1000' % (s(T + 1), s(T))]
                     + at.ld8(at.V_VT, T, T + 1) + at.ld_vm(E, i * 1024))

        def qconv(i):
            for tq in range(2):
                for eg in range(4):
                    tt = at.V_O + ((tq * 4 + eg) & 3) * 8
                    c.rd8(tt, c.acc(eg, 2 * i + tq))
                    c.pk8(at.V_Q + (tq * 4 + eg) * 4, tt)

        def qpart(i):
            if late:
                vm.issue(('k', i), ['s_add_u32 %s, %s, 0x%x' % (s(T), s(g.S_EB), QX + i * 0x40000), 's_add_u32 %s, %s, 0x1000' % (s(T + 1), s(T))]
                         + at.ld8(at.V_Q, T, T + 1))
        qpart(0)
        kpart(0)
        vpart(0)
        for i in range(n):
            if not late:
                qconv(i)
            vm.wait(('k', i))
            vm.issue(None, at.scores())
            if i < n - 1:
                qpart(i + 1)
                kpart(i + 1)
            vm.issue(None, weave(at.softmax(0), at.softmax(1)))
            A('s_add_u32 %s, %s, 0x%x' % (s(T + 2), s(OB), i * 4096))
            A('s_add_u32 %s, %s, 0x%x' % (s(T + 3), s(OB), i * 4096 + 0x8000))
            vm.wait(('v', i))
            for tq in range(2):
                vm.issue(None, at.pv(tq))
                if tq and i < n - 1:
                    vpart(i + 1)
                vm.issue('s', at.scale(g.V_G8 + 2 * i + tq) + at.stores(T + 2, T + 3, tq * 2048, 'sc1'))

    def emit(self, L_exit, L_done):
        A, g, c = self.A, self, self.c
        U = g.S_U
        for p, k in ((g.P_X, K_X), (g.P_WQ, K_WQ), (g.P_WG, K_WG), (g.P_WU, K_WU), (g.P_WK, K_WK), (g.P_WV, K_WV), (U, K_OUT)):
            A('s_load_dwordx2 %s, s[0:1], %d' % (s(p, 2), k))
        srd(A, g.S_DB, 4, 256)
        c.setup()
        g.at.setup()
        A('s_mov_b32 s97, 0')
        A('s_mov_b32 %s, 0' % s(g.S_SEL))
        A('s_waitcnt lgkmcnt(0)')
        srd(A, g.S_OUT, U, 4 * MB)
        A('s_mov_b32 %s, 0' % s(g.S_SLOT))
        g.decode()
        g.target()
        g.stamp()
        c.prologue()
        Lj, Lh, Lm, Lv, Leh, Lea, Lsg, Lkv, Lq, Lns = [A.new_label(n + g.tag) for n in ('job', 'jh', 'jm', 'jv', 'eh', 'ea', 'js', 'kv', 'eq', 'ns')]
        A.label(Lj)
        A('s_mov_b32 %s, %s' % (s(g.S_TY), s(g.S_NTY)))
        A('s_mov_b32 %s, %s' % (s(g.S_RB), s(g.S_NRB)))
        A('s_mov_b32 %s, %s' % (s(g.S_CB), s(g.S_NCB)))
        A('s_add_u32 %s, %s, 1' % (s(g.S_SLOT), s(g.S_SLOT)))
        A('s_mov_b32 %s, 8' % s(c.S_CNT))
        c.lds_addr_rows()
        A('s_cmp_eq_u32 %s, %d' % (s(g.S_TY), T_H))
        A('s_cbranch_scc1 %s' % Lh)
        c.lds_addr_w()
        A('s_lshl_b32 %s, %s, 1' % (s(U), s(g.S_RB)))
        A('s_add_u32 %s, %s, %s' % (s(U), s(U), s(c.S_WM)))
        A('s_lshl_b32 %s, %s, 6' % (s(U), s(U)))
        A('s_add_u32 %s, %s, %s' % (s(U), s(U), s(g.S_CB)))
        A('s_lshl_b32 %s, %s, 1' % (s(U), s(U)))
        A('s_add_u32 %s, %s, %s' % (s(U), s(U), s(c.S_WN)))
        A('s_lshl_b32 %s, %s, 13' % (s(g.S_EB), s(U)))
        A('s_branch %s' % Lm)
        A.label(Lh)
        c.lds_addr_w(glu=True)
        A('s_mul_i32 %s, %s, 28' % (s(U), s(g.S_RB)))
        A('s_add_u32 %s, %s, %s' % (s(U), s(U), s(g.S_CB)))
        A('s_lshl_b32 %s, %s, 1' % (s(U), s(U)))
        A('s_add_u32 %s, %s, %s' % (s(U), s(U), s(c.S_WN)))
        A('s_lshl_b32 %s, %s, 1' % (s(U), s(U)))
        A('s_add_u32 %s, %s, %s' % (s(U), s(U), s(c.S_WM)))
        A('s_lshl_b32 %s, %s, 14' % (s(U), s(U)))
        A('s_add_u32 %s, %s, 0x%x' % (s(g.S_EB), s(U), HB))
        A.label(Lm)
        c.tile_start(False)

        def early():
            A('v_mov_b32 %s, %d' % (v(g.V_ST + 2), D_START))
            A('buffer_load_dwordx2 %s, %s, %s, 0 offen sc1' % (v(g.V_ST, 2), v(g.V_ST + 2), s(g.S_DB, 4)))

        def switch():
            Ln, Ls = A.new_label('sn' + g.tag), A.new_label('ss' + g.tag)
            if not c.swap:
                Lg = A.new_label('sq' + g.tag)
                A('s_cmp_lt_u32 %s, %d' % (s(g.S_TY), T_QA))
                A('s_cbranch_scc1 %s' % Lg)
                Lp, Lk = A.new_label('ps' + g.tag), A.new_label('pk' + g.tag)
                A('s_mov_b32 %s, 0' % s(U + 3))
                A.label(Lp)
                A('v_readfirstlane_b32 %s, %s ;poll' % (s(U + 2), v(g.V_ST)))
                A('v_readfirstlane_b32 %s, %s ;poll' % (s(g.S_SEL), v(g.V_ST + 1)))
                A('s_cmp_ge_u32 %s, 128' % s(U + 2))
                A('s_cbranch_scc1 %s' % Lk)
                early()
                A('s_add_u32 %s, %s, 1' % (s(U + 3), s(U + 3)))
                A('s_cmp_ge_u32 %s, 0x%x' % (s(U + 3), POLL_MAX))
                A('s_cbranch_scc1 %s' % L_exit)
                A('s_waitcnt vmcnt(0)')
                A('s_branch %s' % Lp)
                A.label(Lk)
                A('s_lshl_b32 %s, %s, 1' % (s(U), s(g.S_RB)))
                A('s_add_u32 %s, %s, %s' % (s(U), s(U), s(c.S_WM)))
                A('s_lshl_b32 %s, %s, 9' % (s(U), s(U)))
                A('s_add_u32 %s, %s, 0x%x' % (s(U), s(U), GV))
                A('v_lshlrev_b32 %s, 2, %s' % (v(c.V_T), v(c.V_N)))
                for tm in range(8):
                    A('buffer_load_dword %s, %s, %s, %s offen offset:%d sc1' % (v(g.V_G8 + tm), v(c.V_T), s(c.S_WS, 4), s(U), tm * 64))
                A.label(Lg)
            g.decode()
            A('s_cmp_eq_u32 %s, %d' % (s(g.S_NTY), T_NONE))
            A('s_cbranch_scc1 %s' % Ln)
            g.target()
            A('s_branch %s' % Ls)
            A.label(Ln)
            c.null_switch()
            A.label(Ls)
        A('s_cmp_eq_u32 %s, %d' % (s(g.S_TY), T_V))
        A('s_cbranch_scc1 %s' % Lv)
        c.main(False, switch, early)
        A('s_cmp_eq_u32 %s, %d' % (s(g.S_TY), T_H))
        A('s_cbranch_scc1 %s' % Leh)
        A('s_cmp_eq_u32 %s, %d' % (s(g.S_TY), T_QA))
        A('s_cbranch_scc1 %s' % Lea)
        A('s_cmp_eq_u32 %s, %d' % (s(g.S_TY), T_K))
        A('s_mov_b32 %s, 0x%x' % (s(U), QX))
        A('s_cselect_b32 %s, 0x%x, %s' % (s(U), KX, s(U)))
        A('s_add_u32 %s, %s, %s' % (s(U), s(U), s(g.S_EB)))
        c.epi_frag(U, lambda fg, tm: (tm >> 1) * 32 * 8192 + (tm & 1) * 4096 + fg * 1024)
        A('s_branch %s' % Lkv)
        A.label(Lea)
        g.epi_attn(L_exit)
        A('s_branch %s' % Lkv)
        A.label(Lv)
        c.swap = True
        c.main(False, switch)
        c.swap = False
        A('s_add_u32 %s, %s, 0x%x' % (s(U), s(g.S_EB), VT))
        c.epi_frag(U, lambda f, o: (o >> 1) * 32 * 8192 + (o & 1) * 4096 + f * 1024, accf=lambda f, o: ((4 * (o & 1) + f) * 4 + (o >> 1)) * 8)
        A.label(Lkv)
        A('s_lshl_b32 %s, %s, 2' % (s(U), s(g.S_RB)))
        A('s_add_u32 %s, %s, %d' % (s(U), s(U), D_KV))
        A('s_cmp_ge_u32 %s, %d' % (s(g.S_TY), T_Q))
        A('s_cselect_b32 %s, 0x100, 1' % s(U + 1))
        A('s_branch %s' % Lsg)
        A.label(Leh)
        for tm in range(8):
            A('v_sub_f32 %s, 1.0, %s' % (v(g.V_G8 + tm), v(g.V_G8 + tm)))
        c.epi_glu(g.S_EB, g.V_G8)
        A('s_lshl_b32 %s, %s, 2' % (s(U), s(g.S_RB)))
        A('s_add_u32 %s, %s, %d' % (s(U), s(U), D_H))
        A('s_cmp_lt_u32 %s, 20' % s(g.S_CB))
        A('s_cselect_b32 %s, 1, 0x100' % s(U + 1))
        A.label(Lsg)
        signal(A, c, g.S_DB, U, U + 1, g.tag)
        g.stamp()
        A('s_cmp_lg_u32 %s, %d' % (s(g.S_NTY), T_NONE))
        A('s_cbranch_scc1 %s' % Lj)
        g.final(L_exit, L_done)

    def final(self, L_exit, L_done):
        A, g, c = self.A, self, self.c
        U, T = g.S_U, c.S_T
        A('s_load_dwordx2 %s, s[0:1], %d' % (s(g.P_WD, 2), K_WD))
        A('s_load_dwordx2 %s, s[0:1], %d' % (s(g.P_WO, 2), K_WO))
        A('s_and_b32 %s, %s, 3' % (s(g.S_RB), s(g.S_J)))
        A('s_lshr_b32 %s, %s, 4' % (s(U), s(g.S_J)))
        A('s_lshl_b32 %s, %s, 2' % (s(U), s(U)))
        A('s_add_u32 %s, %s, %s' % (s(g.S_RB), s(g.S_RB), s(U)))
        A('s_bfe_u32 %s, %s, 0x20002' % (s(g.S_CB), s(g.S_J)))
        A('s_cmp_lt_u32 %s, 6' % s(g.S_RB))
        A('s_cselect_b32 %s, 0, 1' % s(g.S_TY))
        RG = g.S_NCB
        A('s_max_u32 %s, %s, 3' % (s(U), s(g.S_RB)))
        A('s_min_u32 %s, %s, 6' % (s(U), s(U)))
        A('s_lshl_b32 %s, %s, 2' % (s(U + 1), s(g.S_XG)))
        A('s_add_u32 %s, %s, %s' % (s(U), s(U), s(U + 1)))
        for x in range(4):
            for k in range(4):
                f0, nf, o0, no = g.table[x][k]
                assert nf != 1 and (nf or no > 1)
                w = f0 | nf << 8 | o0 << 16 | no << 24
                if x + k == 0:
                    A('s_mov_b32 %s, 0x%x' % (s(RG), w))
                else:
                    A('s_cmp_eq_u32 %s, %d' % (s(U), x * 4 + k + 3))
                    A('s_cselect_b32 %s, 0x%x, %s' % (s(RG), w, s(RG)))
        A('s_lshr_b32 %s, %s, 24' % (s(U), s(RG)))
        A('s_cmp_eq_u32 %s, 0' % s(U))
        A('s_cselect_b32 %s, 1, 0' % s(g.S_PH))
        A('s_bfe_u32 %s, %s, 0x80008' % (s(c.S_CNT), s(RG)))
        A('s_and_b32 %s, %s, 0xff' % (s(U), s(RG)))
        A('s_add_u32 %s, %s, %s' % (s(U + 4), s(U), s(c.S_CNT)))
        A('s_cmp_gt_u32 %s, 20' % s(U + 4))
        A('s_cselect_b32 %s, 0x800, 0' % s(U + 4))
        A('s_lshl_b32 %s, %s, 18' % (s(c.S_SB), s(U)))
        A('s_mul_i32 %s, %s, 28' % (s(U + 1), s(g.S_RB)))
        A('s_add_u32 %s, %s, %s' % (s(U + 1), s(U + 1), s(U)))
        A('s_lshl_b32 %s, %s, 16' % (s(U + 1), s(U + 1)))
        A('s_add_u32 %s, %s, 0x%x' % (s(c.S_SA), s(U + 1), HB))
        A('s_waitcnt lgkmcnt(0)')
        srd(A, c.S_A, 6, WS_BYTES)
        srd(A, c.S_B, g.P_WD, 7 * MB)
        c.lds_addr_frag()
        c.lds_addr_w(perm=True)
        c.dma_addr_frag()
        A('s_lshl_b32 %s, %s, 9' % (s(U), s(g.S_CB)))
        A('s_lshl_b32 %s, %s, 8' % (s(U + 1), s(c.S_WM)))
        A('s_add_u32 %s, %s, %s' % (s(U), s(U), s(U + 1)))
        c.dma_addr_w(U, 2048, perm=True)
        A('s_lshl_b32 %s, %s, 2' % (s(U), s(g.S_RB)))
        A('s_add_u32 %s, %s, %d' % (s(U + 1), s(U), D_H))
        A('v_mov_b32 %s, %s' % (v(c.V_T + 2), s(U + 1)))
        A('s_add_u32 %s, %s, %d' % (s(U + 1), s(U), D_KV))
        A('v_mov_b32 %s, %s' % (v(c.V_T + 4), s(U + 1)))
        A('v_mov_b32 %s, 0' % v(c.V_T + 5))

        def second(extra):
            Lk = A.new_label('fk' + g.tag)
            A('v_readfirstlane_b32 %s, %s ;poll' % (s(U + 2), v(c.V_T + 5)))
            A('s_cmp_ge_u32 %s, 0x1000' % s(U + 2))
            A('s_cbranch_scc1 %s' % Lk)
            poll_dword(A, g.S_DB, c.V_T + 4, c.V_T + 5, U + 2, U + 3, lambda st: A('s_cmp_ge_u32 %s, 0x1000' % s(st)), L_exit, g.tag)
            A.label(Lk)
            A('s_mov_b32 %s, 1' % s(g.S_PH))
            A('s_lshr_b32 %s, %s, 24' % (s(c.S_CNT), s(RG)))
            if extra:
                A('s_add_u32 %s, %s, 1' % (s(c.S_CNT), s(c.S_CNT)))
            srd(A, c.S_B, g.P_WO, 8 * MB)
            A('s_bfe_u32 %s, %s, 0x80010' % (s(U + 1), s(RG)))
            A('s_lshl_b32 %s, %s, 18' % (s(c.S_SB), s(U + 1)))
            A('s_lshl_b32 %s, %s, 5' % (s(U), s(g.S_RB)))
            A('s_add_u32 %s, %s, %s' % (s(U), s(U), s(U + 1)))
            A('s_lshl_b32 %s, %s, 16' % (s(U), s(U)))
            A('s_add_u32 %s, %s, 0x%x' % (s(c.S_SA), s(U), OI))

        def hc(st):
            A('s_cmp_ge_u32 %s, %s' % (s(st), s(U + 4)))
            A('s_cselect_b32 %s, 0xff, 0' % s(U + 5))
            A('s_and_b32 %s, %s, %s' % (s(st), s(st), s(U + 5)))
            A('s_cmp_ge_u32 %s, 20' % s(st))
        Lo, Lg = A.new_label('fo' + g.tag), A.new_label('fg' + g.tag)
        A('s_cmp_eq_u32 %s, 0' % s(c.S_CNT))
        A('s_cbranch_scc1 %s' % Lo)
        poll_dword(A, g.S_DB, c.V_T + 2, c.V_T + 3, U + 2, U + 3, hc, L_exit, g.tag)
        A('s_branch %s' % Lg)
        A.label(Lo)
        second(False)
        A.label(Lg)
        g.stamp()
        c.prologue()
        c.tile_start(True)

        def early():
            A('buffer_load_dword %s, %s, %s, 0 offen sc1' % (v(c.V_T + 5), v(c.V_T + 4), s(g.S_DB, 4)))

        def switch():
            Ln, Ls = A.new_label('fn' + g.tag), A.new_label('fs' + g.tag)
            A('s_cmp_lg_u32 %s, 0' % s(g.S_PH))
            A('s_cbranch_scc1 %s' % Ln)
            second(True)
            A('s_branch %s' % Ls)
            A.label(Ln)
            c.null_switch()
            A.label(Ls)
        c.main(True, switch, early)
        g.stamp()
        A('s_lshl_b32 %s, %s, 1' % (s(U), s(g.S_RB)))
        A('s_add_u32 %s, %s, %s' % (s(U), s(U), s(c.S_WM)))
        A('s_lshl_b32 %s, %s, 18' % (s(U + 6), s(U)))
        A('s_lshl_b32 %s, %s, 5' % (s(U), s(U)))
        A('s_add_u32 %s, %s, %s' % (s(U), s(U), s(g.S_CB)))
        A('s_lshl_b32 %s, %s, 1' % (s(U), s(U)))
        A('s_add_u32 %s, %s, %s' % (s(U), s(U), s(c.S_WN)))
        A('s_lshl_b32 %s, %s, 12' % (s(g.S_EB), s(U)))
        A('s_and_b32 %s, %s, 7' % (s(U), s(U)))
        A('s_lshl_b32 %s, %s, 8' % (s(U), s(U)))
        A('s_add_u32 %s, %s, %s' % (s(U + 6), s(U + 6), s(U)))
        A('s_lshl_b32 %s, %s, 22' % (s(U), s(g.S_XG)))
        A('s_add_u32 %s, %s, %s' % (s(U), s(U), s(g.S_EB)))
        A('s_add_u32 %s, %s, 0x%x' % (s(U), s(U), PP))
        KEEP, LD = 128, 160 + 32
        for tp in range(4):
            Lk, Le = A.new_label('kp' + g.tag), A.new_label('ke' + g.tag)
            A('s_cmp_eq_u32 %s, %d' % (s(g.S_XG), tp))
            A('s_cbranch_scc1 %s' % Lk)
            c.epi_frag(U, lambda fg, tm: tm * 32768 + fg * 1024, tms=(2 * tp, 2 * tp + 1))
            A('s_branch %s' % Le)
            A.label(Lk)
            for q in range(2):
                for fg in range(4):
                    c.rd8(KEEP + (q * 4 + fg) * 8, c.acc(fg, 2 * tp + q))
            A.label(Le)
        A('s_lshl_b32 %s, %s, 2' % (s(U + 5), s(g.S_J)))
        A('s_add_u32 %s, %s, %d' % (s(U + 5), s(U + 5), D_FT))
        A('s_mov_b32 %s, 1' % s(U + 1))
        signal(A, c, g.S_DB, U + 5, U + 1, g.tag)

        def late():
            A('s_lshl_b32 %s, %s, 2' % (s(U), s(g.S_XG)))
            A('s_add_u32 %s, %s, %s' % (s(U), s(U), s(g.S_CB)))
            A('s_lshl_b32 %s, %s, 1' % (s(U), s(U)))
            A('s_and_b32 %s, %s, 1' % (s(U + 1), s(g.S_J)))
            A('s_add_u32 %s, %s, %s' % (s(g.S_CB), s(U), s(U + 1)))
            A('s_mov_b32 %s, 6' % s(g.S_RB))
            A('s_lshl_b32 %s, %s, 6' % (s(U), s(c.S_WAVE)))
            A('s_add_u32 %s, %s, %s' % (s(U), s(U), s(g.S_CB)))
            A('s_add_u32 %s, %s, %d' % (s(U), s(U), 48 * 32))
            A('s_lshl_b32 %s, %s, 13' % (s(g.S_EB), s(U)))
            A('s_lshl_b32 %s, %s, 8' % (s(U), s(c.S_WAVE)))
            A('s_add_u32 %s, %s, 0x%x' % (s(U), s(U), GV + 6 * 1024))
            A('v_lshlrev_b32 %s, 2, %s' % (v(c.V_T), v(c.V_N)))
            for tm in range(4):
                A('buffer_load_dword %s, %s, %s, %s offen offset:%d sc1' % (v(g.V_G8 + tm), v(c.V_T), s(c.S_WS, 4), s(U), tm * 64))
            A('v_mov_b32 %s, %d' % (v(c.V_T + 2), D_KV + 24))
            poll_dword(A, g.S_DB, c.V_T + 2, c.V_T + 3, U + 2, U + 3, lambda st: A('s_cmp_ge_u32 %s, 0x1000' % s(st)), L_exit, g.tag)
            g.epi_attn(L_exit, late=True)
            A('s_mov_b32 %s, %d' % (s(U), D_KV + 24))
            A('s_mov_b32 %s, 0x10000' % s(U + 1))
            signal(A, c, g.S_DB, U, U + 1, g.tag)
            g.stamp()
        if g.late and g.eo:
            Lsk = A.new_label('eo' + g.tag)
            A('s_cmp_eq_u32 %s, 0' % s(g.S_TY))
            A('s_cbranch_scc1 %s' % Lsk)
            A('s_mov_b32 %s, %s' % (s(g.S_NRB), s(g.S_EB)))
            A('s_mov_b32 %s, %s' % (s(g.S_NCB), s(U + 6)))
            late()
            A('s_mov_b32 %s, %s' % (s(g.S_EB), s(g.S_NRB)))
            A('s_mov_b32 %s, %s' % (s(U + 6), s(g.S_NCB)))
            A('s_lshl_b32 %s, %s, 2' % (s(U + 5), s(g.S_J)))
            A('s_add_u32 %s, %s, %d' % (s(U + 5), s(U + 5), D_FT))
            for tp in range(4):
                Le = A.new_label('kf' + g.tag)
                A('s_cmp_lg_u32 %s, %d' % (s(g.S_XG), tp))
                A('s_cbranch_scc1 %s' % Le)
                for q in range(2):
                    for fg in range(4):
                        c.rd8(KEEP + (q * 4 + fg) * 8, c.acc(fg, 2 * tp + q))
                A.label(Le)
            A.label(Lsk)
        A('v_mov_b32 %s, %s' % (v(c.V_T + 2), s(U + 5)))
        A('s_lshl_b32 %s, %s, 16' % (s(U + 7), s(g.S_XG)))
        A('s_add_u32 %s, %s, %s' % (s(g.S_EB), s(g.S_EB), s(U + 7)))
        A('s_add_u32 %s, %s, %s' % (s(U + 6), s(U + 6), s(U + 7)))
        vo = c.V_T + 60
        A('v_and_b32 %s, 1, %s' % (v(vo), v(c.V_G)))
        A('v_lshlrev_b32 %s, 5, %s' % (v(vo), v(vo)))
        A('v_lshrrev_b32 %s, 1, %s' % (v(vo + 1), v(c.V_G)))
        A('v_lshl_add_u32 %s, %s, 4, %s' % (v(vo), v(vo + 1), v(vo)))
        A('v_lshl_add_u32 %s, %s, 11, %s' % (v(vo), v(c.V_N), v(vo)))

        def fc(st):
            A('s_and_b32 %s, %s, 0xff' % (s(st), s(st)))
            A('s_cmp_ge_u32 %s, 4' % s(st))
        poll_dword(A, g.S_DB, c.V_T + 2, c.V_T + 3, U + 2, U + 3, fc, L_exit, g.tag)
        g.stamp()
        vm = VM(A)
        vm.issue(0, ['buffer_load_dword %s, off, %s, 0 offset:%d sc1' % (v(c.V_T + 3), s(g.S_DB, 4), D_FB)])
        if g.claims:
            A('v_lshrrev_b32 %s, 2, %s' % (v(c.V_T + 2), v(c.V_L16)))
            A('v_and_b32 %s, 28, %s' % (v(c.V_T + 2), v(c.V_T + 2)))
            vm.issue(0, ['buffer_load_dword %s, %s, %s, 0 offen sc1' % (v(vo + 1), v(c.V_T + 2), s(g.S_DB, 4))])
        for q in range(2):
            for p in range(3):
                A('s_add_u32 %s, %s, %d' % (s(T), s(g.S_XG), p + 1))
                A('s_and_b32 %s, %s, 3' % (s(T), s(T)))
                A('s_lshl_b32 %s, %s, 22' % (s(T), s(T)))
                A('s_add_u32 %s, %s, %s' % (s(T), s(T), s(g.S_EB)))
                A('s_add_u32 %s, %s, 0x%x' % (s(T), s(T), PP + q * 32768))
                b = (32 if q == 0 else 192) + p * 16
                vm.issue(q, ['buffer_load_dwordx4 %s, %s, %s, %s offen offset:%d' % (v(b + 4 * fg, 4), v(c.V_L16), s(c.S_WS, 4), s(T), fg * 1024) for fg in range(4)])
        A('s_mov_b32 %s, 0xffff0000' % s(T + 3))
        for q in range(2):
            vm.wait(q)
            for fg in range(4):
                t = KEEP + (q * 4 + fg) * 8
                u = 96 + (fg & 1) * 8
                for p in range(3):
                    r = (32 if q == 0 else 192) + p * 16 + fg * 4
                    for k in range(4):
                        A('v_lshlrev_b32 %s, 16, %s' % (v(u + 2 * k), v(r + k)))
                        A('v_and_b32 %s, %s, %s' % (v(u + 2 * k + 1), s(T + 3), v(r + k)))
                    for k in range(4):
                        A('v_pk_add_f32 %s, %s, %s' % (v(t + 2 * k, 2), v(t + 2 * k, 2), v(u + 2 * k, 2)))
                c.pk8(t, t)
        Lb = A.new_label('tb' + g.tag)
        A('v_cmp_ne_u32 vcc, 0, %s' % v(c.V_T + 3))
        A('s_cbranch_vccnz %s' % L_done)
        if g.claims == 1:
            A('v_cmp_ne_u32 vcc, -1, %s' % v(vo + 1))
            A('s_cbranch_vccnz %s' % L_exit)
        A('s_cmp_lg_u32 %s, 0' % s(g.S_TY))
        A('s_cbranch_scc1 %s' % Lb)
        for q in range(2):
            A('s_add_u32 %s, %s, 0x%x' % (s(T), s(U + 6), q * 32768))
            for fg in range(4):
                d = KEEP + (q * 4 + fg) * 8
                A('v_permlane16_swap_b32 %s, %s' % (v(d), v(d + 2)))
                A('v_permlane16_swap_b32 %s, %s' % (v(d + 1), v(d + 3)))
                A('buffer_store_dwordx4 %s, %s, %s, %s offen offset:%d' % (v(d, 4), v(vo), s(g.S_OUT, 4), s(T), fg * 64))
        if g.claims == 2:
            A('v_cmp_ne_u32 vcc, -1, %s' % v(vo + 1))
            A('s_cbranch_vccnz %s' % L_exit)
        g.stamp()
        A('s_branch %s' % L_done)
        A.label(Lb)
        for q in range(2):
            A('s_add_u32 %s, %s, 0x%x' % (s(T), s(g.S_EB), BB + q * 32768))
            for fg in range(4):
                A('buffer_store_dwordx4 %s, %s, %s, %s offen offset:%d sc1' % (v(KEEP + (q * 4 + fg) * 8, 4), v(c.V_L16), s(c.S_WS, 4), s(T), fg * 1024))
        A('s_mov_b32 %s, 0x100' % s(U + 1))
        signal(A, c, g.S_DB, U + 5, U + 1, g.tag)
        g.stamp()
        if g.late and not g.eo:
            late()
        A('s_branch %s' % L_done)
```

```python
MB = 1 << 20
WS_BYTES = 256 * MB
MEMB = 0
OB = 0x40000
WB = 0x80000
SCB = 0x100000
PROG = 0x200000
DIAG = 0x208000
WB2 = 0x300000
KM = 0x400000
VM = 0x800000
KX = 0x1000000
VT = 0x2200000
QX = 0x3400000
OX = 0x4400000
HB = 0x5000000
BB = 0x6000000
AP = 0x6400000
FP = 0x6800000
GV = 0x7000000
XI = 0x7400000
DIAG2 = 0x8000000
K_X, K_MEM0, K_WQ, K_WK, K_WV, K_WO, K_SEG, K_BX, K_WG, K_WU, K_WD, K_GW, K_OUT, K_DBG, K_WS = [8 * i for i in range(15)]
JB = 0xC000000
D_KV = 32
D_START = 64
D_SEL = 68
D_H = 72
D_FAIL = 104
D_FB = 108
D_FT = 128
OI = 0x9000000
PP = 0xA000000
TX = 0xB000000
D_TA = 112
```

```python
import sys
sys.path.insert(0, 'gen')
from common import *
from chain2 import srd
from chain5 import Chain5
from gside2 import GSide2
from build_chain4 import ticket
import re
import fallback


def build(path, opts):
    prm = dict(eo=1, tb=6, cal=8, pa=2, cw=1, cp=2, al=8, ab=1, e_C=2, la=0, nr=1, wa=0, op=0, mp=0, m=2, tail=1, ma=1, k6=0x200000, xi=1, wk=1, pz=3, zw=1, sl=1, ke=1, tk=1, pc=3, pg=0)
    for o in opts:
        m = re.match(r'^([a-zA-Z]+[a-zA-Z0-9_]*?)=(\d+)$', o)
        if m:
            prm[m.group(1)] = int(m.group(2))
    diag = 'diag' in opts
    prm['st'] = int(diag)
    A = Asm()
    if prm['tail']:
        from chain6 import Chain6 as C
    else:
        C = Chain5
    c = C(A, diag=False, prm=prm)
    g = GSide2(A, tag='g', diag=diag, m=prm['m'], late=prm['ma'] == 1, eo=prm.get('eo', 0), claims={0: 1, 1: 0, 2: 2}[prm.get('nc', 0)] if prm.get('tk') else 0)
    L_exit, L_done = 'L_exit', 'L_done'
    if prm.get('tb'):
        col = {1: [(16, 2), (12, 4), (0, 12), (18, 10)], 2: [(16, 2), (14, 2), (0, 14), (18, 10)]}[min(prm['tb'], 2) if prm['tb'] != 3 else 1]
        tab = GSide2.table
        if prm['tb'] >= 3:
            tab = [[(0, 0, 21, 11), (0, 0, 27, 5), (0, 0, 23, 9)], [(0, 0, 12, 9), (0, 0, 16, 11), (0, 0, 14, 9)],
                   [(0, 20, 0, 3), (0, 16, 0, 8), (0, 16, 0, 7)], [(20, 8, 3, 9), (16, 12, 8, 8), (16, 12, 7, 7)]]
        if prm['tb'] >= 5:
            tab = [[(0, 0, 21, 11), (0, 0, 27, 5), (0, 0, 24, 8)], [(0, 0, 12, 9), (0, 0, 15, 12), (22, 6, 16, 8)],
                   [(0, 20, 0, 3), (0, 16, 0, 9), (0, 16, 0, 8)], [(20, 8, 3, 9), (16, 12, 9, 6), (16, 6, 8, 8)]]
        if prm['tb'] >= 6:
            tab = [[(0, 0, 21, 11), (0, 0, 27, 5), (0, 0, 24, 8)], [(0, 0, 12, 9), (0, 0, 16, 11), (22, 6, 16, 8)],
                   [(0, 20, 0, 3), (0, 16, 0, 9), (0, 16, 0, 7)], [(20, 8, 3, 9), (16, 12, 9, 7), (16, 6, 7, 9)]]
        for k in range(3):
            assert sorted(t for r in tab for t in range(r[k][0], r[k][0] + r[k][1])) == list(range(28))
            assert sorted(t for r in tab for t in range(r[k][2], r[k][2] + r[k][3])) == list(range(32))
        g.table = [r[:3] + [col[x] + (0, 0)] for x, r in enumerate(tab)]
    A('s_cmp_ge_u32 s2, 256')
    A('s_cbranch_scc1 L_end')
    A('s_load_dwordx2 s[4:5], s[0:1], %d' % K_DBG)
    A('s_load_dwordx2 s[6:7], s[0:1], %d' % K_WS)
    if prm.get('tk'):
        A('s_load_dwordx2 s[8:9], s[0:1], %d' % K_X)
    A('s_getreg_b32 %s, hwreg(HW_REG_XCC_ID, 0, 4)' % s(c.S_X))
    A('s_waitcnt lgkmcnt(0)')
    srd(A, c.S_WS, 6, WS_BYTES)
    srd(A, c.S_DB, 4, 256)
    A('s_cmp_ge_u32 %s, %d' % (s(c.S_X), 0 if prm.get('fb') == 1 else 8))
    A('s_cbranch_scc1 L_exit')
    if prm.get('tk'):
        A('s_lshr_b32 %s, s2, 3' % s(c.S_J))
        if prm['tk'] in (2, 5):
            A('s_cmp_eq_u32 s2, %d' % (77 if prm['tk'] == 2 else 74))
            A('s_cselect_b32 %s, 3, %s' % (s(c.S_J), s(c.S_J)))
        if prm['tk'] in (6, 7):
            A('s_cmp_lt_u32 %s, 4' % s(c.S_X))
            A('s_cselect_b32 s3, %d, 30' % (31 if prm['tk'] == 6 else 23))
            A('s_and_b32 %s, %s, s3' % (s(c.S_J), s(c.S_J)))
        if prm['tk'] == 8:
            A('s_and_b32 s3, %s, 6' % s(c.S_J))
            A('s_bcnt1_i32_b32 s3, s3')
            A('s_lshr_b32 vcc_lo, %s, 2' % s(c.S_X))
            A('s_add_u32 s3, s3, vcc_lo')
            A('s_and_b32 s3, s3, 1')
            A('s_and_b32 %s, %s, 30' % (s(c.S_J), s(c.S_J)))
            A('s_or_b32 %s, %s, s3' % (s(c.S_J), s(c.S_J)))
        A('s_cmp_lt_u32 %s, 4' % s(c.S_X))
        A('s_cselect_b32 s3, %d, %d' % (prm.get('pc', 3), prm.get('pg', 3)))
        A('s_mul_i32 %s, %s, 33' % (s(c.S_J), s(c.S_J)))
        A('s_lshr_b32 %s, %s, s3' % (s(c.S_J), s(c.S_J)))
        A('s_and_b32 %s, %s, 31' % (s(c.S_J), s(c.S_J)))
        A('s_lshl_b32 s3, 1, %s' % s(c.S_J))
        A('v_mov_b32 v1, s3')
        A('s_lshl_b32 s3, %s, 2' % s(c.S_X))
        A('v_mov_b32 v2, s3')
        A('v_cmp_eq_u32 vcc, 0, v0')
        A('s_cbranch_vccz L_tk')
        A('s_mov_b64 exec, 1')
        A('buffer_atomic_add v1, v2, %s, 0 offen sc1' % s(c.S_DB, 4))
        A('s_mov_b64 exec, -1')
        A.label('L_tk')
    else:
        ticket(A, c.S_X, c.S_J, c.S_DB)
        A('s_cmp_ge_u32 %s, 32' % s(c.S_J))
        A('s_cbranch_scc1 L_exit')
    if prm.get('fb', 0) >= 2:
        A('s_lshl_b32 s3, %s, 5' % s(c.S_X))
        A('s_add_u32 s3, s3, %s' % s(c.S_J))
        A('s_cmp_eq_u32 s3, %d' % prm['fb'])
        A('s_cbranch_scc1 L_end')
    A('s_cmp_ge_u32 %s, 4' % s(c.S_X))
    A('s_cbranch_scc1 L_other')
    if diag:
        A('s_memrealtime s[100:101]')
    c.prologue(L_exit, L_done)
    A.label(L_exit)
    A('s_branch L_fb')
    A.label(L_done)
    if diag:
        A('s_memrealtime s[4:5]')
    if prm['tail']:
        c.tail(L_exit, 'L_stop')
    if diag:
        A('s_memrealtime s[98:99]')
        A('s_lshl_b32 %s, %s, 5' % (s(c.S_T), s(c.S_X)))
        A('s_add_u32 %s, %s, %s' % (s(c.S_T), s(c.S_T), s(c.S_J)))
        A('s_lshl_b32 %s, %s, 4' % (s(c.S_T + 1), s(c.S_T)))
        A('s_add_u32 %s, %s, 0x%x' % (s(c.S_T + 1), s(c.S_T + 1), DIAG))
        A('s_waitcnt vmcnt(0) lgkmcnt(0)')
        A('v_mov_b32 v40, s100')
        A('v_mov_b32 v41, s2')
        A('v_mov_b32 v42, s4')
        A('v_mov_b32 v43, s98')
        A('v_mov_b32 v44, 0')
        A('s_mov_b64 exec, 1')
        A('buffer_store_dwordx4 v[40:43], v44, %s, %s offen' % (s(c.S_WS, 4), s(c.S_T + 1)))
        if prm.get('ts'):
            A('s_lshl_b32 %s, %s, 2' % (s(c.S_T), s(c.S_T)))
            A('s_add_u32 %s, %s, %s' % (s(c.S_T), s(c.S_T), s(c.S_WAVE)))
            A('s_lshl_b32 %s, %s, 6' % (s(c.S_T), s(c.S_T)))
            A('s_add_u32 %s, %s, 0x%x' % (s(c.S_T), s(c.S_T), DIAG2))
            for k in range(8):
                A('v_mov_b32 v%d, s%d' % (48 + k, 74 + 2 * k))
            A('v_mov_b32 v56, s4')
            A('v_mov_b32 v57, s98')
            A('buffer_store_dwordx4 v[48:51], v44, %s, %s offen' % (s(c.S_WS, 4), s(c.S_T)))
            A('buffer_store_dwordx4 v[52:55], v44, %s, %s offen offset:16' % (s(c.S_WS, 4), s(c.S_T)))
            A('buffer_store_dwordx2 v[56:57], v44, %s, %s offen offset:32' % (s(c.S_WS, 4), s(c.S_T)))
    A.label('L_stop')
    A('s_endpgm')
    A.label('L_other')
    assert c.S_WS == g.c.S_WS
    A('s_sub_u32 %s, %s, 4' % (s(g.S_XG), s(c.S_X)))
    A('s_mov_b32 %s, %s' % (s(g.S_J), s(c.S_J)))
    g.emit('L_fb', 'L_end')
    fallback.emit(A, 'L_fb', 'L_end')
    A.label('L_end')
    A('s_endpgm')
    lines = finish(A, verbose=False)
    if 'al' in prm:
        k = next(i for i, l in enumerate(lines) if re.match(r'^step\w*:', l))
        lines[k:k] = ['s_branch ' + lines[k][:-1], '.p2align %d' % prm.get('ap', 6)] + ['s_nop 0'] * prm['al']
    if prm.get('ab'):
        k0 = next(i for i, l in enumerate(lines) if re.match(r'^step\w*:', l))
        k1 = len(lines) if prm['ab'] & 2 else lines.index('L_other:')
        out = lines[:k0 + 1]
        for i in range(k0 + 1, len(lines)):
            if i <= k1 and re.match(r'^\w+:', lines[i]) and re.match(r'^\s*(s_branch|s_endpgm)', lines[i - 1]):
                out.append('.p2align %d' % prm.get('aq', 5))
            out.append(lines[i])
        lines = out
    if 'ag' in prm:
        out = []
        for l in lines:
            if re.match(r'^g0_\d+:', l):
                out += ['s_branch ' + l[:-1], '.p2align 6'] + ['s_nop 0'] * prm['ag']
            out.append(l)
        lines = out
    for stem, n in [(k[2:], n) for k, n in prm.items() if k.startswith('n_')]:
        k = next(i for i, l in enumerate(lines) if re.match(r'^%s\w*:' % stem, l))
        while not lines[k].strip().startswith('s_waitcnt vmcnt'):
            k += 1
        lines[k:k] = ['s_nop 0'] * n
    for stem, n in [(k[2:], n) for k, n in prm.items() if k.startswith('e_')]:
        k = next(i for i, l in enumerate(lines) if re.match(r'^%s\w*:' % stem, l))
        while n:
            if lines[k].strip().startswith('v_cmp_eq_u32 vcc'):
                lines[k] = lines[k].replace('v_cmp_eq_u32 ', 'v_cmp_eq_u32_e64 ')
                n -= 1
            k += 1
    write_file(path, [(NAME + '_kernel', 256, 256, 147456)], [(NAME + '_kernel', lines, 512, 256)])


if __name__ == '__main__':
    from mkco import mkco
    for spec in sys.argv[1:]:
        opts = spec.split('+')
        p = 'm_%s.s' % spec.replace('+', '_').replace('=', '')
        build(p, opts)
        mkco(p)
```
